```python
import torch

def _softmax(x, axis=-1):
    return torch.softmax(x, dim=axis)
def _gelu(x):
    return torch.nn.functional.gelu(x, approximate="tanh")
def _silu(x):
    return torch.nn.functional.silu(x)
def _sigmoid(x):
    return torch.sigmoid(x)
def _layernorm(x, axis=-1, eps=1e-5):
    m = x.mean(dim=axis, keepdim=True)
    v = x.var(dim=axis, keepdim=True, unbiased=False)
    return (x - m) / torch.sqrt(v + eps)
def _scatter_add(tgt, idx, src, axis=0):
    return tgt.clone().index_add_(axis, idx, src)
def _segment_sum(src, seg, n):
    out = torch.zeros((n,) + src.shape[1:], dtype=src.dtype)
    return out.index_add_(0, seg, src)
def _pad(x, pw):
    flat = tuple(v for pair in reversed(pw) for v in pair)
    return torch.nn.functional.pad(x, flat)

kernel_name = 'standalone__paged_block_table_kv_pagedattention__sampling'

def setup_inputs():

    _w = (lambda a: (lambda t: t.to(torch.bfloat16) if t.is_floating_point() else t)(torch.as_tensor(a)))
    B, Hq, Hkv, Sq, Skv, D = 32, 16, 8, 1, 2048, 256
    bs = 16
    nbps = max(1, Skv // bs)
    num_phys = B * nbps + 4
    bt = torch.randperm(num_phys)[: B * nbps].reshape(B, nbps).to(torch.int64)
    cl = (nbps * bs - (torch.arange(1, B + 1, dtype=torch.int64) * 2654435761) % max(1, nbps * bs // 2)).to(torch.int64)
    return {
        "q": _w((lambda *s: torch.randn(*s, dtype=torch.bfloat16) * 0.8)(B, Hq, Sq, D)),
        "k_cache": _w((lambda *s: torch.randn(*s, dtype=torch.bfloat16) * 0.8)(num_phys, bs, Hkv, D)),
        "v_cache": _w((lambda *s: torch.randn(*s, dtype=torch.bfloat16) * 0.05)(num_phys, bs, Hkv, D)),
        "block_table": _w(bt),
        "context_lens": _w(cl),
    }

def reference(q, k_cache, v_cache, block_table, context_lens):
    B, Hq, Sq, D = q.shape
    bs = k_cache.shape[1]
    Hkv = k_cache.shape[2]
    nbps = block_table.shape[1]
    Skv = nbps * bs
    bt = block_table.reshape(-1)
    k = (lambda x, *d: x.permute(*d))(k_cache[bt].reshape(B, Skv, Hkv, D), 0, 2, 1, 3)
    v = (lambda x, *d: x.permute(*d))(v_cache[bt].reshape(B, Skv, Hkv, D), 0, 2, 1, 3)
    g = Hq // Hkv
    qg = q.reshape(B, Hkv, g, Sq, D)
    scores = torch.einsum("bhgqd,bhkd->bhgqk", qg, k) * (D ** -0.5)
    pos = torch.arange(Skv)
    msk = pos[None, :] < context_lens[:, None]
    scores = torch.where(msk[:, None, None, None, :], scores, -1e9)
    p = _softmax(scores, axis=-1)
    out = torch.einsum("bhgqk,bhkd->bhgqd", p, v)
    return out.reshape(B, Hq, Sq, D)
```

```python
import sys

NAME = "standalone__paged_block_table_kv_pagedattention__sampling"

SLOT = 17408
WAVE_RING = 2 * SLOT
K_OFF = 1024
V_OFF = 9216
TAB_BASE = 4 * WAVE_RING
LDS_BYTES = TAB_BASE + 16384
RECSZ = 2304

out = []
def E(s=""):
    out.append(s)
def I(s):
    out.append("    " + s)

sKA = 16
sK = 32
sV = 36
sQ = 40
sT = 44
sWS = 48
sO = 52
sD = 56
sB, sH, sW = 60, 61, 62
sL = 63
sWB = 64
sNW = 65
sI = 66
sCur, sNxt, sNew = 67, 68, 69
sPhys = 70
sT0, sT1, sT2, sT3 = 71, 72, 73, 74
sPend, sPendOff, sPendVal = 75, 76, 77
sScale = 78
sHC = 79
sCAPB = 80
sEXB, sEXN = 81, 82
sX0, sXE = 83, 84
sCnt = 85
sQoff = 86
sScr = 87
sEX2 = 88
sM2 = 90
sExp = 92
sRec = 93
sK0 = 94
sLen = 95
sJ = 96
sSpin = 97
sCSC = 98

vLane = 1
vT0, vT1, vT2, vT3, vT4, vT5, vT6, vT7 = 2, 3, 4, 5, 6, 7, 8, 9
vPhys, vInfo = 10, 11
vCAP, vCAPI = 12, 13
vEX, vEXI = 14, 15
vKoff = 16
vVoff = 24
vQoff = 32
vQaddr = 33
vKaddr = 34
vVaddr = 38
vTok = 46
vM, vLs = 50, 51
vS = 52
vP = 56
vX = 58
vA0, vA1 = 62, 63
vQ = 64
vK = 96
vV = 128
vAcc = 160
vNeg = 224
vCE = 225
vNB = 226
vR = 228

def srd(s, lo, hi, nrec):
    I(f"s_mov_b32 s{s}, s{lo}")
    I(f"s_and_b32 s{s+1}, s{hi}, 0xffff")
    I(f"s_mov_b32 s{s+2}, {nrec}")
    I(f"s_mov_b32 s{s+3}, 0x00020000")

def scan32(v):
    for sh in (1, 2, 4, 8):
        I("s_nop 1")
        I(f"v_add_u32_dpp v{v}, v{v}, v{v} row_shr:{sh} row_mask:0xf bank_mask:0xf bound_ctrl:0")
    I("s_nop 1")
    I(f"v_add_u32_dpp v{v}, v{v}, v{v} row_bcast:15 row_mask:0xa bank_mask:0xf")

def xlane(op, v, ta, tb):
    I(f"v_mov_b32 v{ta}, v{v}")
    I(f"v_mov_b32 v{tb}, v{v}")
    I("s_nop 1")
    I(f"v_permlane32_swap_b32 v{ta}, v{tb}")
    I("s_nop 1")
    I(f"{op} v{v}, v{ta}, v{tb}")
    I(f"v_mov_b32 v{ta}, v{v}")
    I("s_nop 0")
    I(f"v_mov_b32 v{tb}, v{v}")
    I("s_nop 1")
    I(f"v_permlane16_swap_b32 v{ta}, v{tb}")
    I("s_nop 1")
    I(f"{op} v{v}, v{ta}, v{tb}")

def read_item():
    I(f"v_readlane_b32 s{sNew}, v{vInfo}, s{sI}")
    I(f"v_readlane_b32 s{sPhys}, v{vPhys}, s{sI}")
    I("s_nop 3")
    I(f"s_lshl_b32 s{sT0}, s{sPhys}, 16")
    I(f"s_lshr_b32 s{sT1}, s{sPhys}, 16")
    I(f"s_add_u32 s{sK}, s{sKA+2}, s{sT0}")
    I(f"s_addc_u32 s{sK+1}, s{sKA+3}, s{sT1}")
    I(f"s_add_u32 s{sV}, s{sKA+4}, s{sT0}")
    I(f"s_addc_u32 s{sV+1}, s{sKA+5}, s{sT1}")
    I(f"s_bfe_u32 s{sT2}, s{sNew}, 0x50008")
    I(f"s_lshl_b32 s{sK+2}, s{sT2}, 12")
    I(f"s_lshl_b32 s{sV+2}, s{sT2}, 12")
    I(f"s_and_b32 s{sT3}, s{sNew}, 31")
    I(f"s_lshl_b32 s{sT3}, s{sT3}, 13")
    I(f"s_lshl_b32 s{sT2}, s{sH}, 10")
    I(f"s_add_u32 s{sQoff}, s{sT3}, s{sT2}")
    I(f"s_add_u32 s{sI}, s{sI}, 1")

def issue_qk(slot):
    so = slot * SLOT
    I(f"s_add_u32 m0, s{sWB}, {so}")
    I("s_nop 0")
    I(f"buffer_load_dwordx4 v{vQoff}, s[{sQ}:{sQ+3}], s{sQoff} offen lds")
    I(f"s_add_u32 m0, s{sWB}, {so + K_OFF}")
    I("s_nop 0")
    for n in range(4):
        I(f"buffer_load_dwordx4 v{vKoff+n}, s[{sK}:{sK+3}], 0 offen offset:{n*1024} nt lds")
    I(f"s_add_u32 m0, s{sWB}, {so + K_OFF + 4096}")
    I("s_nop 0")
    for n in range(4, 8):
        I(f"buffer_load_dwordx4 v{vKoff+n}, s[{sK}:{sK+3}], 0 offen offset:{(n&3)*1024} nt lds")

def issue_v(slot):
    so = slot * SLOT
    I(f"s_add_u32 m0, s{sWB}, {so + V_OFF}")
    I("s_nop 0")
    for n in range(4):
        I(f"buffer_load_dwordx4 v{vVoff+n}, s[{sV}:{sV+3}], 0 offen offset:{n*1024} nt lds")
    I(f"s_add_u32 m0, s{sWB}, {so + V_OFF + 4096}")
    I("s_nop 0")
    for n in range(4, 8):
        I(f"buffer_load_dwordx4 v{vVoff+n}, s[{sV}:{sV+3}], 0 offen offset:{(n&3)*1024} nt lds")

def fire_flag():
    I(f"v_mov_b32 v{vT0}, s{sPendOff}")
    I(f"v_mov_b32 v{vT1}, s{sPendVal}")
    I(f"s_mov_b64 exec, 1")
    I(f"buffer_atomic_add v{vT1}, v{vT0}, s[{sD}:{sD+3}], 0 offen")
    I(f"s_mov_b64 exec, -1")

def dump_partial():
    xlane("v_add_f32", vLs, vT0, vT1)
    I(f"v_lshlrev_b32 v{vT2}, 2, v{vLane}")
    I(f"v_add_u32 v{vT2}, s{sScr}, v{vT2}")
    I(f"v_add_u32 v{vT3}, 0x400, v{vT2}")
    I(f"v_lshlrev_b32 v{vT4}, 3, v{vLane}")
    I(f"v_add_u32 v{vT4}, s{sScr}, v{vT4}")
    I(f"s_mov_b64 exec, 0xffff")
    for n in range(16):
        a = vT2 if n < 8 else vT3
        o = (n & 7) * 32
        I(f"ds_write2_b32 v{a}, v{vAcc+4*n}, v{vAcc+4*n+1} offset0:{o} offset1:{o+16}")
    I(f"s_mov_b64 exec, 3")
    I(f"ds_write_b64 v{vT4}, v[{vM}:{vM+1}] offset:2048")
    I(f"s_mov_b64 exec, -1")

def compute(slot, tag):
    so = slot * SLOT
    I("s_waitcnt vmcnt(25)")
    I(f"s_cmp_eq_u32 s{sPend}, 0")
    I(f"s_cbranch_scc1 L_nopend_{tag}")
    I(f"s_sub_u32 s{sPend}, s{sPend}, 1")
    I(f"s_cmp_lg_u32 s{sPend}, 0")
    I(f"s_cbranch_scc1 L_nopend_{tag}")
    fire_flag()
    E(f"L_nopend_{tag}:")
    for n in range(8):
        I(f"ds_read_b128 v[{vQ+4*n}:{vQ+4*n+3}], v{vQaddr} offset:{so + n*64}")
    for n in range(8):
        I(f"ds_read_b128 v[{vK+4*n}:{vK+4*n+3}], v{vKaddr+(n&3)} offset:{so + (n>>2)*256}")
    read_item()
    for n in range(8):
        I(f"s_waitcnt lgkmcnt({7-n})")
        c = "0" if n == 0 else f"v[{vS}:{vS+3}]"
        I(f"v_mfma_f32_16x16x32_bf16 v[{vS}:{vS+3}], v[{vK+4*n}:{vK+4*n+3}], v[{vQ+4*n}:{vQ+4*n+3}], {c}")
    issue_qk(slot)
    I(f"s_bitcmp1_b32 s{sCur}, 16")
    I(f"s_cselect_b32 s{sScale}, 0, s{sCSC}")
    I(f"s_bfe_u32 s{sT2}, s{sCur}, 0x50008")
    I(f"s_cmp_eq_u32 s{sT2}, 16")
    I(f"s_cbranch_scc1 L_full_{tag}")
    for r in range(4):
        I(f"v_cmp_gt_u32 vcc, s{sT2}, v{vTok+r}")
        I("s_nop 1")
        I(f"v_cndmask_b32 v{vS+r}, v{vNeg}, v{vS+r}, vcc")
    E(f"L_full_{tag}:")
    I(f"v_max3_f32 v{vX}, v{vS}, v{vS+1}, v{vS+2}")
    I(f"v_max_f32 v{vX}, v{vX}, v{vS+3}")
    I(f"v_mul_f32 v{vX}, s{sScale}, v{vX}")
    I(f"v_cmp_gt_f32 vcc, v{vX}, v{vM}")
    I("s_nop 1")
    I(f"s_cbranch_vccnz L_rare_{tag}")
    E(f"L_back_{tag}:")
    for r in range(4):
        I(f"v_fma_f32 v{vX+r}, v{vS+r}, s{sScale}, -v{vM}")
    for r in range(4):
        I(f"v_exp_f32 v{vX+r}, v{vX+r}")
    I("s_nop 0")
    I(f"v_cvt_pk_bf16_f32 v{vP}, v{vX}, v{vX+1}")
    I(f"v_cvt_pk_bf16_f32 v{vP+1}, v{vX+2}, v{vX+3}")
    I(f"v_add_f32 v{vX}, v{vX}, v{vX+1}")
    I(f"v_add_f32 v{vX+2}, v{vX+2}, v{vX+3}")
    I(f"v_add_f32 v{vLs}, v{vLs}, v{vX}")
    I(f"v_add_f32 v{vLs}, v{vLs}, v{vX+2}")
    I("s_waitcnt vmcnt(26)")
    for n in range(16):
        I(f"ds_read_b64_tr_b16 v[{vV+2*n}:{vV+2*n+1}], v{vVaddr+(n&7)} offset:{so + (n>>3)*256}")
    for n in range(16):
        I(f"s_waitcnt lgkmcnt({15-n})")
        I(f"v_mfma_f32_16x16x16_bf16 v[{vAcc+4*n}:{vAcc+4*n+3}], v[{vP}:{vP+1}], v[{vV+2*n}:{vV+2*n+1}], v[{vAcc+4*n}:{vAcc+4*n+3}]")
    issue_v(slot)
    I(f"s_xor_b32 s{sT0}, s{sCur}, s{sNxt}")
    I(f"s_and_b32 s{sT0}, s{sT0}, 31")
    I(f"s_cbranch_scc1 L_flush_{tag}")
    E(f"L_noflush_{tag}:")
    I(f"s_mov_b32 s{sCur}, s{sNxt}")
    I(f"s_mov_b32 s{sNxt}, s{sNew}")
    I(f"s_add_u32 s{sCnt}, s{sCnt}, 1")
    I(f"s_cmp_ge_u32 s{sCnt}, s{sNW}")

def rare_path(tag):
    E(f"L_rare_{tag}:")
    I(f"v_max_f32 v{vX}, v{vX}, v{vM}")
    xlane("v_max_f32", vX, vX+1, vX+2)
    I(f"v_sub_f32 v{vX+1}, v{vM}, v{vX}")
    I(f"v_exp_f32 v{vX+1}, v{vX+1}")
    I(f"v_mov_b32 v{vM}, v{vX}")
    I("s_nop 0")
    I(f"v_mul_f32 v{vLs}, v{vLs}, v{vX+1}")
    I(f"v_mov_b32_dpp v{vA0}, v{vX+1} quad_perm:[0,0,0,0] row_mask:0xf bank_mask:0xf")
    I(f"v_mov_b32_dpp v{vA1}, v{vX+1} quad_perm:[1,1,1,1] row_mask:0xf bank_mask:0xf")
    for n in range(16):
        I(f"v_mul_f32 v{vAcc+4*n}, v{vA0}, v{vAcc+4*n}")
        I(f"v_mul_f32 v{vAcc+4*n+1}, v{vA1}, v{vAcc+4*n+1}")
    I(f"s_branch L_back_{tag}")

def flush_path(tag):
    E(f"L_flush_{tag}:")
    I(f"s_cmp_eq_u32 s{sPend}, 0")
    I(f"s_cbranch_scc1 L_fl_np_{tag}")
    I("s_waitcnt vmcnt(0)")
    fire_flag()
    I(f"s_mov_b32 s{sPend}, 0")
    E(f"L_fl_np_{tag}:")
    I("s_nop 7")
    I("s_nop 7")
    dump_partial()
    I(f"s_and_b32 s{sT0}, s{sCur}, 31")
    I(f"s_lshl_b32 s{sT1}, s{sT0}, 5")
    I(f"s_add_u32 s{sT1}, s{sT1}, s{sB}")
    I(f"s_lshl_b32 s{sT1}, s{sT1}, 3")
    I(f"s_add_u32 s{sT1}, s{sT1}, s{sH}")
    I(f"s_lshl_b32 s{sT1}, s{sT1}, 2")
    I(f"s_add_u32 s{sT1}, s{sT1}, s{sW}")
    I(f"s_mul_i32 s{sRec}, s{sT1}, {RECSZ}")
    I(f"s_lshl_b32 s{sT1}, s{sT0}, 3")
    I(f"s_add_u32 s{sT1}, s{sT1}, s{sH}")
    I(f"s_and_b32 s{sPendOff}, s{sT1}, 0xfc")
    I(f"s_and_b32 s{sT1}, s{sT1}, 3")
    I(f"s_lshl_b32 s{sT1}, s{sT1}, 3")
    I(f"s_lshl_b32 s{sPendVal}, 1, s{sT1}")
    I(f"v_add_u32 v{vT2}, s{sScr}, v{vQoff}")
    I("s_waitcnt lgkmcnt(0)")
    I(f"ds_read_b128 v[{vR}:{vR+3}], v{vT2}")
    I(f"ds_read_b128 v[{vR+4}:{vR+7}], v{vT2} offset:1024")
    I(f"ds_read_b128 v[{vR+8}:{vR+11}], v{vT2} offset:2048")
    I("s_waitcnt lgkmcnt(0)")
    I(f"buffer_store_dwordx4 v[{vR}:{vR+3}], v{vQoff}, s[{sWS}:{sWS+3}], s{sRec} offen sc1")
    I(f"buffer_store_dwordx4 v[{vR+4}:{vR+7}], v{vQoff}, s[{sWS}:{sWS+3}], s{sRec} offen offset:1024 sc1")
    I(f"s_mov_b64 exec, 1")
    I(f"buffer_store_dwordx4 v[{vR+8}:{vR+11}], v{vQoff}, s[{sWS}:{sWS+3}], s{sRec} offen offset:2048 sc1")
    I(f"s_mov_b64 exec, -1")
    I(f"s_mov_b32 s{sPend}, 3")
    I(f"v_mov_b32 v{vM}, 0xff800000")
    I(f"s_branch L_noflush_{tag}")

def merge_one(m, l, o0, o1):
    M, Ls, A0, A1 = vR, vR+1, vR+2, vR+3
    I(f"v_max_f32 v{vT0}, v{M}, v{m}")
    I(f"v_sub_f32 v{vT1}, v{M}, v{vT0}")
    I(f"v_sub_f32 v{vT2}, v{m}, v{vT0}")
    I(f"v_exp_f32 v{vT1}, v{vT1}")
    I(f"v_exp_f32 v{vT2}, v{vT2}")
    I(f"v_mov_b32 v{M}, v{vT0}")
    I(f"v_mul_f32 v{Ls}, v{Ls}, v{vT1}")
    I(f"v_mul_f32 v{A0}, v{A0}, v{vT1}")
    I(f"v_mul_f32 v{A1}, v{A1}, v{vT1}")
    I(f"v_fmac_f32 v{Ls}, v{l}, v{vT2}")
    I(f"v_fmac_f32 v{A0}, v{o0}, v{vT2}")
    I(f"v_fmac_f32 v{A1}, v{o1}, v{vT2}")

def gen():
    E("; paged attention decode: B=32 Hq=16 Hkv=8 D=256 block=16 tokens, 128 blocks/seq")
    E(f"; @launch grid=(256,1,1) block=(256,1,1) lds={LDS_BYTES}")
    E('.amdgcn_target "amdgcn-amd-amdhsa--gfx950"')
    E(".text")
    E(f".globl {NAME}_kernel")
    E(".p2align 8")
    E(f".type {NAME}_kernel,@function")
    E(f"{NAME}_kernel:")
    I("s_cmp_ge_u32 s2, 256")
    I("s_cbranch_scc1 L_end")
    I(f"s_load_dwordx16 s[{sKA}:{sKA+15}], s[0:1], 0")
    I(f"v_and_b32 v{vLane}, 63, v0")
    I(f"v_lshrrev_b32 v{vT0}, 6, v0")
    I(f"s_lshr_b32 s{sB}, s2, 3")
    I(f"s_and_b32 s{sH}, s2, 7")
    I(f"v_readfirstlane_b32 s{sW}, v{vT0}")
    I(f"v_lshlrev_b32 v{vQoff}, 4, v{vLane}")
    I(f"v_lshlrev_b32 v{vT7}, 2, v{vLane}")
    I(f"s_mul_i32 s{sWB}, s{sW}, {WAVE_RING}")
    I(f"s_lshl_b32 s{sT0}, s{sW}, 12")
    I(f"s_add_u32 s{sScr}, s{sT0}, {TAB_BASE}")
    I(f"v_add_u32 v{vT6}, s{sT0}, v{vQoff}")
    I(f"s_mov_b32 m0, s{sScr}")
    I("s_waitcnt lgkmcnt(0)")
    srd(sT, sKA+8, sKA+9, 128)
    I(f"buffer_load_dword v{vCE}, v{vT7}, s[{sT}:{sT+3}], 0 offen")
    srd(sQ, sKA+6, sKA+7, 16384)
    for n in range(4):
        I(f"buffer_load_dwordx4 v{vT6}, s[{sQ}:{sQ+3}], 0 offen offset:{n*1024} lds")
    I(f"v_lshrrev_b32 v{vT0}, 5, v{vLane}")
    I(f"v_and_b32 v{vT1}, 31, v{vLane}")
    I(f"s_lshl_b32 s{sT0}, s{sH}, 9")
    I(f"v_lshlrev_b32 v{vT2}, 12, v{vT0}")
    I(f"v_add_u32 v{vT2}, s{sT0}, v{vT2}")
    I(f"v_xor_b32 v{vT3}, v{vT1}, v{vT0}")
    I(f"v_lshlrev_b32 v{vT4}, 1, v{vT0}")
    I(f"v_xor_b32 v{vT4}, v{vT1}, v{vT4}")
    for n in range(8):
        I(f"v_xor_b32 v{vT5}, {2*n}, v{vT3}")
        I(f"v_lshl_add_u32 v{vT5}, v{vT5}, 4, v{vT2}")
        I(f"v_add_u32 v{vKoff+n}, {n*8192-(n&3)*1024}, v{vT5}")
        I(f"v_xor_b32 v{vT5}, {((2*n)&7)<<1}, v{vT4}")
        I(f"v_lshl_add_u32 v{vT5}, v{vT5}, 4, v{vT2}")
        I(f"v_add_u32 v{vVoff+n}, {n*8192-(n&3)*1024}, v{vT5}")
    I(f"v_and_b32 v{vT0}, 15, v{vLane}")
    I(f"v_lshrrev_b32 v{vT1}, 4, v{vLane}")
    I(f"v_and_b32 v{vT2}, 1, v{vLane}")
    I(f"v_lshlrev_b32 v{vT2}, 9, v{vT2}")
    I(f"v_lshl_add_u32 v{vT2}, v{vT1}, 4, v{vT2}")
    I(f"v_add_u32 v{vQaddr}, s{sWB}, v{vT2}")
    I(f"v_xor_b32 v{vT2}, v{vT1}, v{vT0}")
    I(f"v_lshlrev_b32 v{vT3}, 9, v{vT0}")
    I(f"v_add_u32 v{vT3}, s{sWB}, v{vT3}")
    I(f"v_add_u32 v{vT3}, {K_OFF}, v{vT3}")
    for q in range(4):
        I(f"v_xor_b32 v{vT4}, {4*q}, v{vT2}")
        I(f"v_lshl_add_u32 v{vKaddr+q}, v{vT4}, 4, v{vT3}")
    I(f"v_lshrrev_b32 v{vT0}, 2, v{vLane}")
    I(f"v_and_b32 v{vT2}, 3, v{vLane}")
    I(f"v_and_b32 v{vT3}, 7, v{vT0}")
    I(f"v_lshlrev_b32 v{vT3}, 1, v{vT3}")
    I(f"v_lshrrev_b32 v{vT4}, 1, v{vT2}")
    I(f"v_xor_b32 v{vT3}, v{vT3}, v{vT4}")
    I(f"v_and_b32 v{vT4}, 1, v{vT2}")
    I(f"v_lshlrev_b32 v{vT4}, 3, v{vT4}")
    I(f"v_lshl_add_u32 v{vT4}, v{vT0}, 9, v{vT4}")
    I(f"v_add_u32 v{vT4}, s{sWB}, v{vT4}")
    I(f"v_add_u32 v{vT4}, {V_OFF}, v{vT4}")
    for q in range(8):
        I(f"v_xor_b32 v{vT5}, {2*q}, v{vT3}")
        I(f"v_lshl_add_u32 v{vVaddr+q}, v{vT5}, 4, v{vT4}")
    I(f"v_lshlrev_b32 v{vTok}, 2, v{vT1}")
    for r in range(1, 4):
        I(f"v_add_u32 v{vTok+r}, {r}, v{vTok}")
    I(f"v_mov_b32 v{vNeg}, 0xff7fffff")
    I(f"v_mov_b32 v{vM}, 0xff800000")
    I(f"v_mov_b32 v{vLs}, 0")
    for n in range(64):
        I(f"v_mov_b32 v{vAcc+n}, 0")
    I(f"s_mov_b32 s{sCSC}, 0x3db8aa3b")
    I(f"s_mov_b32 s{sPend}, 0")
    I(f"s_mov_b32 s{sPendOff}, 0")
    I(f"s_mov_b32 s{sPendVal}, 0")
    I(f"s_mov_b32 s{sK+3}, 0x00020000")
    I(f"s_mov_b32 s{sV+3}, 0x00020000")
    srd(sWS, sKA+14, sKA+15, 1074790400)
    srd(sO, sKA+10, sKA+11, 262144)
    srd(sD, sKA+12, sKA+13, 256)
    I(f"v_cmp_gt_u32 vcc, 32, v{vLane}")
    I("s_waitcnt vmcnt(4)")
    I(f"v_cmp_gt_i32 s[{sM2}:{sM2+1}], 1, v{vCE}")
    I(f"v_min_i32 v{vT0}, 0x800, v{vCE}")
    I(f"v_mov_b32 v{vT1}, 0x800")
    I(f"v_cndmask_b32 v{vCE}, v{vT0}, v{vT1}, s[{sM2}:{sM2+1}]")
    I(f"v_cndmask_b32 v{vT7}, 0, 1, s[{sM2}:{sM2+1}]")
    I(f"v_add_u32 v{vNB}, 15, v{vCE}")
    I(f"v_lshrrev_b32 v{vNB}, 4, v{vNB}")
    I(f"v_lshl_or_b32 v{vCE}, v{vT7}, 16, v{vCE}")
    I(f"v_cndmask_b32 v{vNB}, 0, v{vNB}, vcc")
    I(f"v_mov_b32 v{vT0}, v{vNB}")
    scan32(vT0)
    I("s_nop 0")
    I(f"v_readlane_b32 s{sT0}, v{vT0}, 31")
    I("s_nop 3")
    I(f"s_add_u32 s{sT0}, s{sT0}, 31")
    I(f"s_lshr_b32 s{sL}, s{sT0}, 5")
    I(f"v_subrev_u32 v{vT0}, s{sL}, v{vNB}")
    I(f"v_max_i32 v{vT1}, 0, v{vT0}")
    I(f"v_sub_u32 v{vT0}, 0, v{vT0}")
    I(f"v_max_i32 v{vT2}, 0, v{vT0}")
    I(f"v_cndmask_b32 v{vT2}, 0, v{vT2}, vcc")
    I(f"v_lshl_or_b32 v{vT3}, v{vT2}, 16, v{vT1}")
    scan32(vT3)
    I(f"v_and_b32 v{vEXI}, 0xffff, v{vT3}")
    I(f"v_lshrrev_b32 v{vCAPI}, 16, v{vT3}")
    I(f"v_sub_u32 v{vEX}, v{vEXI}, v{vT1}")
    I(f"v_sub_u32 v{vCAP}, v{vCAPI}, v{vT2}")
    I(f"v_readlane_b32 s{sT0}, v{vEXI}, 31")
    I(f"v_readlane_b32 s{sCAPB}, v{vCAP}, s{sB}")
    I(f"v_readlane_b32 s{sT1}, v{vT2}, s{sB}")
    I(f"v_readlane_b32 s{sT2}, v{vNB}, s{sB}")
    I(f"v_readlane_b32 s{sEXB}, v{vEX}, s{sB}")
    I(f"v_readlane_b32 s{sEXN}, v{vT1}, s{sB}")
    I(f"v_readlane_b32 s{sT3}, v{vCE}, s{sB}")
    I(f"v_mov_b32 v{vT0}, 0x7fffffff")
    I(f"v_cndmask_b32 v{vEXI}, v{vT0}, v{vEXI}, vcc")
    I(f"v_cndmask_b32 v{vCAPI}, v{vT0}, v{vCAPI}, vcc")
    I(f"s_sub_i32 s{sT0}, s{sT0}, s{sCAPB}")
    I(f"s_max_i32 s{sT0}, s{sT0}, 0")
    I(f"s_min_i32 s{sHC}, s{sT0}, s{sT1}")
    I(f"s_min_u32 s{sT2}, s{sT2}, s{sL}")
    I(f"s_add_u32 s{sT2}, s{sT2}, s{sHC}")
    I(f"s_sub_i32 s{sT0}, s{sT2}, s{sW}")
    I(f"s_add_i32 s{sT0}, s{sT0}, 3")
    I(f"s_ashr_i32 s{sNW}, s{sT0}, 2")
    I(f"v_lshlrev_b32 v{vT0}, 2, v{vLane}")
    I(f"v_add_u32 v{vT0}, s{sW}, v{vT0}")
    I(f"v_mov_b32 v{vT1}, s{sB}")
    I(f"v_subrev_u32 v{vT2}, s{sHC}, v{vT0}")
    I(f"v_mov_b32 v{vT3}, s{sT3}")
    I(f"v_add_u32 v{vT4}, s{sCAPB}, v{vT0}")
    I(f"v_cmp_gt_u32 s[{sM2}:{sM2+1}], s{sHC}, v{vT0}")
    I(f"s_mov_b32 s{sX0}, s{sCAPB}")
    I(f"s_add_u32 s{sXE}, s{sCAPB}, s{sHC}")
    E("L_piece:")
    I(f"s_cmp_ge_u32 s{sX0}, s{sXE}")
    I("s_cbranch_scc1 L_piece_done")
    I(f"v_cmp_ge_u32 vcc, s{sX0}, v{vEXI}")
    I("s_nop 3")
    I(f"s_bcnt1_i32_b64 s{sT0}, vcc")
    I(f"v_cmp_le_u32 vcc, s{sX0}, v{vT4}")
    I(f"v_readlane_b32 s{sT1}, v{vEX}, s{sT0}")
    I(f"v_readlane_b32 s{sX0}, v{vEXI}, s{sT0}")
    I(f"v_readlane_b32 s{sT3}, v{vCE}, s{sT0}")
    I("s_nop 3")
    I(f"s_and_b64 vcc, vcc, s[{sM2}:{sM2+1}]")
    I(f"s_sub_i32 s{sT1}, s{sL}, s{sT1}")
    I(f"v_mov_b32 v{vT5}, s{sT0}")
    I(f"v_add_u32 v{vT6}, s{sT1}, v{vT4}")
    I(f"v_mov_b32 v{vT7}, s{sT3}")
    I(f"v_cndmask_b32 v{vT1}, v{vT1}, v{vT5}, vcc")
    I(f"v_cndmask_b32 v{vT2}, v{vT2}, v{vT6}, vcc")
    I(f"v_cndmask_b32 v{vT3}, v{vT3}, v{vT7}, vcc")
    I("s_branch L_piece")
    E("L_piece_done:")
    I(f"v_cmp_gt_u32 vcc, s{sT2}, v{vT0}")
    I(f"v_and_b32 v{vT4}, 0xffff, v{vT3}")
    I(f"v_lshlrev_b32 v{vT5}, 4, v{vT2}")
    I(f"v_sub_u32 v{vT4}, v{vT4}, v{vT5}")
    I(f"v_min_i32 v{vT4}, 16, v{vT4}")
    I(f"v_cndmask_b32 v{vT4}, 0, v{vT4}, vcc")
    I(f"v_cndmask_b32 v{vT2}, 0, v{vT2}, vcc")
    I(f"v_and_b32 v{vT3}, 0x10000, v{vT3}")
    I(f"v_lshl_or_b32 v{vInfo}, v{vT4}, 8, v{vT1}")
    I(f"v_or_b32 v{vInfo}, v{vInfo}, v{vT3}")
    I(f"v_lshl_add_u32 v{vT5}, v{vT1}, 7, v{vT2}")
    I(f"v_lshlrev_b32 v{vT5}, 2, v{vT5}")
    I(f"v_add_u32 v{vT5}, {TAB_BASE}, v{vT5}")
    srd(sQ, sKA+0, sKA+1, 262144)
    I("s_waitcnt vmcnt(0)")
    I("s_barrier")
    I(f"ds_read_b32 v{vPhys}, v{vT5}")
    I(f"s_mov_b32 s{sI}, 0")
    I(f"s_mov_b32 s{sCnt}, 0")
    I("s_waitcnt lgkmcnt(0)")
    read_item()
    I(f"s_mov_b32 s{sCur}, s{sNew}")
    issue_qk(0)
    issue_v(0)
    read_item()
    I(f"s_mov_b32 s{sNxt}, s{sNew}")
    issue_qk(1)
    issue_v(1)
    I("s_barrier")
    I(f"s_cmp_eq_u32 s{sNW}, 0")
    I("s_cbranch_scc1 L_done")
    E("L_loop:")
    compute(0, "a")
    I("s_cbranch_scc1 L_done")
    compute(1, "b")
    I("s_cbranch_scc0 L_loop")
    E("L_done:")
    I("s_waitcnt vmcnt(0)")
    I(f"s_cmp_eq_u32 s{sPend}, 0")
    I("s_cbranch_scc1 L_fin0")
    fire_flag()
    E("L_fin0:")
    I("s_nop 7")
    dump_partial()
    I(f"v_lshrrev_b32 v{vT5}, 7, v0")
    I(f"v_and_b32 v{vT6}, 127, v0")
    I(f"v_lshrrev_b32 v{vT7}, 3, v{vT6}")
    I(f"v_and_b32 v{vT6}, 7, v{vT6}")
    I(f"v_lshlrev_b32 v{vT6}, 3, v{vT6}")
    I(f"v_lshl_add_u32 v{vT6}, v{vT7}, 7, v{vT6}")
    I(f"v_lshl_add_u32 v{vT6}, v{vT5}, 6, v{vT6}")
    I(f"v_lshlrev_b32 v{vT5}, 3, v{vT5}")
    I(f"v_add_u32 v{vT5}, 0x800, v{vT5}")
    I(f"v_add_u32 v{vT3}, {TAB_BASE}, v{vT6}")
    I(f"v_add_u32 v{vT4}, {TAB_BASE}, v{vT5}")
    I("s_waitcnt lgkmcnt(0)")
    I("s_barrier")
    for w in range(4):
        I(f"ds_read_b64 v[{vR+4+4*w}:{vR+5+4*w}], v{vT4} offset:{w*4096}")
        I(f"ds_read_b64 v[{vR+6+4*w}:{vR+7+4*w}], v{vT3} offset:{w*4096}")
    I(f"v_mov_b32 v{vR}, 0xff800000")
    I("s_waitcnt lgkmcnt(0)")
    I(f"v_max3_f32 v{vR}, v{vR+4}, v{vR+8}, v{vR+12}")
    I(f"v_max_f32 v{vR}, v{vR}, v{vR+16}")
    for w in range(4):
        I(f"v_sub_f32 v{vR+4+4*w}, v{vR+4+4*w}, v{vR}")
    for w in range(4):
        I(f"v_exp_f32 v{vR+4+4*w}, v{vR+4+4*w}")
    I("s_nop 0")
    I(f"v_mul_f32 v{vR+1}, v{vR+5}, v{vR+4}")
    I(f"v_mul_f32 v{vR+2}, v{vR+6}, v{vR+4}")
    I(f"v_mul_f32 v{vR+3}, v{vR+7}, v{vR+4}")
    for w in range(1, 4):
        I(f"v_fmac_f32 v{vR+1}, v{vR+5+4*w}, v{vR+4+4*w}")
        I(f"v_fmac_f32 v{vR+2}, v{vR+6+4*w}, v{vR+4+4*w}")
        I(f"v_fmac_f32 v{vR+3}, v{vR+7+4*w}, v{vR+4+4*w}")
    I(f"s_cmp_eq_u32 s{sEXN}, 0")
    I("s_cbranch_scc1 L_store")
    I(f"s_add_u32 s{sXE}, s{sEXB}, s{sEXN}")
    I(f"v_min_u32 v{vT0}, s{sXE}, v{vCAPI}")
    I(f"v_max_u32 v{vT1}, s{sEXB}, v{vCAP}")
    I(f"v_sub_u32 v{vT0}, v{vT0}, v{vT1}")
    I(f"v_cmp_gt_u32 vcc, 32, v{vLane}")
    I("s_nop 1")
    I(f"v_cndmask_b32 v{vT0}, 0, v{vT0}, vcc")
    I(f"s_mov_b32 s{sExp}, 0")
    for t in range(4):
        I(f"v_cmp_lt_i32 vcc, {t}, v{vT0}")
        I("s_nop 3")
        I(f"s_bcnt1_i32_b64 s{sT0}, vcc")
        I(f"s_add_u32 s{sExp}, s{sExp}, s{sT0}")
    I(f"s_and_b32 s{sT0}, s2, 0xfc")
    I(f"s_and_b32 s{sT1}, s2, 3")
    I(f"s_lshl_b32 s{sT1}, s{sT1}, 3")
    I(f"v_mov_b32 v{vT0}, s{sT0}")
    I(f"s_mov_b32 s{sSpin}, 0")
    E("L_poll:")
    I(f"buffer_load_dword v{vT1}, v{vT0}, s[{sD}:{sD+3}], 0 offen sc1")
    I("s_waitcnt vmcnt(0)")
    I(f"v_readfirstlane_b32 s{sT2}, v{vT1}")
    I("s_nop 3")
    I(f"s_lshr_b32 s{sT2}, s{sT2}, s{sT1}")
    I(f"s_and_b32 s{sT2}, s{sT2}, 0xff")
    I(f"s_cmp_ge_u32 s{sT2}, s{sExp}")
    I("s_cbranch_scc1 L_ready")
    I("s_sleep 8")
    I(f"s_add_u32 s{sSpin}, s{sSpin}, 1")
    I(f"s_cmp_lt_u32 s{sSpin}, 0x200000")
    I("s_cbranch_scc1 L_poll")
    E("L_ready:")
    I(f"s_mov_b32 s{sX0}, s{sEXB}")
    E("L_rec:")
    I(f"v_cmp_ge_u32 vcc, s{sX0}, v{vCAPI}")
    I("s_nop 3")
    I(f"s_bcnt1_i32_b64 s{sJ}, vcc")
    I("s_nop 0")
    I(f"v_readlane_b32 s{sT0}, v{vCAP}, s{sJ}")
    I(f"v_readlane_b32 s{sT1}, v{vCAPI}, s{sJ}")
    I("s_nop 3")
    I(f"s_sub_u32 s{sK0}, s{sX0}, s{sT0}")
    I(f"s_min_u32 s{sT1}, s{sT1}, s{sXE}")
    I(f"s_sub_u32 s{sLen}, s{sT1}, s{sX0}")
    I(f"s_mov_b32 s{sX0}, s{sT1}")
    I(f"s_lshl_b32 s{sT0}, s{sB}, 5")
    I(f"s_add_u32 s{sT0}, s{sT0}, s{sJ}")
    I(f"s_lshl_b32 s{sT0}, s{sT0}, 3")
    I(f"s_add_u32 s{sT0}, s{sT0}, s{sH}")
    I(f"s_mul_i32 s{sRec}, s{sT0}, {4*RECSZ}")
    for w in range(4):
        I(f"s_add_u32 s{sT0}, s{sRec}, {w*RECSZ}")
        I(f"buffer_load_dwordx2 v[{vR+4+4*w}:{vR+5+4*w}], v{vT5}, s[{sWS}:{sWS+3}], s{sT0} offen sc1")
        I(f"buffer_load_dwordx2 v[{vR+6+4*w}:{vR+7+4*w}], v{vT6}, s[{sWS}:{sWS+3}], s{sT0} offen sc1")
    for w in range(4):
        I(f"s_sub_u32 s{sT0}, {w}, s{sK0}")
        I(f"s_and_b32 s{sT0}, s{sT0}, 3")
        I(f"s_cmp_ge_u32 s{sT0}, s{sLen}")
        I(f"s_cbranch_scc1 L_skip{w}")
        I(f"s_waitcnt vmcnt({6-2*w})")
        merge_one(vR+4+4*w, vR+5+4*w, vR+6+4*w, vR+7+4*w)
        E(f"L_skip{w}:")
    I("s_waitcnt vmcnt(0)")
    I(f"s_cmp_lt_u32 s{sX0}, s{sXE}")
    I("s_cbranch_scc1 L_rec")
    E("L_store:")
    I(f"v_rcp_f32 v{vT0}, v{vR+1}")
    I(f"s_lshl_b32 s{sT0}, s2, 10")
    I(f"v_lshlrev_b32 v{vT1}, 2, v0")
    I(f"v_mul_f32 v{vR+2}, v{vR+2}, v{vT0}")
    I(f"v_mul_f32 v{vR+3}, v{vR+3}, v{vT0}")
    I(f"v_cvt_pk_bf16_f32 v{vT2}, v{vR+2}, v{vR+3}")
    I(f"buffer_store_dword v{vT2}, v{vT1}, s[{sO}:{sO+3}], s{sT0} offen")
    E("L_end:")
    I("s_endpgm")
    for tag in ("a", "b"):
        rare_path(tag)
        flush_path(tag)
    E('.section .rodata,"a"')
    E(".p2align 6")
    E(f".amdhsa_kernel {NAME}_kernel")
    E("  .amdhsa_next_free_vgpr 256")
    E("  .amdhsa_next_free_sgpr 102")
    E("  .amdhsa_accum_offset 256")
    E("  .amdhsa_group_segment_fixed_size 0")
    E("  .amdhsa_kernarg_size 64")
    E("  .amdhsa_user_sgpr_count 2")
    E("  .amdhsa_user_sgpr_kernarg_segment_ptr 1")
    E("  .amdhsa_system_sgpr_workgroup_id_x 1")
    E(".end_amdhsa_kernel")

gen()
path = sys.argv[1] if len(sys.argv) > 1 else f"cdna_kernels/{NAME}.s"
open(path, "w").write("\n".join(out) + "\n")
print("wrote", path, len(out), "lines")
```

```python
import sys, os
DIAG = os.environ.get("DIAG", "0") == "1"
WGN = int(os.environ.get("WGN", "3"))
GSZ = [5, 4, 4, 4]
SLEEP = int(os.environ.get("SLEEP", "1"))
XP = os.environ.get("XP", "")

NAME = "standalone__paged_block_table_kv_pagedattention__sampling"

SLOT = 17408
WAVE_RING = 2 * SLOT
K_OFF = 1024
V_OFF = 9216
TAB_BASE = 4 * WAVE_RING
SYNC_BASE = TAB_BASE + 16384
LDS_BYTES = SYNC_BASE + 64
FLAG_BASE = 0x10000000
RECSZ = 2304

out = []
def E(s=""):
    out.append(s)
def I(s):
    if "nords" in XP and (s.startswith("ds_read_b128 v[%d" % 0) or s.startswith("ds_read_b64_tr") or (s.startswith("ds_read_b128") and "offset" in s and INCOMP[0])):
        return
    if "nomfma" in XP and s.startswith("v_mfma"):
        return
    if "nostore" in XP and s.startswith("buffer_store_dwordx4") and "sc1" in s:
        return
    if "plainst" in XP and s.startswith("buffer_store_dwordx4") and "sc1" in s:
        s = s.replace(" sc1", "")
    if "ntst" in XP and s.startswith("buffer_store_dwordx4") and "sc1" in s:
        s = s.replace(" sc1", " sc1 nt")
    if "noatom" in XP and s.startswith("buffer_atomic"):
        return
    out.append("    " + s)
INCOMP = [False]

sVlo, sVhi, sHQ, sValid, sRole, sSo, sSum, sSeen, sNeed, sWave = 3, 4, 5, 6, 7, 8, 9, 10, 11, 12
sRecState, sRecBlock = 13, 14
sKA = 16
sK = 32
sV = 36
sQ = 40
sT = 44
sWS = 48
sO = 52
sD = 56
sB, sH, sW = 60, 61, 62
sL = 63
sWB = 64
sNW = 65
sI = 66
sCur, sNxt, sNew = 67, 68, 69
sPhys = 70
sT0, sT1, sT2, sT3 = 71, 72, 73, 74
sPend, sPendOff, sPendVal = 75, 76, 77
sScale = 78
sHC = 79
sCAPB = 80
sEXB, sEXN = 81, 82
sX0, sXE = 83, 84
sCnt = 85
sQoff = 86
sScr = 87
sNeedM = 88
sM2 = 90
sExp = 92
sRec = 93
sK0 = 94
sLen = 95
sJ = 96
sSpin = 97
sCSC = 98

vLane = 1
vT0, vT1, vT2, vT3, vT4, vT5, vT6, vT7 = 2, 3, 4, 5, 6, 7, 8, 9
vPhys, vInfo = 10, 11
vCAP, vCAPI = 12, 13
vEX, vEXI = 14, 15
vKoff = 16
vVoff = 24
vRT = 16
vQoff = 32
vQaddr = 33
vKaddr = 34
vVaddr = 38
vTok = 46
vM, vLs = 50, 51
vS = 52
vP = 56
vX = 58
vA0, vA1 = 62, 63
vQ = 64
vK = 96
vV = 128
vAcc = 160
vNeg = 224
vCE = 225
vNB = 226
vSync = 227
vR = 228
vRO, vRS = 232, 233
vFlagOff = 234
vF = 236

def stamp(k):
    if not DIAG:
        return
    I("s_memrealtime s[100:101]")
    I("s_waitcnt lgkmcnt(0)")
    I(f"v_mov_b32 v{248+k}, s100")

def stamp_store():
    if not DIAG:
        return
    I(f"s_lshl_b32 s{sT0}, s2, 3")
    I(f"s_add_u32 s{sT0}, s{sT0}, s{sWave}")
    I(f"s_lshl_b32 s{sT0}, s{sT0}, 5")
    I(f"s_add_u32 s{sT0}, s{sT0}, 0x20000000")
    I(f"v_mov_b32 v{vT1}, 0")
    I("s_mov_b64 exec, 1")
    I(f"buffer_store_dwordx4 v[248:251], v{vT1}, s[{sWS}:{sWS+3}], s{sT0} offen")
    I(f"buffer_store_dwordx4 v[252:255], v{vT1}, s[{sWS}:{sWS+3}], s{sT0} offen offset:16")

def srd(s, lo, hi, nrec):
    I(f"s_mov_b32 s{s}, s{lo}")
    I(f"s_and_b32 s{s+1}, s{hi}, 0xffff")
    I(f"s_mov_b32 s{s+2}, {nrec}")
    I(f"s_mov_b32 s{s+3}, 0x00020000")

def scan32(v):
    for sh in (1, 2, 4, 8):
        I("s_nop 1")
        I(f"v_add_u32_dpp v{v}, v{v}, v{v} row_shr:{sh} row_mask:0xf bank_mask:0xf bound_ctrl:0")
    I("s_nop 1")
    I(f"v_add_u32_dpp v{v}, v{v}, v{v} row_bcast:15 row_mask:0xa bank_mask:0xf")

def xlane(op, v, ta, tb):
    I(f"v_mov_b32 v{ta}, v{v}")
    I(f"v_mov_b32 v{tb}, v{v}")
    I("s_nop 1")
    I(f"v_permlane32_swap_b32 v{ta}, v{tb}")
    I("s_nop 1")
    I(f"{op} v{v}, v{ta}, v{tb}")
    I(f"v_mov_b32 v{ta}, v{v}")
    I("s_nop 0")
    I(f"v_mov_b32 v{tb}, v{v}")
    I("s_nop 1")
    I(f"v_permlane16_swap_b32 v{ta}, v{tb}")
    I("s_nop 1")
    I(f"{op} v{v}, v{ta}, v{tb}")

lab = [0]
def wait_ge(off):
    lab[0] += 1
    n = lab[0]
    I(f"s_cmp_ge_i32 s{sSeen}, s{sNeed}")
    I(f"s_cbranch_scc1 L_wok{n}")
    E(f"L_wp{n}:")
    I(f"ds_read_b32 v{vT0}, v{vSync} offset:{off}")
    I("s_waitcnt lgkmcnt(0)")
    I(f"v_readfirstlane_b32 s{sSeen}, v{vT0}")
    I("s_nop 1")
    I(f"s_cmp_ge_i32 s{sSeen}, s{sNeed}")
    I(f"s_cbranch_scc1 L_wok{n}")
    I(f"s_sleep {SLEEP}")
    I(f"s_branch L_wp{n}")
    E(f"L_wok{n}:")

def signal(off, sval):
    I(f"v_mov_b32 v{vT1}, s{sval}")
    I("s_mov_b64 exec, 1")
    I(f"ds_write_b32 v{vSync}, v{vT1} offset:{off}")
    I("s_mov_b64 exec, -1")

def issue_group(g, first=False):
    if g == 0:
        I(f"v_readlane_b32 s{sNew}, v{vInfo}, s{sI}")
        I(f"v_readlane_b32 s{sPhys}, v{vPhys}, s{sI}")
        I(f"s_sub_u32 s{sSo}, s{sSum}, s{sSo}")
        I(f"s_lshl_b32 s{sNeed}, s{sI}, 1")
        I(f"s_sub_i32 s{sNeed}, s{sNeed}, 3")
        I(f"s_add_u32 s{sI}, s{sI}, 1")
        I(f"s_lshl_b32 s{sVlo}, s{sPhys}, 16")
        I(f"s_lshr_b32 s{sVhi}, s{sPhys}, 16")
        I(f"s_add_u32 s{sK}, s{sKA+2}, s{sVlo}")
        I(f"s_addc_u32 s{sK+1}, s{sKA+3}, s{sVhi}")
        I(f"s_bfe_u32 s{sT2}, s{sNew}, 0x50008")
        I(f"s_lshl_b32 s{sK+2}, s{sT2}, 12")
        I(f"s_and_b32 s{sT3}, s{sNew}, 31")
        I(f"s_lshl_b32 s{sT3}, s{sT3}, 13")
        I(f"s_add_u32 s{sQoff}, s{sT3}, s{sHQ}")
        if not first:
            wait_ge(4)
        I(f"s_mov_b32 m0, s{sSo}")
        I("s_nop 0")
        I(f"buffer_load_dwordx4 v{vQoff}, s[{sQ}:{sQ+3}], s{sQoff} offen lds")
        I(f"s_add_u32 m0, s{sSo}, {K_OFF}")
        I("s_nop 0")
        for n in range(4):
            I(f"buffer_load_dwordx4 v{vKoff+n}, s[{sK}:{sK+3}], 0 offen offset:{n*1024} nt lds")
    elif g == 1:
        I(f"s_add_u32 m0, s{sSo}, {K_OFF + 4096}")
        I("s_nop 0")
        for n in range(4, 8):
            I(f"buffer_load_dwordx4 v{vKoff+n}, s[{sK}:{sK+3}], 0 offen offset:{(n&3)*1024} nt lds")
    elif g == 2:
        I(f"s_add_u32 s{sNeed}, s{sNeed}, 1")
        if not first:
            wait_ge(4)
        I(f"s_add_u32 m0, s{sSo}, {V_OFF}")
        I(f"s_add_u32 s{sV}, s{sKA+4}, s{sVlo}")
        I(f"s_addc_u32 s{sV+1}, s{sKA+5}, s{sVhi}")
        I(f"s_mov_b32 s{sV+2}, s{sK+2}")
        for n in range(4):
            I(f"buffer_load_dwordx4 v{vVoff+n}, s[{sV}:{sV+3}], 0 offen offset:{n*1024} nt lds")
    else:
        I(f"s_add_u32 m0, s{sSo}, {V_OFF + 4096}")
        I("s_nop 0")
        for n in range(4, 8):
            I(f"buffer_load_dwordx4 v{vVoff+n}, s[{sV}:{sV+3}], 0 offen offset:{(n&3)*1024} nt lds")

def loader():
    E("L_loader:")
    I(f"ds_read_b32 v{vPhys}, v{vT5}")
    I(f"s_mov_b32 s{sI}, 0")
    I(f"s_mov_b32 s{sCnt}, 0")
    I(f"s_lshl_b32 s{sNW}, s{sNW}, 1")
    I(f"s_lshl_b32 s{sHQ}, s{sH}, 10")
    I(f"s_lshl_b32 s{sSum}, s{sWB}, 1")
    I(f"s_add_u32 s{sSum}, s{sSum}, {SLOT}")
    I(f"s_add_u32 s{sSo}, s{sWB}, {SLOT}")
    I(f"s_mov_b32 s{sSeen}, 0")
    I("s_waitcnt lgkmcnt(0)")
    for g in range(WGN):
        issue_group(g % 4, first=True)
    stamp(4)
    I("s_barrier")
    I(f"s_cmp_eq_u32 s{sNW}, 0")
    I("s_cbranch_scc1 L_ld_done")
    E("L_ld_loop:")
    for g in range(4):
        allowed = sum(GSZ[(g + k) % 4] for k in range(1, WGN))
        I(f"s_waitcnt vmcnt({allowed})")
        if g in (1, 3):
            I(f"s_add_u32 s{sCnt}, s{sCnt}, 1")
            signal(0, sCnt)
        issue_group((g + WGN) % 4)
    I(f"s_cmp_lt_u32 s{sCnt}, s{sNW}")
    I("s_cbranch_scc1 L_ld_loop")
    E("L_ld_done:")
    stamp(5)
    stamp_store()
    I("s_endpgm")

def fire_flag():
    lab[0] += 1
    n = lab[0]
    I(f"v_mov_b32 v{vT0}, {SYNC_BASE + 8}")
    I(f"v_mov_b32 v{vT1}, 1")
    I(f"s_mov_b64 exec, 1")
    I(f"ds_add_rtn_u32 v{vT2}, v{vT0}, v{vT1}")
    I(f"s_min_u32 s{sT1}, s{sHC}, 4")
    I(f"v_mov_b32 v{vT0}, 0")
    I("s_waitcnt lgkmcnt(0)")
    I(f"v_readfirstlane_b32 s{sT0}, v{vT2}")
    I("s_nop 1")
    I(f"s_add_u32 s{sT0}, s{sT0}, 1")
    I(f"s_cmp_lg_u32 s{sT0}, s{sT1}")
    I(f"s_cbranch_scc1 L_ff{n}")
    I(f"s_mov_b32 s{sSpin}, 0")
    E(f"L_fn{n}:")
    I(f"buffer_load_dwordx2 v[{vT2}:{vT3}], v{vT0}, s[{sD}:{sD+3}], 0 offen sc1")
    I(f"s_lshl_b32 s{sT1}, s2, 7")
    I(f"s_add_u32 s{sT1}, s{sT1}, {FLAG_BASE}")
    I("s_waitcnt vmcnt(0)")
    I(f"v_readfirstlane_b32 s{sT0}, v{vT2}")
    I("s_nop 1")
    I(f"s_cmp_lg_u32 s{sT0}, 0")
    I(f"s_cbranch_scc1 L_fs{n}")
    I("s_sleep 8")
    I(f"s_add_u32 s{sSpin}, s{sSpin}, 1")
    I(f"s_cmp_lt_u32 s{sSpin}, 0x200000")
    I(f"s_cbranch_scc1 L_fn{n}")
    E(f"L_fs{n}:")
    I(f"buffer_store_dwordx2 v[{vT2}:{vT3}], v{vT0}, s[{sWS}:{sWS+3}], s{sT1} offen sc1")
    E(f"L_ff{n}:")
    I(f"s_mov_b64 exec, -1")
    I(f"s_mov_b32 s{sPend}, 0")

def dump_partial():
    xlane("v_add_f32", vLs, vT0, vT1)
    I(f"v_lshlrev_b32 v{vT2}, 2, v{vLane}")
    I(f"v_add_u32 v{vT2}, s{sScr}, v{vT2}")
    I(f"v_add_u32 v{vT3}, 0x400, v{vT2}")
    I(f"v_lshlrev_b32 v{vT4}, 3, v{vLane}")
    I(f"v_add_u32 v{vT4}, s{sScr}, v{vT4}")
    I(f"s_mov_b64 exec, 0xffff")
    for n in range(16):
        a = vT2 if n < 8 else vT3
        o = (n & 7) * 32
        I(f"ds_write2_b32 v{a}, v{vAcc+4*n}, v{vAcc+4*n+1} offset0:{o} offset1:{o+16}")
    I(f"s_mov_b64 exec, 3")
    I(f"ds_write_b64 v{vT4}, v[{vM}:{vM+1}] offset:2048")
    I(f"s_mov_b64 exec, -1")

def compute(slot, tag):
    INCOMP[0] = True
    compute_(slot, tag)
    INCOMP[0] = False

def compute_(slot, tag):
    so = slot * SLOT
    I(f"s_add_u32 s{sT0}, s{sCnt}, 1")
    I(f"v_readlane_b32 s{sCur}, v{vInfo}, s{sCnt}")
    I(f"v_readlane_b32 s{sNxt}, v{vInfo}, s{sT0}")
    I(f"s_lshl_b32 s{sNeed}, s{sCnt}, 1")
    I(f"s_add_u32 s{sNeed}, s{sNeed}, 1")
    wait_ge(0)
    for n in range(8):
        I(f"ds_read_b128 v[{vQ+4*n}:{vQ+4*n+3}], v{vQaddr} offset:{so + n*64}")
        I(f"ds_read_b128 v[{vK+4*n}:{vK+4*n+3}], v{vKaddr+(n&3)} offset:{so + (n>>2)*256}")
    I(f"s_bitcmp1_b32 s{sCur}, 16")
    I(f"s_cselect_b32 s{sScale}, 0, s{sCSC}")
    I(f"s_bfe_u32 s{sValid}, s{sCur}, 0x50008")
    for n in range(8):
        I(f"s_waitcnt lgkmcnt({14-2*n})")
        c = "0" if n == 0 else f"v[{vS}:{vS+3}]"
        I(f"v_mfma_f32_16x16x32_bf16 v[{vS}:{vS+3}], v[{vK+4*n}:{vK+4*n+3}], v[{vQ+4*n}:{vQ+4*n+3}], {c}")
    signal(4, sNeed)
    I(f"s_add_u32 s{sNeed}, s{sNeed}, 1")
    I(f"s_cmp_eq_u32 s{sPend}, 0")
    I(f"s_cbranch_scc1 L_nopend_{tag}")
    I("s_waitcnt vmcnt(0)")
    fire_flag()
    E(f"L_nopend_{tag}:")
    I(f"s_cmp_eq_u32 s{sValid}, 16")
    I("s_nop 1")
    I(f"s_cbranch_scc1 L_full_{tag}")
    for r in range(4):
        I(f"v_cmp_gt_u32 vcc, s{sValid}, v{vTok+r}")
        I("s_nop 1")
        I(f"v_cndmask_b32 v{vS+r}, v{vNeg}, v{vS+r}, vcc")
    E(f"L_full_{tag}:")
    I(f"v_max3_f32 v{vX}, v{vS}, v{vS+1}, v{vS+2}")
    I(f"v_max_f32 v{vX}, v{vX}, v{vS+3}")
    I(f"v_mul_f32 v{vX}, s{sScale}, v{vX}")
    I(f"v_cmp_gt_f32 vcc, v{vX}, v{vM}")
    I("s_nop 1")
    I(f"s_cbranch_vccnz L_rare_{tag}")
    E(f"L_back_{tag}:")
    for r in range(4):
        I(f"v_fma_f32 v{vX+r}, v{vS+r}, s{sScale}, -v{vM}")
    for r in range(4):
        I(f"v_exp_f32 v{vX+r}, v{vX+r}")
    I("s_nop 0")
    I(f"v_cvt_pk_bf16_f32 v{vP}, v{vX}, v{vX+1}")
    I(f"v_cvt_pk_bf16_f32 v{vP+1}, v{vX+2}, v{vX+3}")
    I(f"v_add_f32 v{vX}, v{vX}, v{vX+1}")
    I(f"v_add_f32 v{vX+2}, v{vX+2}, v{vX+3}")
    I(f"v_add_f32 v{vLs}, v{vLs}, v{vX}")
    I(f"v_add_f32 v{vLs}, v{vLs}, v{vX+2}")
    wait_ge(0)
    for n in range(16):
        I(f"ds_read_b64_tr_b16 v[{vV+2*n}:{vV+2*n+1}], v{vVaddr+(n&7)} offset:{so + (n>>3)*256}")
    for n in range(16):
        I(f"s_waitcnt lgkmcnt({15-n})")
        I(f"v_mfma_f32_16x16x16_bf16 v[{vAcc+4*n}:{vAcc+4*n+3}], v[{vP}:{vP+1}], v[{vV+2*n}:{vV+2*n+1}], v[{vAcc+4*n}:{vAcc+4*n+3}]")
    signal(4, sNeed)
    I(f"s_xor_b32 s{sT0}, s{sCur}, s{sNxt}")
    I(f"s_and_b32 s{sT0}, s{sT0}, 31")
    if "norec" not in XP:
        I(f"s_cbranch_scc1 L_flush_{tag}")
    E(f"L_noflush_{tag}:")
    I(f"s_add_u32 s{sCnt}, s{sCnt}, 1")
    I(f"s_cmp_ge_u32 s{sCnt}, s{sNW}")

def rare_path(tag):
    E(f"L_rare_{tag}:")
    I(f"v_max_f32 v{vX}, v{vX}, v{vM}")
    xlane("v_max_f32", vX, vX+1, vX+2)
    I(f"v_sub_f32 v{vX+1}, v{vM}, v{vX}")
    I(f"v_exp_f32 v{vX+1}, v{vX+1}")
    I(f"v_mov_b32 v{vM}, v{vX}")
    I("s_nop 0")
    I(f"v_mul_f32 v{vLs}, v{vLs}, v{vX+1}")
    I(f"v_mov_b32_dpp v{vA0}, v{vX+1} quad_perm:[0,0,0,0] row_mask:0xf bank_mask:0xf")
    I(f"v_mov_b32_dpp v{vA1}, v{vX+1} quad_perm:[1,1,1,1] row_mask:0xf bank_mask:0xf")
    for n in range(16):
        I(f"v_mul_f32 v{vAcc+4*n}, v{vA0}, v{vAcc+4*n}")
        I(f"v_mul_f32 v{vAcc+4*n+1}, v{vA1}, v{vAcc+4*n+1}")
    I(f"s_branch L_back_{tag}")

def flush_path(tag):
    E(f"L_flush_{tag}:")
    I("s_nop 7")
    I("s_nop 7")
    dump_partial()
    I(f"s_and_b32 s{sT0}, s{sCur}, 31")
    I(f"s_lshl_b32 s{sT1}, s{sT0}, 5")
    I(f"s_add_u32 s{sT1}, s{sT1}, s{sB}")
    I(f"s_lshl_b32 s{sT1}, s{sT1}, 3")
    I(f"s_add_u32 s{sT1}, s{sT1}, s{sH}")
    I(f"s_lshl_b32 s{sT1}, s{sT1}, 2")
    I(f"s_add_u32 s{sT1}, s{sT1}, s{sW}")
    I(f"s_mul_i32 s{sRec}, s{sT1}, {RECSZ}")
    I(f"v_add_u32 v{vT2}, s{sScr}, v{vQoff}")
    I("s_waitcnt lgkmcnt(0)")
    I(f"ds_read_b128 v[{vF}:{vF+3}], v{vT2}")
    I(f"ds_read_b128 v[{vF+4}:{vF+7}], v{vT2} offset:1024")
    I(f"ds_read_b128 v[{vF+8}:{vF+11}], v{vT2} offset:2048")
    I("s_waitcnt lgkmcnt(0)")
    I(f"buffer_store_dwordx4 v[{vF}:{vF+3}], v{vQoff}, s[{sWS}:{sWS+3}], s{sRec} offen sc1")
    I(f"buffer_store_dwordx4 v[{vF+4}:{vF+7}], v{vQoff}, s[{sWS}:{sWS+3}], s{sRec} offen offset:1024 sc1")
    I(f"s_mov_b64 exec, 1")
    I(f"buffer_store_dwordx4 v[{vF+8}:{vF+11}], v{vQoff}, s[{sWS}:{sWS+3}], s{sRec} offen offset:2048 sc1")
    I(f"s_mov_b64 exec, -1")
    I(f"s_and_b32 s{sT0}, s{sNxt}, 31")
    I(f"s_cmp_eq_u32 s{sT0}, s{sB}")
    I(f"s_cselect_b32 s{sPend}, 1, 0")
    I(f"v_mov_b32 v{vM}, 0xff800000")
    I(f"s_branch L_noflush_{tag}")

def merge_one(m, l, o0, o1):
    M, Ls, A0, A1 = vR, vR+1, vR+2, vR+3
    I(f"v_max_f32 v{vT0}, v{M}, v{m}")
    I(f"v_sub_f32 v{vT1}, v{M}, v{vT0}")
    I(f"v_sub_f32 v{vT2}, v{m}, v{vT0}")
    I(f"v_exp_f32 v{vT1}, v{vT1}")
    I(f"v_exp_f32 v{vT2}, v{vT2}")
    I(f"v_mov_b32 v{M}, v{vT0}")
    I(f"v_mul_f32 v{Ls}, v{Ls}, v{vT1}")
    I(f"v_mul_f32 v{A0}, v{A0}, v{vT1}")
    I(f"v_mul_f32 v{A1}, v{A1}, v{vT1}")
    I(f"v_fmac_f32 v{Ls}, v{l}, v{vT2}")
    I(f"v_fmac_f32 v{A0}, v{o0}, v{vT2}")
    I(f"v_fmac_f32 v{A1}, v{o1}, v{vT2}")

def record_block():
    E("L_rectry:")
    I(f"s_mov_b32 s{sSpin}, 0")
    E("L_poll:")
    I(f"v_mov_b32 v{vT0}, 0")
    I(f"s_mov_b32 s{sT0}, {FLAG_BASE}")
    I(f"buffer_load_dwordx2 v[{vT2}:{vT3}], v{vT0}, s[{sD}:{sD+3}], 0 offen sc1")
    I(f"s_mov_b64 exec, s[{sNeedM}:{sNeedM+1}]")
    I(f"buffer_load_dwordx2 v[{vT4}:{vT5}], v{vFlagOff}, s[{sWS}:{sWS+3}], s{sT0} offen sc1")
    I("s_waitcnt vmcnt(0)")
    I(f"v_cmp_ne_u64 vcc, v[{vT2}:{vT3}], v[{vT4}:{vT5}]")
    I(f"v_cmp_eq_u32 s[{sM2}:{sM2+1}], 0, v{vT2}")
    I("s_mov_b64 exec, -1")
    I("s_nop 2")
    I(f"s_or_b64 vcc, vcc, s[{sM2}:{sM2+1}]")
    I(f"s_cmp_eq_u64 vcc, 0")
    I("s_cbranch_scc1 L_ready")
    I(f"s_cmp_eq_u32 s{sRecBlock}, 0")
    I("s_cbranch_scc1 L_loop_go")
    I("s_sleep 8")
    I(f"s_add_u32 s{sSpin}, s{sSpin}, 1")
    I(f"s_cmp_lt_u32 s{sSpin}, 0x200000")
    I("s_cbranch_scc1 L_poll")
    E("L_ready:")
    I(f"s_mov_b32 s{sX0}, s{sEXB}")
    I(f"s_add_u32 s{sXE}, s{sEXB}, s{sEXN}")
    E("L_rec:")
    I(f"v_cmp_ge_u32 vcc, s{sX0}, v{vCAPI}")
    I("s_nop 3")
    I(f"s_bcnt1_i32_b64 s{sJ}, vcc")
    I("s_nop 0")
    I(f"v_readlane_b32 s{sT0}, v{vCAP}, s{sJ}")
    I(f"v_readlane_b32 s{sT1}, v{vCAPI}, s{sJ}")
    I("s_nop 3")
    I(f"s_sub_u32 s{sK0}, s{sX0}, s{sT0}")
    I(f"s_min_u32 s{sT1}, s{sT1}, s{sXE}")
    I(f"s_sub_u32 s{sLen}, s{sT1}, s{sX0}")
    I(f"s_mov_b32 s{sX0}, s{sT1}")
    I(f"s_lshl_b32 s{sT0}, s{sB}, 5")
    I(f"s_add_u32 s{sT0}, s{sT0}, s{sJ}")
    I(f"s_lshl_b32 s{sT0}, s{sT0}, 3")
    I(f"s_add_u32 s{sT0}, s{sT0}, s{sH}")
    I(f"s_mul_i32 s{sRec}, s{sT0}, {4*RECSZ}")
    for w in range(4):
        I(f"s_add_u32 s{sT0}, s{sRec}, {w*RECSZ}")
        I(f"buffer_load_dwordx2 v[{vRT+4*w}:{vRT+1+4*w}], v{vRS}, s[{sWS}:{sWS+3}], s{sT0} offen sc1")
        I(f"buffer_load_dwordx2 v[{vRT+2+4*w}:{vRT+3+4*w}], v{vRO}, s[{sWS}:{sWS+3}], s{sT0} offen sc1")
    for w in range(4):
        I(f"s_sub_u32 s{sT0}, {w}, s{sK0}")
        I(f"s_and_b32 s{sT0}, s{sT0}, 3")
        I(f"s_cmp_ge_u32 s{sT0}, s{sLen}")
        I(f"s_cbranch_scc1 L_skip{w}")
        I(f"s_waitcnt vmcnt({6-2*w})")
        merge_one(vRT+4*w, vRT+1+4*w, vRT+2+4*w, vRT+3+4*w)
        E(f"L_skip{w}:")
    I("s_waitcnt vmcnt(0)")
    I(f"s_cmp_lt_u32 s{sX0}, s{sXE}")
    I("s_cbranch_scc1 L_rec")
    I(f"s_mov_b32 s{sRecState}, 1")
    I(f"s_cmp_eq_u32 s{sRecBlock}, 0")
    I("s_cbranch_scc1 L_loop_go")
    I("s_branch L_store")

def gen():
    E("; paged attention decode: B=32 Hq=16 Hkv=8 D=256 block=16 tokens, 128 blocks/seq")
    E(f"; @launch grid=(256,1,1) block=(512,1,1) lds={LDS_BYTES}")
    E('.amdgcn_target "amdgcn-amd-amdhsa--gfx950"')
    E(".text")
    E(f".globl {NAME}_kernel")
    E(".p2align 8")
    E(f".type {NAME}_kernel,@function")
    E(f"{NAME}_kernel:")
    I("s_cmp_ge_u32 s2, 256")
    I("s_cbranch_scc1 L_end")
    stamp(0)
    I(f"s_load_dwordx16 s[{sKA}:{sKA+15}], s[0:1], 0")
    I(f"v_and_b32 v{vLane}, 63, v0")
    I(f"v_lshrrev_b32 v{vT0}, 6, v0")
    I(f"s_lshr_b32 s{sB}, s2, 3")
    I(f"s_and_b32 s{sH}, s2, 7")
    I(f"v_readfirstlane_b32 s{sWave}, v{vT0}")
    I(f"v_lshlrev_b32 v{vQoff}, 4, v{vLane}")
    I(f"v_lshlrev_b32 v{vT7}, 2, v{vLane}")
    I(f"s_and_b32 s{sW}, s{sWave}, 3")
    I(f"s_lshr_b32 s{sRole}, s{sWave}, 2")
    I(f"s_mul_i32 s{sWB}, s{sW}, {WAVE_RING}")
    I(f"s_lshl_b32 s{sT0}, s{sW}, 12")
    I(f"s_add_u32 s{sScr}, s{sT0}, {TAB_BASE}")
    I(f"s_lshl_b32 s{sT0}, s{sWave}, 11")
    I(f"v_add_u32 v{vT6}, s{sT0}, v{vQoff}")
    I(f"s_add_u32 m0, s{sT0}, {TAB_BASE}")
    I(f"s_lshl_b32 s{sT1}, s{sW}, 4")
    I(f"s_add_u32 s{sT1}, s{sT1}, {SYNC_BASE}")
    I(f"v_mov_b32 v{vSync}, s{sT1}")
    I("s_waitcnt lgkmcnt(0)")
    stamp(1)
    srd(sT, sKA+8, sKA+9, 128)
    I(f"buffer_load_dword v{vCE}, v{vT7}, s[{sT}:{sT+3}], 0 offen")
    srd(sQ, sKA+6, sKA+7, 16384)
    for n in range(2):
        I(f"buffer_load_dwordx4 v{vT6}, s[{sQ}:{sQ+3}], 0 offen offset:{n*1024} lds")
    srd(sWS, sKA+14, sKA+15, 1074790400)
    I(f"s_cmp_lg_u32 s{sRole}, 0")
    I("s_cbranch_scc1 L_pre_cons")
    I(f"v_lshrrev_b32 v{vT0}, 5, v{vLane}")
    I(f"v_and_b32 v{vT1}, 31, v{vLane}")
    I(f"s_lshl_b32 s{sT0}, s{sH}, 9")
    I(f"v_lshlrev_b32 v{vT2}, 12, v{vT0}")
    I(f"v_add_u32 v{vT2}, s{sT0}, v{vT2}")
    I(f"v_xor_b32 v{vT3}, v{vT1}, v{vT0}")
    I(f"v_lshlrev_b32 v{vT4}, 1, v{vT0}")
    I(f"v_xor_b32 v{vT4}, v{vT1}, v{vT4}")
    for n in range(8):
        I(f"v_xor_b32 v{vT5}, {2*n}, v{vT3}")
        I(f"v_lshl_add_u32 v{vT5}, v{vT5}, 4, v{vT2}")
        I(f"v_add_u32 v{vKoff+n}, {n*8192-(n&3)*1024}, v{vT5}")
        I(f"v_xor_b32 v{vT5}, {((2*n)&7)<<1}, v{vT4}")
        I(f"v_lshl_add_u32 v{vT5}, v{vT5}, 4, v{vT2}")
        I(f"v_add_u32 v{vVoff+n}, {n*8192-(n&3)*1024}, v{vT5}")
    I(f"s_mov_b32 s{sK+3}, 0x00020000")
    I(f"s_mov_b32 s{sV+3}, 0x00020000")
    I("s_branch L_sched")
    E("L_pre_cons:")
    I(f"v_mov_b32 v{vT0}, 0")
    I(f"v_mov_b32 v{vT1}, 0")
    I(f"ds_write_b64 v{vSync}, v[{vT0}:{vT1}]")
    I(f"ds_write_b64 v{vSync}, v[{vT0}:{vT1}] offset:8")
    I(f"v_and_b32 v{vT0}, 15, v{vLane}")
    I(f"v_lshrrev_b32 v{vT1}, 4, v{vLane}")
    I(f"v_and_b32 v{vT2}, 1, v{vLane}")
    I(f"v_lshlrev_b32 v{vT2}, 9, v{vT2}")
    I(f"v_lshl_add_u32 v{vT2}, v{vT1}, 4, v{vT2}")
    I(f"v_add_u32 v{vQaddr}, s{sWB}, v{vT2}")
    I(f"v_xor_b32 v{vT2}, v{vT1}, v{vT0}")
    I(f"v_lshlrev_b32 v{vT3}, 9, v{vT0}")
    I(f"v_add_u32 v{vT3}, s{sWB}, v{vT3}")
    I(f"v_add_u32 v{vT3}, {K_OFF}, v{vT3}")
    for q in range(4):
        I(f"v_xor_b32 v{vT4}, {4*q}, v{vT2}")
        I(f"v_lshl_add_u32 v{vKaddr+q}, v{vT4}, 4, v{vT3}")
    I(f"v_lshrrev_b32 v{vT0}, 2, v{vLane}")
    I(f"v_and_b32 v{vT2}, 3, v{vLane}")
    I(f"v_and_b32 v{vT3}, 7, v{vT0}")
    I(f"v_lshlrev_b32 v{vT3}, 1, v{vT3}")
    I(f"v_lshrrev_b32 v{vT4}, 1, v{vT2}")
    I(f"v_xor_b32 v{vT3}, v{vT3}, v{vT4}")
    I(f"v_and_b32 v{vT4}, 1, v{vT2}")
    I(f"v_lshlrev_b32 v{vT4}, 3, v{vT4}")
    I(f"v_lshl_add_u32 v{vT4}, v{vT0}, 9, v{vT4}")
    I(f"v_add_u32 v{vT4}, s{sWB}, v{vT4}")
    I(f"v_add_u32 v{vT4}, {V_OFF}, v{vT4}")
    for q in range(8):
        I(f"v_xor_b32 v{vT5}, {2*q}, v{vT3}")
        I(f"v_lshl_add_u32 v{vVaddr+q}, v{vT5}, 4, v{vT4}")
    I(f"v_lshlrev_b32 v{vTok}, 2, v{vT1}")
    for r in range(1, 4):
        I(f"v_add_u32 v{vTok+r}, {r}, v{vTok}")
    E("L_sched:")
    I(f"v_cmp_gt_u32 vcc, 32, v{vLane}")
    I("s_waitcnt vmcnt(2)")
    stamp(2)
    I(f"v_cmp_gt_i32 s[{sM2}:{sM2+1}], 1, v{vCE}")
    I(f"v_min_i32 v{vT0}, 0x800, v{vCE}")
    I(f"v_mov_b32 v{vT1}, 0x800")
    I(f"v_cndmask_b32 v{vCE}, v{vT0}, v{vT1}, s[{sM2}:{sM2+1}]")
    I(f"v_cndmask_b32 v{vT7}, 0, 1, s[{sM2}:{sM2+1}]")
    I(f"v_add_u32 v{vNB}, 15, v{vCE}")
    I(f"v_lshrrev_b32 v{vNB}, 4, v{vNB}")
    I(f"v_lshl_or_b32 v{vCE}, v{vT7}, 16, v{vCE}")
    I(f"v_cndmask_b32 v{vNB}, 0, v{vNB}, vcc")
    I(f"v_mov_b32 v{vT0}, v{vNB}")
    scan32(vT0)
    I("s_nop 0")
    I(f"v_readlane_b32 s{sT0}, v{vT0}, 31")
    I("s_nop 3")
    I(f"s_add_u32 s{sT0}, s{sT0}, 31")
    I(f"s_lshr_b32 s{sL}, s{sT0}, 5")
    I(f"v_subrev_u32 v{vT0}, s{sL}, v{vNB}")
    I(f"v_max_i32 v{vT1}, 0, v{vT0}")
    I(f"v_sub_u32 v{vT0}, 0, v{vT0}")
    I(f"v_max_i32 v{vT2}, 0, v{vT0}")
    I(f"v_cndmask_b32 v{vT2}, 0, v{vT2}, vcc")
    I(f"v_lshl_or_b32 v{vT3}, v{vT2}, 16, v{vT1}")
    scan32(vT3)
    I(f"v_and_b32 v{vEXI}, 0xffff, v{vT3}")
    I(f"v_lshrrev_b32 v{vCAPI}, 16, v{vT3}")
    I(f"v_sub_u32 v{vEX}, v{vEXI}, v{vT1}")
    I(f"v_sub_u32 v{vCAP}, v{vCAPI}, v{vT2}")
    I(f"v_readlane_b32 s{sT0}, v{vEXI}, 31")
    I(f"v_readlane_b32 s{sCAPB}, v{vCAP}, s{sB}")
    I(f"v_readlane_b32 s{sT1}, v{vT2}, s{sB}")
    I(f"v_readlane_b32 s{sT2}, v{vNB}, s{sB}")
    I(f"v_readlane_b32 s{sEXB}, v{vEX}, s{sB}")
    I(f"v_readlane_b32 s{sEXN}, v{vT1}, s{sB}")
    I(f"v_readlane_b32 s{sT3}, v{vCE}, s{sB}")
    I(f"v_mov_b32 v{vT0}, 0x7fffffff")
    I(f"v_cndmask_b32 v{vEXI}, v{vT0}, v{vEXI}, vcc")
    I(f"v_cndmask_b32 v{vCAPI}, v{vT0}, v{vCAPI}, vcc")
    I(f"s_sub_i32 s{sT0}, s{sT0}, s{sCAPB}")
    I(f"s_max_i32 s{sT0}, s{sT0}, 0")
    I(f"s_min_i32 s{sHC}, s{sT0}, s{sT1}")
    I(f"s_min_u32 s{sT2}, s{sT2}, s{sL}")
    I(f"s_add_u32 s{sT2}, s{sT2}, s{sHC}")
    I(f"s_sub_i32 s{sT0}, s{sT2}, s{sW}")
    I(f"s_add_i32 s{sT0}, s{sT0}, 3")
    I(f"s_ashr_i32 s{sNW}, s{sT0}, 2")
    I(f"v_lshlrev_b32 v{vT0}, 2, v{vLane}")
    I(f"v_add_u32 v{vT0}, s{sW}, v{vT0}")
    I(f"v_mov_b32 v{vT1}, s{sB}")
    I(f"v_subrev_u32 v{vT2}, s{sHC}, v{vT0}")
    I(f"v_mov_b32 v{vT3}, s{sT3}")
    I(f"v_add_u32 v{vT4}, s{sCAPB}, v{vT0}")
    I(f"v_cmp_gt_u32 s[{sM2}:{sM2+1}], s{sHC}, v{vT0}")
    I(f"s_mov_b32 s{sX0}, s{sCAPB}")
    I(f"s_add_u32 s{sXE}, s{sCAPB}, s{sHC}")
    E("L_piece:")
    I(f"s_cmp_ge_u32 s{sX0}, s{sXE}")
    I("s_cbranch_scc1 L_piece_done")
    I(f"v_cmp_ge_u32 vcc, s{sX0}, v{vEXI}")
    I("s_nop 3")
    I(f"s_bcnt1_i32_b64 s{sT0}, vcc")
    I(f"v_cmp_le_u32 vcc, s{sX0}, v{vT4}")
    I(f"v_readlane_b32 s{sT1}, v{vEX}, s{sT0}")
    I(f"v_readlane_b32 s{sX0}, v{vEXI}, s{sT0}")
    I(f"v_readlane_b32 s{sT3}, v{vCE}, s{sT0}")
    I("s_nop 3")
    I(f"s_and_b64 vcc, vcc, s[{sM2}:{sM2+1}]")
    I(f"s_sub_i32 s{sT1}, s{sL}, s{sT1}")
    I(f"v_mov_b32 v{vT5}, s{sT0}")
    I(f"v_add_u32 v{vT6}, s{sT1}, v{vT4}")
    I(f"v_mov_b32 v{vT7}, s{sT3}")
    I(f"v_cndmask_b32 v{vT1}, v{vT1}, v{vT5}, vcc")
    I(f"v_cndmask_b32 v{vT2}, v{vT2}, v{vT6}, vcc")
    I(f"v_cndmask_b32 v{vT3}, v{vT3}, v{vT7}, vcc")
    I("s_branch L_piece")
    E("L_piece_done:")
    I(f"v_cmp_gt_u32 vcc, s{sT2}, v{vT0}")
    I(f"v_and_b32 v{vT4}, 0xffff, v{vT3}")
    I(f"v_lshlrev_b32 v{vT5}, 4, v{vT2}")
    I(f"v_sub_u32 v{vT4}, v{vT4}, v{vT5}")
    I(f"v_min_i32 v{vT4}, 16, v{vT4}")
    I(f"v_cndmask_b32 v{vT4}, 0, v{vT4}, vcc")
    I(f"v_cndmask_b32 v{vT2}, 0, v{vT2}, vcc")
    I(f"v_and_b32 v{vT3}, 0x10000, v{vT3}")
    I(f"v_lshl_or_b32 v{vInfo}, v{vT4}, 8, v{vT1}")
    I(f"v_or_b32 v{vInfo}, v{vInfo}, v{vT3}")
    I(f"v_lshl_add_u32 v{vT5}, v{vT1}, 7, v{vT2}")
    I(f"v_lshlrev_b32 v{vT5}, 2, v{vT5}")
    I(f"v_add_u32 v{vT5}, {TAB_BASE}, v{vT5}")
    srd(sQ, sKA+0, sKA+1, 262144)
    stamp(3)
    I("s_waitcnt vmcnt(0) lgkmcnt(0)")
    I("s_barrier")
    I(f"s_cmp_eq_u32 s{sRole}, 0")
    I("s_cbranch_scc1 L_loader")
    I(f"v_mov_b32 v{vNeg}, 0xff7fffff")
    I(f"v_mov_b32 v{vM}, 0xff800000")
    I(f"v_mov_b32 v{vLs}, 0")
    for n in range(64):
        I(f"v_mov_b32 v{vAcc+n}, 0")
    I(f"s_mov_b32 s{sCSC}, 0x3db8aa3b")
    I(f"s_mov_b32 s{sPend}, 0")
    I(f"s_mov_b32 s{sPendOff}, 0")
    I(f"s_mov_b32 s{sPendVal}, 0")
    I(f"s_mov_b32 s{sCnt}, 0")
    I(f"s_mov_b32 s{sSeen}, 0")
    I(f"s_mov_b32 s{sRecBlock}, 0")
    srd(sO, sKA+10, sKA+11, 262144)
    srd(sD, sKA+12, sKA+13, 256)
    I(f"s_add_u32 s{sT0}, s2, s{sW}")
    I(f"s_cmp_lg_u32 s{sT0}, 0")
    I("s_cbranch_scc1 L_nononce")
    I(f"s_memrealtime s[{sM2}:{sM2+1}]")
    I(f"v_mov_b32 v{vT0}, 0")
    I("s_waitcnt lgkmcnt(0)")
    I(f"s_or_b32 s{sT0}, s{sM2}, 1")
    I(f"v_mov_b32 v{vT2}, s{sT0}")
    I(f"v_mov_b32 v{vT3}, s{sM2+1}")
    I("s_mov_b64 exec, 1")
    I(f"buffer_store_dwordx2 v[{vT2}:{vT3}], v{vT0}, s[{sD}:{sD+3}], 0 offen sc1")
    I("s_mov_b64 exec, -1")
    E("L_nononce:")
    I(f"v_and_b32 v0, 255, v0")
    I(f"v_lshrrev_b32 v{vT5}, 7, v0")
    I(f"v_and_b32 v{vT6}, 127, v0")
    I(f"v_lshrrev_b32 v{vT7}, 3, v{vT6}")
    I(f"v_and_b32 v{vT6}, 7, v{vT6}")
    I(f"v_lshlrev_b32 v{vT6}, 3, v{vT6}")
    I(f"v_lshl_add_u32 v{vT6}, v{vT7}, 7, v{vT6}")
    I(f"v_lshl_add_u32 v{vRO}, v{vT5}, 6, v{vT6}")
    I(f"v_lshlrev_b32 v{vT5}, 3, v{vT5}")
    I(f"v_add_u32 v{vRS}, 0x800, v{vT5}")
    I(f"v_mov_b32 v{vR}, 0xff800000")
    I(f"v_mov_b32 v{vR+1}, 0")
    I(f"v_mov_b32 v{vR+2}, 0")
    I(f"v_mov_b32 v{vR+3}, 0")
    I(f"s_add_u32 s{sXE}, s{sEXB}, s{sEXN}")
    I(f"v_min_u32 v{vT0}, s{sXE}, v{vCAPI}")
    I(f"v_max_u32 v{vT1}, s{sEXB}, v{vCAP}")
    I(f"v_sub_u32 v{vT0}, v{vT0}, v{vT1}")
    I(f"v_cmp_gt_u32 vcc, 32, v{vLane}")
    I(f"v_lshlrev_b32 v{vFlagOff}, 3, v{vLane}")
    I(f"v_add_u32 v{vFlagOff}, s{sH}, v{vFlagOff}")
    I(f"v_lshlrev_b32 v{vFlagOff}, 7, v{vFlagOff}")
    I(f"v_cndmask_b32 v{vT0}, 0, v{vT0}, vcc")
    I(f"v_cmp_lt_i32 s[{sNeedM}:{sNeedM+1}], 0, v{vT0}")
    I(f"s_cmp_eq_u32 s{sEXN}, 0")
    I(f"s_cselect_b32 s{sRecState}, 1, 0")
    if "norec" in XP or "noread" in XP:
        I(f"s_mov_b32 s{sRecState}, 1")
    stamp(4)
    I("s_barrier")
    I(f"s_cmp_eq_u32 s{sNW}, 0")
    I("s_cbranch_scc1 L_done")
    E("L_loop:")
    I(f"s_cmp_lg_u32 s{sRecState}, 0")
    I("s_cbranch_scc1 L_loop_go")
    I(f"s_add_u32 s{sT0}, s{sCnt}, 4")
    I(f"s_cmp_ge_u32 s{sT0}, s{sNW}")
    I("s_cbranch_scc1 L_rectry")
    E("L_loop_go:")
    compute(0, "a")
    I("s_cbranch_scc1 L_done")
    compute(1, "b")
    I("s_cbranch_scc0 L_loop")
    E("L_done:")
    stamp(5)
    I(f"s_cmp_eq_u32 s{sPend}, 0")
    I("s_cbranch_scc1 L_fin0")
    I("s_waitcnt vmcnt(0)")
    fire_flag()
    E("L_fin0:")
    I("s_nop 7")
    dump_partial()
    I(f"v_add_u32 v{vT3}, {TAB_BASE}, v{vRO}")
    I(f"v_add_u32 v{vT4}, {TAB_BASE}, v{vRS}")
    I("s_waitcnt lgkmcnt(0)")
    I("s_barrier")
    for w in range(4):
        I(f"ds_read_b64 v[{vRT+4*w}:{vRT+1+4*w}], v{vT4} offset:{w*4096}")
        I(f"ds_read_b64 v[{vRT+2+4*w}:{vRT+3+4*w}], v{vT3} offset:{w*4096}")
    I("s_waitcnt lgkmcnt(0)")
    I(f"v_max3_f32 v{vT0}, v{vRT}, v{vRT+4}, v{vRT+8}")
    I(f"v_max3_f32 v{vT0}, v{vT0}, v{vRT+12}, v{vR}")
    I(f"v_sub_f32 v{vT1}, v{vR}, v{vT0}")
    for w in range(4):
        I(f"v_sub_f32 v{vRT+4*w}, v{vRT+4*w}, v{vT0}")
    I(f"v_exp_f32 v{vT1}, v{vT1}")
    for w in range(4):
        I(f"v_exp_f32 v{vRT+4*w}, v{vRT+4*w}")
    I(f"v_mov_b32 v{vR}, v{vT0}")
    I(f"v_mul_f32 v{vR+1}, v{vR+1}, v{vT1}")
    I(f"v_mul_f32 v{vR+2}, v{vR+2}, v{vT1}")
    I(f"v_mul_f32 v{vR+3}, v{vR+3}, v{vT1}")
    for w in range(4):
        I(f"v_fmac_f32 v{vR+1}, v{vRT+1+4*w}, v{vRT+4*w}")
        I(f"v_fmac_f32 v{vR+2}, v{vRT+2+4*w}, v{vRT+4*w}")
        I(f"v_fmac_f32 v{vR+3}, v{vRT+3+4*w}, v{vRT+4*w}")
    stamp(6)
    I(f"s_mov_b32 s{sRecBlock}, 1")
    I(f"s_cmp_eq_u32 s{sRecState}, 0")
    I("s_cbranch_scc1 L_rectry")
    E("L_store:")
    I(f"v_rcp_f32 v{vT0}, v{vR+1}")
    I(f"s_lshl_b32 s{sT0}, s2, 10")
    I(f"v_lshlrev_b32 v{vT1}, 2, v0")
    I(f"v_mul_f32 v{vR+2}, v{vR+2}, v{vT0}")
    I(f"v_mul_f32 v{vR+3}, v{vR+3}, v{vT0}")
    I(f"v_cvt_pk_bf16_f32 v{vT2}, v{vR+2}, v{vR+3}")
    I(f"buffer_store_dword v{vT2}, v{vT1}, s[{sO}:{sO+3}], s{sT0} offen")
    stamp(7)
    stamp_store()
    E("L_end:")
    I("s_endpgm")
    for tag in ("a", "b"):
        rare_path(tag)
        flush_path(tag)
    record_block()
    loader()
    E('.section .rodata,"a"')
    E(".p2align 6")
    E(f".amdhsa_kernel {NAME}_kernel")
    E("  .amdhsa_next_free_vgpr 256")
    E("  .amdhsa_next_free_sgpr 102")
    E("  .amdhsa_accum_offset 256")
    E("  .amdhsa_group_segment_fixed_size 0")
    E("  .amdhsa_kernarg_size 64")
    E("  .amdhsa_user_sgpr_count 2")
    E("  .amdhsa_user_sgpr_kernarg_segment_ptr 1")
    E("  .amdhsa_system_sgpr_workgroup_id_x 1")
    E(".end_amdhsa_kernel")

gen()
path = sys.argv[1] if len(sys.argv) > 1 else f"cdna_kernels/{NAME}.s"
open(path, "w").write("\n".join(out) + "\n")
print("wrote", path, len(out), "lines")
```

```python
import sys, os
DIAG = os.environ.get("DIAG", "0") == "1"
WGN = int(os.environ.get("WGN", "2"))
GSZ = [5, 4, 4, 4]
TILEG = int(os.environ.get("TILEG", "0"))
WIN = int(os.environ.get("WIN", "0"))
SLEEP = int(os.environ.get("SLEEP", "1"))
XP = os.environ.get("XP", "")
PARTIAL = "partial" in XP
PLAINN = "sc1nonce" not in XP

NAME = "standalone__paged_block_table_kv_pagedattention__sampling"

SLOT = 17408
WAVE_RING = 2 * SLOT
K_OFF = 1024
V_OFF = 9216
TAB_BASE = 4 * WAVE_RING
SYNC_BASE = TAB_BASE + 16384
ARR_BASE = SYNC_BASE + 64
LDS_BYTES = ARR_BASE + 128
FLAG_BASE = 0x10000000
RECSZ = 2304

out = []
def E(s=""):
    out.append(s)
def I(s):
    if "nords" in XP and (s.startswith("ds_read_b128 v[%d" % 0) or s.startswith("ds_read_b64_tr") or (s.startswith("ds_read_b128") and "offset" in s and INCOMP[0])):
        return
    if "nomfma" in XP and s.startswith("v_mfma"):
        return
    if "nostore" in XP and s.startswith("buffer_store_dwordx4") and "sc1" in s:
        return
    if "plainst" in XP and s.startswith("buffer_store_dwordx4") and "sc1" in s:
        s = s.replace(" sc1", "")
    if "ntst" in XP and s.startswith("buffer_store_dwordx4") and "sc1" in s:
        s = s.replace(" sc1", " sc1 nt")
    if "noatom" in XP and s.startswith("buffer_atomic"):
        return
    out.append("    " + s)
INCOMP = [False]

sVlo, sVhi, sHQ, sValid, sRole, sSo, sSum, sSeen, sNeed, sWave = 3, 4, 5, 6, 7, 8, 9, 10, 11, 12
sRecState, sRecBlock, sSpin2 = 13, 14, 15
sKA = 16
sK = 32
sV = 36
sQ = 40
sT = 44
sWS = 48
sO = 52
sD = 56
sB, sH, sW = 60, 61, 62
sL = 63
sWB = 64
sNW = 65
sI = 66
sCur, sNxt, sNew = 67, 68, 69
sPhys = 70
sT0, sT1, sT2, sT3 = 71, 72, 73, 74
sPend, sNP, sCAPE = 75, 76, 77
sScale = 78
sHC = 79
sCAPB = 80
sEXB, sEXN = 81, 82
sX0, sXE = 83, 84
sCnt = 85
sQoff = 86
sScr = 87
sNeedM = 88
sM2 = 90
sExp = 92
sRec = 93
sK0 = 94
sLen = 95
sJ = 96
sSpin = 97
sCSC = 98

vLane = 1
vT0, vT1, vT2, vT3, vT4, vT5, vT6, vT7 = 2, 3, 4, 5, 6, 7, 8, 9
vPhys, vInfo = 10, 11
vCAP, vCAPI = 12, 13
vEX, vEXI = 14, 15
vKoff = 16
vVoff = 24
vRT = 16
vQoff = 32
vQaddr = 33
vKaddr = 34
vVaddr = 38
vTok = 46
vM, vLs = 50, 51
vS = 52
vP = 56
vX = 58
vA0, vA1 = 62, 63
vQ = 64
vK = 96
vV = 128
vAcc = 160
vNeg = 224
vCE = 225
vNB = 226
vSync = 227
vR = 228
vRO, vRS = 232, 233
vFlagOff = 234
vRS2 = 235
vF = 236

def stamp(k):
    if not DIAG:
        return
    I("s_memrealtime s[100:101]")
    I("s_waitcnt lgkmcnt(0)")
    I(f"v_mov_b32 v{248+k}, s100")

def stamp_store():
    if not DIAG:
        return
    I(f"s_lshl_b32 s{sT0}, s2, 3")
    I(f"s_add_u32 s{sT0}, s{sT0}, s{sWave}")
    I(f"s_lshl_b32 s{sT0}, s{sT0}, 5")
    I(f"s_add_u32 s{sT0}, s{sT0}, 0x20000000")
    I(f"v_mov_b32 v{vT1}, 0")
    I("s_mov_b64 exec, 1")
    I(f"buffer_store_dwordx4 v[248:251], v{vT1}, s[{sWS}:{sWS+3}], s{sT0} offen")
    I(f"buffer_store_dwordx4 v[252:255], v{vT1}, s[{sWS}:{sWS+3}], s{sT0} offen offset:16")

def srd(s, lo, hi, nrec):
    I(f"s_mov_b32 s{s}, s{lo}")
    I(f"s_and_b32 s{s+1}, s{hi}, 0xffff")
    I(f"s_mov_b32 s{s+2}, {nrec}")
    I(f"s_mov_b32 s{s+3}, 0x00020000")

def scan32(v):
    for sh in (1, 2, 4, 8):
        I("s_nop 1")
        I(f"v_add_u32_dpp v{v}, v{v}, v{v} row_shr:{sh} row_mask:0xf bank_mask:0xf bound_ctrl:0")
    I("s_nop 1")
    I(f"v_add_u32_dpp v{v}, v{v}, v{v} row_bcast:15 row_mask:0xa bank_mask:0xf")

def xlane(op, v, ta, tb):
    I(f"v_mov_b32 v{ta}, v{v}")
    I(f"v_mov_b32 v{tb}, v{v}")
    I("s_nop 1")
    I(f"v_permlane32_swap_b32 v{ta}, v{tb}")
    I("s_nop 1")
    I(f"{op} v{v}, v{ta}, v{tb}")
    I(f"v_mov_b32 v{ta}, v{v}")
    I("s_nop 0")
    I(f"v_mov_b32 v{tb}, v{v}")
    I("s_nop 1")
    I(f"v_permlane16_swap_b32 v{ta}, v{tb}")
    I("s_nop 1")
    I(f"{op} v{v}, v{ta}, v{tb}")

lab = [0]
def wait_ge(off):
    lab[0] += 1
    n = lab[0]
    I(f"s_cmp_ge_i32 s{sSeen}, s{sNeed}")
    I(f"s_cbranch_scc1 L_wok{n}")
    E(f"L_wp{n}:")
    I(f"ds_read_b32 v{vT0}, v{vSync} offset:{off}")
    I("s_waitcnt lgkmcnt(0)")
    I(f"v_readfirstlane_b32 s{sSeen}, v{vT0}")
    I("s_nop 1")
    I(f"s_cmp_ge_i32 s{sSeen}, s{sNeed}")
    I(f"s_cbranch_scc1 L_wok{n}")
    I(f"s_sleep {SLEEP}")
    I(f"s_branch L_wp{n}")
    E(f"L_wok{n}:")

def signal(off, sval):
    I(f"v_mov_b32 v{vT1}, s{sval}")
    I("s_mov_b64 exec, 1")
    I(f"ds_write_b32 v{vSync}, v{vT1} offset:{off}")
    I("s_mov_b64 exec, -1")

def issue_group(g, first=False):
    if g == 0:
        I(f"v_readlane_b32 s{sNew}, v{vInfo}, s{sI}")
        I(f"v_readlane_b32 s{sPhys}, v{vPhys}, s{sI}")
        I(f"s_sub_u32 s{sSo}, s{sSum}, s{sSo}")
        I(f"s_lshl_b32 s{sNeed}, s{sI}, 1")
        I(f"s_sub_i32 s{sNeed}, s{sNeed}, 3")
        I(f"s_add_u32 s{sI}, s{sI}, 1")
        I(f"s_lshl_b32 s{sVlo}, s{sPhys}, 16")
        I(f"s_lshr_b32 s{sVhi}, s{sPhys}, 16")
        I(f"s_add_u32 s{sK}, s{sKA+2}, s{sVlo}")
        I(f"s_addc_u32 s{sK+1}, s{sKA+3}, s{sVhi}")
        I(f"s_bfe_u32 s{sT2}, s{sNew}, 0x50008")
        I(f"s_lshl_b32 s{sK+2}, s{sT2}, 12")
        I(f"s_and_b32 s{sT3}, s{sNew}, 31")
        I(f"s_lshl_b32 s{sT3}, s{sT3}, 13")
        I(f"s_add_u32 s{sQoff}, s{sT3}, s{sHQ}")
        if not first:
            wait_ge(4)
        I(f"s_mov_b32 m0, s{sSo}")
        I("s_nop 0")
        I(f"buffer_load_dwordx4 v{vQoff}, s[{sQ}:{sQ+3}], s{sQoff} offen lds")
        I(f"s_add_u32 m0, s{sSo}, {K_OFF}")
        I("s_nop 0")
        for n in range(4):
            I(f"buffer_load_dwordx4 v{vKoff+n}, s[{sK}:{sK+3}], 0 offen offset:{n*1024} nt lds")
    elif g == 1:
        I(f"s_add_u32 m0, s{sSo}, {K_OFF + 4096}")
        I("s_nop 0")
        for n in range(4, 8):
            I(f"buffer_load_dwordx4 v{vKoff+n}, s[{sK}:{sK+3}], 0 offen offset:{(n&3)*1024} nt lds")
    elif g == 2:
        I(f"s_add_u32 s{sNeed}, s{sNeed}, 1")
        if not first:
            wait_ge(4)
        I(f"s_add_u32 m0, s{sSo}, {V_OFF}")
        I(f"s_add_u32 s{sV}, s{sKA+4}, s{sVlo}")
        I(f"s_addc_u32 s{sV+1}, s{sKA+5}, s{sVhi}")
        I(f"s_mov_b32 s{sV+2}, s{sK+2}")
        for n in range(4):
            I(f"buffer_load_dwordx4 v{vVoff+n}, s[{sV}:{sV+3}], 0 offen offset:{n*1024} nt lds")
    else:
        I(f"s_add_u32 m0, s{sSo}, {V_OFF + 4096}")
        I("s_nop 0")
        for n in range(4, 8):
            I(f"buffer_load_dwordx4 v{vVoff+n}, s[{sV}:{sV+3}], 0 offen offset:{(n&3)*1024} nt lds")

def issue_one(p, first=False):
    if p == 0:
        I(f"v_readlane_b32 s{sNew}, v{vInfo}, s{sI}")
        I(f"v_readlane_b32 s{sPhys}, v{vPhys}, s{sI}")
        I(f"s_sub_u32 s{sSo}, s{sSum}, s{sSo}")
        I(f"s_lshl_b32 s{sNeed}, s{sI}, 1")
        I(f"s_sub_i32 s{sNeed}, s{sNeed}, 3")
        I(f"s_add_u32 s{sI}, s{sI}, 1")
        I(f"s_lshl_b32 s{sVlo}, s{sPhys}, 16")
        I(f"s_lshr_b32 s{sVhi}, s{sPhys}, 16")
        I(f"s_add_u32 s{sK}, s{sKA+2}, s{sVlo}")
        I(f"s_addc_u32 s{sK+1}, s{sKA+3}, s{sVhi}")
        I(f"s_bfe_u32 s{sT2}, s{sNew}, 0x50008")
        I(f"s_lshl_b32 s{sK+2}, s{sT2}, 12")
        I(f"s_and_b32 s{sT3}, s{sNew}, 31")
        I(f"s_lshl_b32 s{sT3}, s{sT3}, 13")
        I(f"s_add_u32 s{sQoff}, s{sT3}, s{sHQ}")
        if not first:
            wait_ge(4)
        I(f"s_mov_b32 m0, s{sSo}")
        I("s_nop 0")
        I(f"buffer_load_dwordx4 v{vQoff}, s[{sQ}:{sQ+3}], s{sQoff} offen lds")
        I(f"s_add_u32 m0, s{sSo}, {K_OFF}")
    elif p <= 8:
        n = p - 1
        I(f"buffer_load_dwordx4 v{vKoff+n}, s[{sK}:{sK+3}], 0 offen offset:{(n&3)*1024} nt lds")
        if n == 3:
            I(f"s_add_u32 m0, s{sSo}, {K_OFF + 4096}")
    else:
        n = p - 9
        if n == 0:
            I(f"s_add_u32 s{sNeed}, s{sNeed}, 1")
            if not first:
                wait_ge(4)
            I(f"s_add_u32 m0, s{sSo}, {V_OFF}")
            I(f"s_add_u32 s{sV}, s{sKA+4}, s{sVlo}")
            I(f"s_addc_u32 s{sV+1}, s{sKA+5}, s{sVhi}")
            I(f"s_mov_b32 s{sV+2}, s{sK+2}")
        I(f"buffer_load_dwordx4 v{vVoff+n}, s[{sV}:{sV+3}], 0 offen offset:{(n&3)*1024} nt lds")
        if n == 3:
            I(f"s_add_u32 m0, s{sSo}, {V_OFF + 4096}")

def loader():
    E("L_loader:")
    I(f"ds_read_b32 v{vPhys}, v{vT5}")
    I(f"s_mov_b32 s{sI}, 0")
    I(f"s_mov_b32 s{sCnt}, 0")
    I(f"s_lshl_b32 s{sNW}, s{sNW}, 1")
    I(f"s_lshl_b32 s{sHQ}, s{sH}, 10")
    I(f"s_lshl_b32 s{sSum}, s{sWB}, 1")
    I(f"s_add_u32 s{sSum}, s{sSum}, {SLOT}")
    I(f"s_add_u32 s{sSo}, s{sWB}, {SLOT}")
    I(f"s_mov_b32 s{sSeen}, 0")
    I("s_waitcnt lgkmcnt(0)")
    if WIN:
        for p in range(WIN):
            issue_one(p % 17, first=True)
            I("s_nop 0")
    elif TILEG:
        for t in range(TILEG):
            issue_group(2 * (t % 2), first=True)
            issue_group(2 * (t % 2) + 1, first=True)
    else:
        for g in range(WGN):
            issue_group(g % 4, first=True)
    stamp(4)
    I("s_barrier")
    I(f"s_cmp_eq_u32 s{sNW}, 0")
    I("s_cbranch_scc1 L_ld_done")
    E("L_ld_loop:")
    for q in range(17 if WIN else 0):
        I(f"s_waitcnt vmcnt({WIN-1})")
        if q in (8, 16):
            I(f"s_add_u32 s{sCnt}, s{sCnt}, 1")
            signal(0, sCnt)
        issue_one((q + WIN) % 17)
    for t in range(2 if TILEG else 0):
        allowed = sum([9, 8][(t + k) % 2] for k in range(1, TILEG))
        I(f"s_waitcnt vmcnt({allowed})")
        I(f"s_add_u32 s{sCnt}, s{sCnt}, 1")
        signal(0, sCnt)
        issue_group(2 * ((t + TILEG) % 2))
        issue_group(2 * ((t + TILEG) % 2) + 1)
    for g in range(0 if (WIN or TILEG) else 4):
        allowed = sum(GSZ[(g + k) % 4] for k in range(1, WGN))
        I(f"s_waitcnt vmcnt({allowed})")
        if g in (1, 3):
            I(f"s_add_u32 s{sCnt}, s{sCnt}, 1")
            signal(0, sCnt)
        issue_group((g + WGN) % 4)
    I(f"s_cmp_lt_u32 s{sCnt}, s{sNW}")
    I("s_cbranch_scc1 L_ld_loop")
    E("L_ld_done:")
    stamp(5)
    stamp_store()
    I("s_endpgm")

def fire_flag():
    lab[0] += 1
    n = lab[0]
    I(f"v_mov_b32 v{vT0}, {SYNC_BASE + 8}")
    I(f"v_mov_b32 v{vT1}, 1")
    I(f"s_mov_b64 exec, 1")
    I(f"ds_add_rtn_u32 v{vT2}, v{vT0}, v{vT1}")
    I(f"v_mov_b32 v{vT0}, 0")
    I("s_waitcnt lgkmcnt(0)")
    I(f"v_readfirstlane_b32 s{sT0}, v{vT2}")
    I("s_nop 1")
    I(f"s_add_u32 s{sT0}, s{sT0}, 1")
    I(f"s_cmp_lg_u32 s{sT0}, s{sNP}")
    I(f"s_cbranch_scc1 L_ff{n}")
    I(f"s_mov_b32 s{sSpin}, 0")
    if "partial" not in XP:
        I("s_mov_b64 exec, 0xffff")
        I(f"v_mov_b32 v{vT0}, 0")
        I(f"v_lshlrev_b32 v{vT1}, 3, v{vLane}")
    I(f"s_lshl_b32 s{sT1}, s2, 7")
    I(f"s_add_u32 s{sT1}, s{sT1}, {FLAG_BASE}")
    if PLAINN:
        I(f"buffer_load_dwordx2 v[{vT2}:{vT3}], v{vT0}, s[{sD}:{sD+3}], 0 offen")
        I(f"s_branch L_fw{n}")
    E(f"L_fn{n}:")
    I(f"buffer_load_dwordx2 v[{vT2}:{vT3}], v{vT0}, s[{sD}:{sD+3}], 0 offen sc1")
    E(f"L_fw{n}:")
    I("s_waitcnt vmcnt(0)")
    I(f"v_readfirstlane_b32 s{sT0}, v{vT2}")
    I("s_nop 1")
    I(f"s_cmp_lg_u32 s{sT0}, 0")
    I(f"s_cbranch_scc1 L_fs{n}")
    I("s_sleep 8")
    I(f"s_add_u32 s{sSpin}, s{sSpin}, 1")
    I(f"s_cmp_lt_u32 s{sSpin}, 0x200000")
    I(f"s_cbranch_scc1 L_fn{n}")
    E(f"L_fs{n}:")
    I(f"buffer_store_dwordx2 v[{vT2}:{vT3}], v{vT0 if PARTIAL else vT1}, s[{sWS}:{sWS+3}], s{sT1} offen sc1")
    E(f"L_ff{n}:")
    I(f"s_mov_b64 exec, -1")
    I(f"s_mov_b32 s{sPend}, 0")

def dump_partial():
    lab[0] += 1
    n = lab[0]
    E(f"L_bw{n}:")
    I(f"ds_read_b32 v{vT0}, v{vSync} offset:12")
    I("s_waitcnt lgkmcnt(0)")
    I(f"v_readfirstlane_b32 s{sT0}, v{vT0}")
    I("s_nop 1")
    I(f"s_cmp_eq_u32 s{sT0}, 0")
    I(f"s_cbranch_scc1 L_bo{n}")
    I("s_sleep 1")
    I(f"s_branch L_bw{n}")
    E(f"L_bo{n}:")
    xlane("v_add_f32", vLs, vT0, vT1)
    I(f"v_lshlrev_b32 v{vT2}, 2, v{vLane}")
    I(f"v_add_u32 v{vT2}, s{sScr}, v{vT2}")
    I(f"v_add_u32 v{vT3}, 0x400, v{vT2}")
    I(f"v_lshlrev_b32 v{vT4}, 3, v{vLane}")
    I(f"v_add_u32 v{vT4}, s{sScr}, v{vT4}")
    I(f"s_mov_b64 exec, 0xffff")
    for n in range(16):
        a = vT2 if n < 8 else vT3
        o = (n & 7) * 32
        I(f"ds_write2_b32 v{a}, v{vAcc+4*n}, v{vAcc+4*n+1} offset0:{o} offset1:{o+16}")
    I(f"s_mov_b64 exec, 3")
    I(f"ds_write_b64 v{vT4}, v[{vM}:{vM+1}] offset:2048")
    I(f"s_mov_b64 exec, -1")

def compute(slot, tag):
    INCOMP[0] = True
    compute_(slot, tag)
    INCOMP[0] = False

def compute_(slot, tag):
    so = slot * SLOT
    I(f"s_add_u32 s{sT0}, s{sCnt}, 1")
    I(f"v_readlane_b32 s{sCur}, v{vInfo}, s{sCnt}")
    I(f"v_readlane_b32 s{sNxt}, v{vInfo}, s{sT0}")
    I(f"s_lshl_b32 s{sNeed}, s{sCnt}, 1")
    I(f"s_add_u32 s{sNeed}, s{sNeed}, 1")
    wait_ge(0)
    for n in range(8):
        I(f"ds_read_b128 v[{vQ+4*n}:{vQ+4*n+3}], v{vQaddr} offset:{so + n*64}")
        I(f"ds_read_b128 v[{vK+4*n}:{vK+4*n+3}], v{vKaddr+(n&3)} offset:{so + (n>>2)*256}")
    I(f"s_bitcmp1_b32 s{sCur}, 16")
    I(f"s_cselect_b32 s{sScale}, 0, s{sCSC}")
    I(f"s_bfe_u32 s{sValid}, s{sCur}, 0x50008")
    for n in range(8):
        I(f"s_waitcnt lgkmcnt({14-2*n})")
        c = "0" if n == 0 else f"v[{vS}:{vS+3}]"
        I(f"v_mfma_f32_16x16x32_bf16 v[{vS}:{vS+3}], v[{vK+4*n}:{vK+4*n+3}], v[{vQ+4*n}:{vQ+4*n+3}], {c}")
    signal(4, sNeed)
    I(f"s_add_u32 s{sNeed}, s{sNeed}, 1")
    I(f"s_cmp_eq_u32 s{sPend}, 0")
    I(f"s_cbranch_scc1 L_nopend_{tag}")
    I("s_waitcnt vmcnt(0)")
    fire_flag()
    E(f"L_nopend_{tag}:")
    I(f"s_cmp_eq_u32 s{sValid}, 16")
    I("s_nop 1")
    I(f"s_cbranch_scc1 L_full_{tag}")
    for r in range(4):
        I(f"v_cmp_gt_u32 vcc, s{sValid}, v{vTok+r}")
        I("s_nop 1")
        I(f"v_cndmask_b32 v{vS+r}, v{vNeg}, v{vS+r}, vcc")
    E(f"L_full_{tag}:")
    I(f"v_max3_f32 v{vX}, v{vS}, v{vS+1}, v{vS+2}")
    I(f"v_max_f32 v{vX}, v{vX}, v{vS+3}")
    I(f"v_mul_f32 v{vX}, s{sScale}, v{vX}")
    I(f"v_cmp_gt_f32 vcc, v{vX}, v{vM}")
    I("s_nop 1")
    I(f"s_cbranch_vccnz L_rare_{tag}")
    E(f"L_back_{tag}:")
    for r in range(4):
        I(f"v_fma_f32 v{vX+r}, v{vS+r}, s{sScale}, -v{vM}")
    for r in range(4):
        I(f"v_exp_f32 v{vX+r}, v{vX+r}")
    I("s_nop 0")
    I(f"v_cvt_pk_bf16_f32 v{vP}, v{vX}, v{vX+1}")
    I(f"v_cvt_pk_bf16_f32 v{vP+1}, v{vX+2}, v{vX+3}")
    I(f"v_add_f32 v{vX}, v{vX}, v{vX+1}")
    I(f"v_add_f32 v{vX+2}, v{vX+2}, v{vX+3}")
    I(f"v_add_f32 v{vLs}, v{vLs}, v{vX}")
    I(f"v_add_f32 v{vLs}, v{vLs}, v{vX+2}")
    wait_ge(0)
    for n in range(16):
        I(f"ds_read_b64_tr_b16 v[{vV+2*n}:{vV+2*n+1}], v{vVaddr+(n&7)} offset:{so + (n>>3)*256}")
    for n in range(16):
        I(f"s_waitcnt lgkmcnt({15-n})")
        I(f"v_mfma_f32_16x16x16_bf16 v[{vAcc+4*n}:{vAcc+4*n+3}], v[{vP}:{vP+1}], v[{vV+2*n}:{vV+2*n+1}], v[{vAcc+4*n}:{vAcc+4*n+3}]")
    signal(4, sNeed)
    I(f"s_xor_b32 s{sT0}, s{sCur}, s{sNxt}")
    I(f"s_and_b32 s{sT0}, s{sT0}, 31")
    if "norec" not in XP:
        I(f"s_cbranch_scc1 L_flush_{tag}")
    E(f"L_noflush_{tag}:")
    I(f"s_add_u32 s{sCnt}, s{sCnt}, 1")
    I(f"s_cmp_ge_u32 s{sCnt}, s{sNW}")

def rare_path(tag):
    E(f"L_rare_{tag}:")
    I(f"v_max_f32 v{vX}, v{vX}, v{vM}")
    xlane("v_max_f32", vX, vX+1, vX+2)
    I(f"v_sub_f32 v{vX+1}, v{vM}, v{vX}")
    I(f"v_exp_f32 v{vX+1}, v{vX+1}")
    I(f"v_mov_b32 v{vM}, v{vX}")
    I("s_nop 0")
    I(f"v_mul_f32 v{vLs}, v{vLs}, v{vX+1}")
    I(f"v_mov_b32_dpp v{vA0}, v{vX+1} quad_perm:[0,0,0,0] row_mask:0xf bank_mask:0xf")
    I(f"v_mov_b32_dpp v{vA1}, v{vX+1} quad_perm:[1,1,1,1] row_mask:0xf bank_mask:0xf")
    for n in range(16):
        I(f"v_mul_f32 v{vAcc+4*n}, v{vA0}, v{vAcc+4*n}")
        I(f"v_mul_f32 v{vAcc+4*n+1}, v{vA1}, v{vAcc+4*n+1}")
    I(f"s_branch L_back_{tag}")

def flush_path(tag):
    E(f"L_flush_{tag}:")
    I(f"s_cmp_eq_u32 s{sPend}, 0")
    I(f"s_cbranch_scc1 L_fl_np_{tag}")
    I("s_waitcnt vmcnt(0)")
    fire_flag()
    E(f"L_fl_np_{tag}:")
    I("s_nop 7")
    dump_partial()
    I(f"s_and_b32 s{sJ}, s{sCur}, 31")
    I(f"v_mov_b32 v{vT1}, 1")
    I(f"s_lshl_b32 s{sT0}, s{sJ}, 2")
    I(f"s_add_u32 s{sT0}, s{sT0}, {ARR_BASE}")
    I(f"v_mov_b32 v{vT0}, s{sT0}")
    I(f"v_readlane_b32 s{sT1}, v{vEX}, s{sJ}")
    I(f"v_readlane_b32 s{sT2}, v{vEXI}, s{sJ}")
    I("s_mov_b64 exec, 1")
    I(f"ds_write_b32 v{vSync}, v{vT1} offset:12")
    I("s_waitcnt lgkmcnt(0)")
    I(f"ds_add_rtn_u32 v{vT2}, v{vT0}, v{vT1}")
    I("s_mov_b64 exec, -1")
    I(f"s_max_u32 s{sT1}, s{sT1}, s{sCAPB}")
    I(f"s_min_u32 s{sT2}, s{sT2}, s{sCAPE}")
    I(f"s_sub_u32 s{sLen}, s{sT2}, s{sT1}")
    I(f"s_sub_u32 s{sK0}, s{sT1}, s{sCAPB}")
    I(f"s_min_u32 s{sT3}, s{sLen}, 4")
    I(f"v_mov_b32 v{vM}, 0xff800000")
    I("s_waitcnt lgkmcnt(0)")
    I(f"v_readfirstlane_b32 s{sT0}, v{vT2}")
    I("s_nop 1")
    I(f"s_add_u32 s{sT0}, s{sT0}, 1")
    I(f"s_cmp_lg_u32 s{sT0}, s{sT3}")
    I(f"s_cbranch_scc1 L_noflush_{tag}")
    I(f"v_lshrrev_b32 v{vT3}, 2, v{vLane}")
    I(f"v_and_b32 v{vT3}, 1, v{vT3}")
    I(f"v_lshlrev_b32 v{vT3}, 3, v{vT3}")
    I(f"v_add_u32 v{vT3}, {TAB_BASE + 2048}, v{vT3}")
    I(f"v_add_u32 v{vT4}, {TAB_BASE}, v{vQoff}")
    I(f"v_mov_b32 v{vF+8}, 0xff800000")
    I(f"v_mov_b32 v{vF+9}, 0")
    for i in range(8):
        I(f"v_mov_b32 v{vF+i}, 0")
    I(f"v_mov_b32 v{vT5}, {SYNC_BASE}")
    I(f"v_mov_b32 v{vT6}, 0")
    for w in range(4):
        I(f"s_sub_u32 s{sT0}, {w}, s{sK0}")
        I(f"s_and_b32 s{sT0}, s{sT0}, 3")
        I(f"s_cmp_ge_u32 s{sT0}, s{sLen}")
        I(f"s_cbranch_scc1 L_fm{w}_{tag}")
        I(f"ds_read_b64 v[{vRT+8}:{vRT+9}], v{vT3} offset:{w*4096}")
        I(f"ds_read_b128 v[{vRT}:{vRT+3}], v{vT4} offset:{w*4096}")
        I(f"ds_read_b128 v[{vRT+4}:{vRT+7}], v{vT4} offset:{w*4096+1024}")
        I("s_waitcnt lgkmcnt(0)")
        I("s_mov_b64 exec, 1")
        I(f"ds_write_b32 v{vT5}, v{vT6} offset:{w*16+12}")
        I("s_mov_b64 exec, -1")
        I(f"v_max_f32 v{vT0}, v{vF+8}, v{vRT+8}")
        I(f"v_sub_f32 v{vT1}, v{vF+8}, v{vT0}")
        I(f"v_sub_f32 v{vT2}, v{vRT+8}, v{vT0}")
        I(f"v_exp_f32 v{vT1}, v{vT1}")
        I(f"v_exp_f32 v{vT2}, v{vT2}")
        I(f"v_mov_b32 v{vF+8}, v{vT0}")
        I(f"v_mul_f32 v{vF+9}, v{vF+9}, v{vT1}")
        I(f"v_fmac_f32 v{vF+9}, v{vRT+9}, v{vT2}")
        for i in range(8):
            I(f"v_mul_f32 v{vF+i}, v{vF+i}, v{vT1}")
            I(f"v_fmac_f32 v{vF+i}, v{vRT+i}, v{vT2}")
        E(f"L_fm{w}_{tag}:")
    I(f"s_lshl_b32 s{sT1}, s{sJ}, 5")
    I(f"s_add_u32 s{sT1}, s{sT1}, s{sB}")
    I(f"s_lshl_b32 s{sT1}, s{sT1}, 3")
    I(f"s_add_u32 s{sT1}, s{sT1}, s{sH}")
    I(f"s_mul_i32 s{sRec}, s{sT1}, {RECSZ}")
    I(f"v_lshlrev_b32 v{vT0}, 3, v{vLane}")
    I(f"buffer_store_dwordx4 v[{vF}:{vF+3}], v{vQoff}, s[{sWS}:{sWS+3}], s{sRec} offen sc1")
    I(f"buffer_store_dwordx4 v[{vF+4}:{vF+7}], v{vQoff}, s[{sWS}:{sWS+3}], s{sRec} offen offset:1024 sc1")
    I(f"s_mov_b64 exec, 0xffff")
    I(f"buffer_store_dwordx2 v[{vF+8}:{vF+9}], v{vT0}, s[{sWS}:{sWS+3}], s{sRec} offen offset:2048 sc1")
    I(f"s_mov_b64 exec, -1")
    I(f"s_mov_b32 s{sPend}, 1")
    I(f"s_branch L_noflush_{tag}")

def merge_one(m, l, o0, o1):
    M, Ls, A0, A1 = vR, vR+1, vR+2, vR+3
    I(f"v_max_f32 v{vT0}, v{M}, v{m}")
    I(f"v_sub_f32 v{vT1}, v{M}, v{vT0}")
    I(f"v_sub_f32 v{vT2}, v{m}, v{vT0}")
    I(f"v_exp_f32 v{vT1}, v{vT1}")
    I(f"v_exp_f32 v{vT2}, v{vT2}")
    I(f"v_mov_b32 v{M}, v{vT0}")
    I(f"v_mul_f32 v{Ls}, v{Ls}, v{vT1}")
    I(f"v_mul_f32 v{A0}, v{A0}, v{vT1}")
    I(f"v_mul_f32 v{A1}, v{A1}, v{vT1}")
    I(f"v_fmac_f32 v{Ls}, v{l}, v{vT2}")
    I(f"v_fmac_f32 v{A0}, v{o0}, v{vT2}")
    I(f"v_fmac_f32 v{A1}, v{o1}, v{vT2}")

def record_block():
    E("L_rectry:")
    I(f"s_mov_b32 s{sSpin}, 0")
    E("L_poll:")
    I(f"v_mov_b32 v{vT0}, 0")
    I(f"s_mov_b32 s{sT0}, {FLAG_BASE}")
    if PLAINN:
        I(f"s_cmp_lg_u32 s{sSpin2}, 0")
        I("s_cbranch_scc1 L_pn1")
        I(f"buffer_load_dwordx2 v[{vT2}:{vT3}], v{vT0}, s[{sD}:{sD+3}], 0 offen")
        I("s_branch L_pn2")
        E("L_pn1:")
    I(f"buffer_load_dwordx2 v[{vT2}:{vT3}], v{vT0}, s[{sD}:{sD+3}], 0 offen sc1")
    E("L_pn2:")
    I(f"s_mov_b32 s{sSpin2}, 1")
    I(f"s_mov_b64 exec, s[{sNeedM}:{sNeedM+1}]")
    I(f"buffer_load_dwordx2 v[{vT4}:{vT5}], v{vFlagOff}, s[{sWS}:{sWS+3}], s{sT0} offen sc1")
    I("s_waitcnt vmcnt(0)")
    I(f"v_cmp_ne_u64 vcc, v[{vT2}:{vT3}], v[{vT4}:{vT5}]")
    I(f"v_cmp_eq_u32 s[{sM2}:{sM2+1}], 0, v{vT2}")
    I("s_mov_b64 exec, -1")
    I("s_nop 2")
    I(f"s_or_b64 vcc, vcc, s[{sM2}:{sM2+1}]")
    I(f"s_cmp_eq_u64 vcc, 0")
    I("s_cbranch_scc1 L_ready")
    I(f"s_cmp_eq_u32 s{sRecBlock}, 0")
    I("s_cbranch_scc1 L_loop_go")
    I("s_sleep 8")
    I(f"s_add_u32 s{sSpin}, s{sSpin}, 1")
    I(f"s_cmp_lt_u32 s{sSpin}, 0x200000")
    I("s_cbranch_scc1 L_poll")
    E("L_ready:")
    I(f"s_mov_b32 s{sX0}, s{sEXB}")
    I(f"s_add_u32 s{sXE}, s{sEXB}, s{sEXN}")
    E("L_rec:")
    I(f"v_cmp_ge_u32 vcc, s{sX0}, v{vCAPI}")
    I("s_nop 3")
    I(f"s_bcnt1_i32_b64 s{sJ}, vcc")
    I("s_nop 0")
    I(f"v_readlane_b32 s{sT0}, v{vCAP}, s{sJ}")
    I(f"v_readlane_b32 s{sT1}, v{vCAPI}, s{sJ}")
    I("s_nop 3")
    I(f"s_min_u32 s{sX0}, s{sT1}, s{sXE}")
    I(f"s_lshl_b32 s{sT0}, s{sB}, 5")
    I(f"s_add_u32 s{sT0}, s{sT0}, s{sJ}")
    I(f"s_lshl_b32 s{sT0}, s{sT0}, 3")
    I(f"s_add_u32 s{sT0}, s{sT0}, s{sH}")
    I(f"s_mul_i32 s{sRec}, s{sT0}, {RECSZ}")
    I(f"buffer_load_dwordx2 v[{vRT}:{vRT+1}], v{vRS2}, s[{sWS}:{sWS+3}], s{sRec} offen sc1")
    I(f"buffer_load_dwordx2 v[{vRT+2}:{vRT+3}], v{vRO}, s[{sWS}:{sWS+3}], s{sRec} offen sc1")
    I("s_waitcnt vmcnt(0)")
    merge_one(vRT, vRT+1, vRT+2, vRT+3)
    I(f"s_cmp_lt_u32 s{sX0}, s{sXE}")
    I("s_cbranch_scc1 L_rec")
    I(f"s_mov_b32 s{sRecState}, 1")
    I(f"s_cmp_eq_u32 s{sRecBlock}, 0")
    I("s_cbranch_scc1 L_loop_go")
    I("s_branch L_store")

def gen():
    E("; paged attention decode: B=32 Hq=16 Hkv=8 D=256 block=16 tokens, 128 blocks/seq")
    E(f"; @launch grid=(256,1,1) block=(512,1,1) lds={LDS_BYTES}")
    E('.amdgcn_target "amdgcn-amd-amdhsa--gfx950"')
    E(".text")
    E(f".globl {NAME}_kernel")
    E(".p2align 8")
    E(f".type {NAME}_kernel,@function")
    E(f"{NAME}_kernel:")
    I("s_cmp_ge_u32 s2, 256")
    I("s_cbranch_scc1 L_end")
    stamp(0)
    I(f"s_load_dwordx16 s[{sKA}:{sKA+15}], s[0:1], 0")
    I(f"v_and_b32 v{vLane}, 63, v0")
    I(f"v_lshrrev_b32 v{vT0}, 6, v0")
    I(f"s_lshr_b32 s{sB}, s2, 3")
    I(f"s_and_b32 s{sH}, s2, 7")
    I(f"v_readfirstlane_b32 s{sWave}, v{vT0}")
    I(f"v_lshlrev_b32 v{vQoff}, 4, v{vLane}")
    I(f"v_lshlrev_b32 v{vT7}, 2, v{vLane}")
    I(f"s_and_b32 s{sW}, s{sWave}, 3")
    I(f"s_lshr_b32 s{sRole}, s{sWave}, 2")
    I(f"s_mul_i32 s{sWB}, s{sW}, {WAVE_RING}")
    I(f"s_lshl_b32 s{sT0}, s{sW}, 12")
    I(f"s_add_u32 s{sScr}, s{sT0}, {TAB_BASE}")
    I(f"s_lshl_b32 s{sT0}, s{sWave}, 11")
    I(f"v_add_u32 v{vT6}, s{sT0}, v{vQoff}")
    I(f"s_add_u32 m0, s{sT0}, {TAB_BASE}")
    I(f"s_lshl_b32 s{sT1}, s{sW}, 4")
    I(f"s_add_u32 s{sT1}, s{sT1}, {SYNC_BASE}")
    I(f"v_mov_b32 v{vSync}, s{sT1}")
    I("s_waitcnt lgkmcnt(0)")
    stamp(1)
    srd(sT, sKA+8, sKA+9, 128)
    I(f"buffer_load_dword v{vCE}, v{vT7}, s[{sT}:{sT+3}], 0 offen")
    srd(sQ, sKA+6, sKA+7, 16384)
    for n in range(2):
        I(f"buffer_load_dwordx4 v{vT6}, s[{sQ}:{sQ+3}], 0 offen offset:{n*1024} lds")
    srd(sWS, sKA+14, sKA+15, 1074790400)
    I(f"s_cmp_lg_u32 s{sRole}, 0")
    I("s_cbranch_scc1 L_pre_cons")
    I(f"v_lshrrev_b32 v{vT0}, 5, v{vLane}")
    I(f"v_and_b32 v{vT1}, 31, v{vLane}")
    I(f"s_lshl_b32 s{sT0}, s{sH}, 9")
    I(f"v_lshlrev_b32 v{vT2}, 12, v{vT0}")
    I(f"v_add_u32 v{vT2}, s{sT0}, v{vT2}")
    I(f"v_xor_b32 v{vT3}, v{vT1}, v{vT0}")
    I(f"v_lshlrev_b32 v{vT4}, 1, v{vT0}")
    I(f"v_xor_b32 v{vT4}, v{vT1}, v{vT4}")
    for n in range(8):
        I(f"v_xor_b32 v{vT5}, {2*n}, v{vT3}")
        I(f"v_lshl_add_u32 v{vT5}, v{vT5}, 4, v{vT2}")
        I(f"v_add_u32 v{vKoff+n}, {n*8192-(n&3)*1024}, v{vT5}")
        I(f"v_xor_b32 v{vT5}, {((2*n)&7)<<1}, v{vT4}")
        I(f"v_lshl_add_u32 v{vT5}, v{vT5}, 4, v{vT2}")
        I(f"v_add_u32 v{vVoff+n}, {n*8192-(n&3)*1024}, v{vT5}")
    I(f"s_mov_b32 s{sK+3}, 0x00020000")
    I(f"s_mov_b32 s{sV+3}, 0x00020000")
    I("s_branch L_sched")
    E("L_pre_cons:")
    I(f"v_mov_b32 v{vT0}, 0")
    I(f"v_mov_b32 v{vT1}, 0")
    I(f"ds_write_b64 v{vSync}, v[{vT0}:{vT1}]")
    I(f"ds_write_b64 v{vSync}, v[{vT0}:{vT1}] offset:8")
    I(f"v_and_b32 v{vT2}, 31, v{vLane}")
    I(f"v_lshlrev_b32 v{vT2}, 2, v{vT2}")
    I(f"v_add_u32 v{vT2}, {ARR_BASE}, v{vT2}")
    I(f"ds_write_b32 v{vT2}, v{vT0}")
    I(f"v_and_b32 v{vT0}, 15, v{vLane}")
    I(f"v_lshrrev_b32 v{vT1}, 4, v{vLane}")
    I(f"v_and_b32 v{vT2}, 1, v{vLane}")
    I(f"v_lshlrev_b32 v{vT2}, 9, v{vT2}")
    I(f"v_lshl_add_u32 v{vT2}, v{vT1}, 4, v{vT2}")
    I(f"v_add_u32 v{vQaddr}, s{sWB}, v{vT2}")
    I(f"v_xor_b32 v{vT2}, v{vT1}, v{vT0}")
    I(f"v_lshlrev_b32 v{vT3}, 9, v{vT0}")
    I(f"v_add_u32 v{vT3}, s{sWB}, v{vT3}")
    I(f"v_add_u32 v{vT3}, {K_OFF}, v{vT3}")
    for q in range(4):
        I(f"v_xor_b32 v{vT4}, {4*q}, v{vT2}")
        I(f"v_lshl_add_u32 v{vKaddr+q}, v{vT4}, 4, v{vT3}")
    I(f"v_lshrrev_b32 v{vT0}, 2, v{vLane}")
    I(f"v_and_b32 v{vT2}, 3, v{vLane}")
    I(f"v_and_b32 v{vT3}, 7, v{vT0}")
    I(f"v_lshlrev_b32 v{vT3}, 1, v{vT3}")
    I(f"v_lshrrev_b32 v{vT4}, 1, v{vT2}")
    I(f"v_xor_b32 v{vT3}, v{vT3}, v{vT4}")
    I(f"v_and_b32 v{vT4}, 1, v{vT2}")
    I(f"v_lshlrev_b32 v{vT4}, 3, v{vT4}")
    I(f"v_lshl_add_u32 v{vT4}, v{vT0}, 9, v{vT4}")
    I(f"v_add_u32 v{vT4}, s{sWB}, v{vT4}")
    I(f"v_add_u32 v{vT4}, {V_OFF}, v{vT4}")
    for q in range(8):
        I(f"v_xor_b32 v{vT5}, {2*q}, v{vT3}")
        I(f"v_lshl_add_u32 v{vVaddr+q}, v{vT5}, 4, v{vT4}")
    I(f"v_lshlrev_b32 v{vTok}, 2, v{vT1}")
    for r in range(1, 4):
        I(f"v_add_u32 v{vTok+r}, {r}, v{vTok}")
    E("L_sched:")
    I(f"v_cmp_gt_u32 vcc, 32, v{vLane}")
    I("s_waitcnt vmcnt(2)")
    stamp(2)
    I(f"v_cmp_gt_i32 s[{sM2}:{sM2+1}], 1, v{vCE}")
    I(f"v_min_i32 v{vT0}, 0x800, v{vCE}")
    I(f"v_mov_b32 v{vT1}, 0x800")
    I(f"v_cndmask_b32 v{vCE}, v{vT0}, v{vT1}, s[{sM2}:{sM2+1}]")
    I(f"v_cndmask_b32 v{vT7}, 0, 1, s[{sM2}:{sM2+1}]")
    I(f"v_add_u32 v{vNB}, 15, v{vCE}")
    I(f"v_lshrrev_b32 v{vNB}, 4, v{vNB}")
    I(f"v_lshl_or_b32 v{vCE}, v{vT7}, 16, v{vCE}")
    I(f"v_cndmask_b32 v{vNB}, 0, v{vNB}, vcc")
    I(f"v_mov_b32 v{vT0}, v{vNB}")
    scan32(vT0)
    I("s_nop 0")
    I(f"v_readlane_b32 s{sT0}, v{vT0}, 31")
    I("s_nop 3")
    I(f"s_add_u32 s{sT0}, s{sT0}, 31")
    I(f"s_lshr_b32 s{sL}, s{sT0}, 5")
    I(f"v_subrev_u32 v{vT0}, s{sL}, v{vNB}")
    I(f"v_max_i32 v{vT1}, 0, v{vT0}")
    I(f"v_sub_u32 v{vT0}, 0, v{vT0}")
    I(f"v_max_i32 v{vT2}, 0, v{vT0}")
    I(f"v_cndmask_b32 v{vT2}, 0, v{vT2}, vcc")
    I(f"v_lshl_or_b32 v{vT3}, v{vT2}, 16, v{vT1}")
    scan32(vT3)
    I(f"v_and_b32 v{vEXI}, 0xffff, v{vT3}")
    I(f"v_lshrrev_b32 v{vCAPI}, 16, v{vT3}")
    I(f"v_sub_u32 v{vEX}, v{vEXI}, v{vT1}")
    I(f"v_sub_u32 v{vCAP}, v{vCAPI}, v{vT2}")
    I(f"v_readlane_b32 s{sT0}, v{vEXI}, 31")
    I(f"v_readlane_b32 s{sCAPB}, v{vCAP}, s{sB}")
    I(f"v_readlane_b32 s{sT1}, v{vT2}, s{sB}")
    I(f"v_readlane_b32 s{sT2}, v{vNB}, s{sB}")
    I(f"v_readlane_b32 s{sEXB}, v{vEX}, s{sB}")
    I(f"v_readlane_b32 s{sEXN}, v{vT1}, s{sB}")
    I(f"v_readlane_b32 s{sT3}, v{vCE}, s{sB}")
    I(f"v_mov_b32 v{vT0}, 0x7fffffff")
    I(f"v_cndmask_b32 v{vEXI}, v{vT0}, v{vEXI}, vcc")
    I(f"v_cndmask_b32 v{vCAPI}, v{vT0}, v{vCAPI}, vcc")
    I(f"s_sub_i32 s{sT0}, s{sT0}, s{sCAPB}")
    I(f"s_max_i32 s{sT0}, s{sT0}, 0")
    I(f"s_min_i32 s{sHC}, s{sT0}, s{sT1}")
    I(f"s_min_u32 s{sT2}, s{sT2}, s{sL}")
    I(f"s_add_u32 s{sT2}, s{sT2}, s{sHC}")
    I(f"s_sub_i32 s{sT0}, s{sT2}, s{sW}")
    I(f"s_add_i32 s{sT0}, s{sT0}, 3")
    I(f"s_ashr_i32 s{sNW}, s{sT0}, 2")
    I(f"v_lshlrev_b32 v{vT0}, 2, v{vLane}")
    I(f"v_add_u32 v{vT0}, s{sW}, v{vT0}")
    I(f"v_mov_b32 v{vT1}, s{sB}")
    I(f"v_subrev_u32 v{vT2}, s{sHC}, v{vT0}")
    I(f"v_mov_b32 v{vT3}, s{sT3}")
    I(f"v_add_u32 v{vT4}, s{sCAPB}, v{vT0}")
    I(f"v_cmp_gt_u32 s[{sM2}:{sM2+1}], s{sHC}, v{vT0}")
    I(f"s_mov_b32 s{sX0}, s{sCAPB}")
    I(f"s_add_u32 s{sXE}, s{sCAPB}, s{sHC}")
    E("L_piece:")
    I(f"s_cmp_ge_u32 s{sX0}, s{sXE}")
    I("s_cbranch_scc1 L_piece_done")
    I(f"v_cmp_ge_u32 vcc, s{sX0}, v{vEXI}")
    I("s_nop 3")
    I(f"s_bcnt1_i32_b64 s{sT0}, vcc")
    I(f"v_cmp_le_u32 vcc, s{sX0}, v{vT4}")
    I(f"v_readlane_b32 s{sT1}, v{vEX}, s{sT0}")
    I(f"v_readlane_b32 s{sX0}, v{vEXI}, s{sT0}")
    I(f"v_readlane_b32 s{sT3}, v{vCE}, s{sT0}")
    I("s_nop 3")
    I(f"s_and_b64 vcc, vcc, s[{sM2}:{sM2+1}]")
    I(f"s_sub_i32 s{sT1}, s{sL}, s{sT1}")
    I(f"v_mov_b32 v{vT5}, s{sT0}")
    I(f"v_add_u32 v{vT6}, s{sT1}, v{vT4}")
    I(f"v_mov_b32 v{vT7}, s{sT3}")
    I(f"v_cndmask_b32 v{vT1}, v{vT1}, v{vT5}, vcc")
    I(f"v_cndmask_b32 v{vT2}, v{vT2}, v{vT6}, vcc")
    I(f"v_cndmask_b32 v{vT3}, v{vT3}, v{vT7}, vcc")
    I("s_branch L_piece")
    E("L_piece_done:")
    I(f"v_cmp_gt_u32 vcc, s{sT2}, v{vT0}")
    I(f"v_and_b32 v{vT4}, 0xffff, v{vT3}")
    I(f"v_lshlrev_b32 v{vT5}, 4, v{vT2}")
    I(f"v_sub_u32 v{vT4}, v{vT4}, v{vT5}")
    I(f"v_min_i32 v{vT4}, 16, v{vT4}")
    I(f"v_cndmask_b32 v{vT4}, 0, v{vT4}, vcc")
    I(f"v_cndmask_b32 v{vT2}, 0, v{vT2}, vcc")
    I(f"v_and_b32 v{vT3}, 0x10000, v{vT3}")
    I(f"v_lshl_or_b32 v{vInfo}, v{vT4}, 8, v{vT1}")
    I(f"v_or_b32 v{vInfo}, v{vInfo}, v{vT3}")
    I(f"v_lshl_add_u32 v{vT5}, v{vT1}, 7, v{vT2}")
    I(f"v_lshlrev_b32 v{vT5}, 2, v{vT5}")
    I(f"v_add_u32 v{vT5}, {TAB_BASE}, v{vT5}")
    srd(sQ, sKA+0, sKA+1, 262144)
    stamp(3)
    I("s_waitcnt vmcnt(0) lgkmcnt(0)")
    I("s_barrier")
    I(f"s_cmp_eq_u32 s{sRole}, 0")
    I("s_cbranch_scc1 L_loader")
    I(f"v_mov_b32 v{vNeg}, 0xff7fffff")
    I(f"v_mov_b32 v{vM}, 0xff800000")
    I(f"v_mov_b32 v{vLs}, 0")
    for n in range(64):
        I(f"v_mov_b32 v{vAcc+n}, 0")
    I(f"s_mov_b32 s{sCSC}, 0x3db8aa3b")
    I(f"s_mov_b32 s{sPend}, 0")
    I(f"s_mov_b32 s{sCnt}, 0")
    I(f"s_mov_b32 s{sSeen}, 0")
    I(f"s_mov_b32 s{sRecBlock}, 0")
    I(f"s_mov_b32 s{sSpin2}, 0")
    srd(sO, sKA+10, sKA+11, 262144)
    srd(sD, sKA+12, sKA+13, 256)
    I(f"s_add_u32 s{sT0}, s2, s{sW}")
    I(f"s_cmp_lg_u32 s{sT0}, 0")
    I("s_cbranch_scc1 L_nononce")
    I(f"s_memrealtime s[{sM2}:{sM2+1}]")
    I(f"v_mov_b32 v{vT0}, 0")
    I("s_waitcnt lgkmcnt(0)")
    I(f"s_or_b32 s{sT0}, s{sM2}, 1")
    I(f"v_mov_b32 v{vT2}, s{sT0}")
    I(f"v_mov_b32 v{vT3}, s{sM2+1}")
    I("s_mov_b64 exec, 1")
    I(f"buffer_store_dwordx2 v[{vT2}:{vT3}], v{vT0}, s[{sD}:{sD+3}], 0 offen sc1")
    I("s_mov_b64 exec, -1")
    E("L_nononce:")
    I(f"v_and_b32 v0, 255, v0")
    I(f"v_lshrrev_b32 v{vT5}, 7, v0")
    I(f"v_and_b32 v{vT6}, 127, v0")
    I(f"v_lshrrev_b32 v{vT7}, 3, v{vT6}")
    I(f"v_and_b32 v{vT6}, 7, v{vT6}")
    I(f"v_lshlrev_b32 v{vT6}, 3, v{vT6}")
    I(f"v_lshl_add_u32 v{vT6}, v{vT7}, 7, v{vT6}")
    I(f"v_lshl_add_u32 v{vRO}, v{vT5}, 6, v{vT6}")
    I(f"v_lshlrev_b32 v{vT5}, 3, v{vT5}")
    I(f"v_add_u32 v{vRS}, 0x800, v{vT5}")
    I(f"v_lshlrev_b32 v{vT5}, 2, v{vT5}")
    I(f"v_add_u32 v{vRS2}, 0x800, v{vT5}")
    I(f"v_mov_b32 v{vR}, 0xff800000")
    I(f"v_mov_b32 v{vR+1}, 0")
    I(f"v_mov_b32 v{vR+2}, 0")
    I(f"v_mov_b32 v{vR+3}, 0")
    I(f"s_add_u32 s{sXE}, s{sEXB}, s{sEXN}")
    I(f"v_min_u32 v{vT0}, s{sXE}, v{vCAPI}")
    I(f"v_max_u32 v{vT1}, s{sEXB}, v{vCAP}")
    I(f"v_sub_u32 v{vT0}, v{vT0}, v{vT1}")
    I(f"v_cmp_gt_u32 vcc, 32, v{vLane}")
    I(f"v_lshlrev_b32 v{vFlagOff}, 3, v{vLane}")
    I(f"v_add_u32 v{vFlagOff}, s{sH}, v{vFlagOff}")
    I(f"v_lshlrev_b32 v{vFlagOff}, 7, v{vFlagOff}")
    I(f"v_cndmask_b32 v{vT0}, 0, v{vT0}, vcc")
    I(f"v_cmp_lt_i32 s[{sNeedM}:{sNeedM+1}], 0, v{vT0}")
    I(f"s_add_u32 s{sCAPE}, s{sCAPB}, s{sHC}")
    I(f"v_min_u32 v{vT0}, s{sCAPE}, v{vEXI}")
    I(f"v_max_u32 v{vT1}, s{sCAPB}, v{vEX}")
    I(f"v_sub_u32 v{vT0}, v{vT0}, v{vT1}")
    I(f"v_cndmask_b32 v{vT0}, 0, v{vT0}, vcc")
    I(f"v_cmp_lt_i32 vcc, 0, v{vT0}")
    I("s_nop 3")
    I(f"s_bcnt1_i32_b64 s{sNP}, vcc")
    I(f"s_cmp_eq_u32 s{sEXN}, 0")
    I(f"s_cselect_b32 s{sRecState}, 1, 0")
    if "norec" in XP or "noread" in XP:
        I(f"s_mov_b32 s{sRecState}, 1")
    stamp(4)
    I("s_barrier")
    I(f"s_cmp_eq_u32 s{sNW}, 0")
    I("s_cbranch_scc1 L_done")
    E("L_loop:")
    I(f"s_cmp_lg_u32 s{sRecState}, 0")
    I("s_cbranch_scc1 L_loop_go")
    I(f"s_add_u32 s{sT0}, s{sCnt}, 4")
    I(f"s_cmp_ge_u32 s{sT0}, s{sNW}")
    I("s_cbranch_scc1 L_rectry")
    E("L_loop_go:")
    compute(0, "a")
    I("s_cbranch_scc1 L_done")
    compute(1, "b")
    I("s_cbranch_scc0 L_loop")
    E("L_done:")
    stamp(5)
    I(f"s_cmp_eq_u32 s{sPend}, 0")
    I("s_cbranch_scc1 L_fin0")
    I("s_waitcnt vmcnt(0)")
    fire_flag()
    E("L_fin0:")
    I("s_nop 7")
    dump_partial()
    I(f"v_add_u32 v{vT3}, {TAB_BASE}, v{vRO}")
    I(f"v_add_u32 v{vT4}, {TAB_BASE}, v{vRS}")
    I("s_waitcnt lgkmcnt(0)")
    I("s_barrier")
    for w in range(4):
        I(f"ds_read_b64 v[{vRT+4*w}:{vRT+1+4*w}], v{vT4} offset:{w*4096}")
        I(f"ds_read_b64 v[{vRT+2+4*w}:{vRT+3+4*w}], v{vT3} offset:{w*4096}")
    I("s_waitcnt lgkmcnt(0)")
    I(f"v_max3_f32 v{vT0}, v{vRT}, v{vRT+4}, v{vRT+8}")
    I(f"v_max3_f32 v{vT0}, v{vT0}, v{vRT+12}, v{vR}")
    I(f"v_sub_f32 v{vT1}, v{vR}, v{vT0}")
    for w in range(4):
        I(f"v_sub_f32 v{vRT+4*w}, v{vRT+4*w}, v{vT0}")
    I(f"v_exp_f32 v{vT1}, v{vT1}")
    for w in range(4):
        I(f"v_exp_f32 v{vRT+4*w}, v{vRT+4*w}")
    I(f"v_mov_b32 v{vR}, v{vT0}")
    I(f"v_mul_f32 v{vR+1}, v{vR+1}, v{vT1}")
    I(f"v_mul_f32 v{vR+2}, v{vR+2}, v{vT1}")
    I(f"v_mul_f32 v{vR+3}, v{vR+3}, v{vT1}")
    for w in range(4):
        I(f"v_fmac_f32 v{vR+1}, v{vRT+1+4*w}, v{vRT+4*w}")
        I(f"v_fmac_f32 v{vR+2}, v{vRT+2+4*w}, v{vRT+4*w}")
        I(f"v_fmac_f32 v{vR+3}, v{vRT+3+4*w}, v{vRT+4*w}")
    stamp(6)
    I(f"s_mov_b32 s{sRecBlock}, 1")
    I(f"s_cmp_eq_u32 s{sRecState}, 0")
    I("s_cbranch_scc1 L_rectry")
    E("L_store:")
    I(f"v_rcp_f32 v{vT0}, v{vR+1}")
    I(f"s_lshl_b32 s{sT0}, s2, 10")
    I(f"v_lshlrev_b32 v{vT1}, 2, v0")
    I(f"v_mul_f32 v{vR+2}, v{vR+2}, v{vT0}")
    I(f"v_mul_f32 v{vR+3}, v{vR+3}, v{vT0}")
    I(f"v_cvt_pk_bf16_f32 v{vT2}, v{vR+2}, v{vR+3}")
    I(f"buffer_store_dword v{vT2}, v{vT1}, s[{sO}:{sO+3}], s{sT0} offen")
    stamp(7)
    stamp_store()
    E("L_end:")
    I("s_endpgm")
    for tag in ("a", "b"):
        rare_path(tag)
        flush_path(tag)
    record_block()
    loader()
    E('.section .rodata,"a"')
    E(".p2align 6")
    E(f".amdhsa_kernel {NAME}_kernel")
    E("  .amdhsa_next_free_vgpr 256")
    E("  .amdhsa_next_free_sgpr 102")
    E("  .amdhsa_accum_offset 256")
    E("  .amdhsa_group_segment_fixed_size 0")
    E("  .amdhsa_kernarg_size 64")
    E("  .amdhsa_user_sgpr_count 2")
    E("  .amdhsa_user_sgpr_kernarg_segment_ptr 1")
    E("  .amdhsa_system_sgpr_workgroup_id_x 1")
    E(".end_amdhsa_kernel")

gen()
path = sys.argv[1] if len(sys.argv) > 1 else f"cdna_kernels/{NAME}.s"
open(path, "w").write("\n".join(out) + "\n")
print("wrote", path, len(out), "lines")
```

```python
import sys, os
DIAG = os.environ.get("DIAG", "0") == "1"
WGN = int(os.environ.get("WGN", "2"))
GSZ = [5, 4, 4, 4]
WGN2 = int(os.environ.get("WGN2", "0"))
XT = int(os.environ.get("XT", "6"))
TILEG = int(os.environ.get("TILEG", "0"))
WIN = int(os.environ.get("WIN", "0"))
SLEEP = int(os.environ.get("SLEEP", "1"))
XP = os.environ.get("XP", "")
PARTIAL = "partial" in XP
PLAINN = "sc1nonce" not in XP

NAME = "standalone__paged_block_table_kv_pagedattention__sampling"

SLOT = 17408
WAVE_RING = 2 * SLOT
K_OFF = 1024
V_OFF = 9216
TAB_BASE = 4 * WAVE_RING
SYNC_BASE = TAB_BASE + 16384
ARR_BASE = SYNC_BASE + 64
LDS_BYTES = ARR_BASE + 128
FLAG_BASE = 0x10000000
RECSZ = 2304

out = []
def E(s=""):
    out.append(s)
def I(s):
    if "nords" in XP and (s.startswith("ds_read_b128 v[%d" % 0) or s.startswith("ds_read_b64_tr") or (s.startswith("ds_read_b128") and "offset" in s and INCOMP[0])):
        return
    if "nomfma" in XP and s.startswith("v_mfma"):
        return
    if "nostore" in XP and s.startswith("buffer_store_dwordx4") and "sc1" in s:
        return
    if "plainst" in XP and s.startswith("buffer_store_dwordx4") and "sc1" in s:
        s = s.replace(" sc1", "")
    if "ntst" in XP and s.startswith("buffer_store_dwordx4") and "sc1" in s:
        s = s.replace(" sc1", " sc1 nt")
    if "noatom" in XP and s.startswith("buffer_atomic"):
        return
    out.append("    " + s)
INCOMP = [False]

sVlo, sVhi, sHQ, sValid, sRole, sSo, sSum, sSeen, sNeed, sWave = 3, 4, 5, 6, 7, 8, 9, 10, 11, 12
sRecState, sRecBlock, sSpin2 = 13, 14, 15
sKA = 16
sK = 32
sV = 36
sQ = 40
sT = 44
sWS = 48
sO = 52
sD = 56
sB, sH, sW = 60, 61, 62
sL = 63
sWB = 64
sNW = 65
sI = 66
sCur, sNxt, sNew = 67, 68, 69
sPhys = 70
sT0, sT1, sT2, sT3 = 71, 72, 73, 74
sPend, sNP, sCAPE = 75, 76, 77
sScale = 78
sHC = 79
sCAPB = 80
sEXB, sEXN = 81, 82
sX0, sXE = 83, 84
sCnt = 85
sQoff = 86
sScr = 87
sNeedM = 88
sM2 = 90
sExp = 92
sRec = 93
sK0 = 94
sLen = 95
sJ = 96
sSpin = 97
sCSC = 98

vLane = 1
vT0, vT1, vT2, vT3, vT4, vT5, vT6, vT7 = 2, 3, 4, 5, 6, 7, 8, 9
vPhys, vInfo = 10, 11
vCAP, vCAPI = 12, 13
vEX, vEXI = 14, 15
vKoff = 16
vVoff = 24
vRT = 16
vQoff = 32
vQaddr = 33
vKaddr = 34
vVaddr = 38
vTok = 46
vM, vLs = 50, 51
vS = 52
vP = 56
vX = 58
vA0, vA1 = 62, 63
vQ = 64
vK = 96
vV = 128
vAcc = 160
vNeg = 224
vCE = 225
vNB = 226
vSync = 227
vR = 228
vRO, vRS = 232, 233
vFlagOff = 234
vRS2 = 235
vF = 236

def stamp(k):
    if not DIAG:
        return
    I("s_memrealtime s[100:101]")
    I("s_waitcnt lgkmcnt(0)")
    I(f"v_mov_b32 v{248+k}, s100")

def stamp_store():
    if not DIAG:
        return
    I(f"s_lshl_b32 s{sT0}, s2, 3")
    I(f"s_add_u32 s{sT0}, s{sT0}, s{sWave}")
    I(f"s_lshl_b32 s{sT0}, s{sT0}, 5")
    I(f"s_add_u32 s{sT0}, s{sT0}, 0x20000000")
    I(f"v_mov_b32 v{vT1}, 0")
    I("s_mov_b64 exec, 1")
    I(f"buffer_store_dwordx4 v[248:251], v{vT1}, s[{sWS}:{sWS+3}], s{sT0} offen")
    I(f"buffer_store_dwordx4 v[252:255], v{vT1}, s[{sWS}:{sWS+3}], s{sT0} offen offset:16")

def srd(s, lo, hi, nrec):
    I(f"s_mov_b32 s{s}, s{lo}")
    I(f"s_and_b32 s{s+1}, s{hi}, 0xffff")
    I(f"s_mov_b32 s{s+2}, {nrec}")
    I(f"s_mov_b32 s{s+3}, 0x00020000")

def scan32(v):
    for sh in (1, 2, 4, 8):
        I("s_nop 1")
        I(f"v_add_u32_dpp v{v}, v{v}, v{v} row_shr:{sh} row_mask:0xf bank_mask:0xf bound_ctrl:0")
    I("s_nop 1")
    I(f"v_add_u32_dpp v{v}, v{v}, v{v} row_bcast:15 row_mask:0xa bank_mask:0xf")

def xlane(op, v, ta, tb):
    I(f"v_mov_b32 v{ta}, v{v}")
    I(f"v_mov_b32 v{tb}, v{v}")
    I("s_nop 1")
    I(f"v_permlane32_swap_b32 v{ta}, v{tb}")
    I("s_nop 1")
    I(f"{op} v{v}, v{ta}, v{tb}")
    I(f"v_mov_b32 v{ta}, v{v}")
    I("s_nop 0")
    I(f"v_mov_b32 v{tb}, v{v}")
    I("s_nop 1")
    I(f"v_permlane16_swap_b32 v{ta}, v{tb}")
    I("s_nop 1")
    I(f"{op} v{v}, v{ta}, v{tb}")

lab = [0]
def wait_ge(off):
    lab[0] += 1
    n = lab[0]
    I(f"s_cmp_ge_i32 s{sSeen}, s{sNeed}")
    I(f"s_cbranch_scc1 L_wok{n}")
    E(f"L_wp{n}:")
    I(f"ds_read_b32 v{vT0}, v{vSync} offset:{off}")
    I("s_waitcnt lgkmcnt(0)")
    I(f"v_readfirstlane_b32 s{sSeen}, v{vT0}")
    I("s_nop 1")
    I(f"s_cmp_ge_i32 s{sSeen}, s{sNeed}")
    I(f"s_cbranch_scc1 L_wok{n}")
    I(f"s_sleep {SLEEP}")
    I(f"s_branch L_wp{n}")
    E(f"L_wok{n}:")

def signal(off, sval):
    I(f"v_mov_b32 v{vT1}, s{sval}")
    I("s_mov_b64 exec, 1")
    I(f"ds_write_b32 v{vSync}, v{vT1} offset:{off}")
    I("s_mov_b64 exec, -1")

def issue_group(g, first=False):
    if g == 0:
        I(f"v_readlane_b32 s{sNew}, v{vInfo}, s{sI}")
        I(f"v_readlane_b32 s{sPhys}, v{vPhys}, s{sI}")
        I(f"s_sub_u32 s{sSo}, s{sSum}, s{sSo}")
        I(f"s_lshl_b32 s{sNeed}, s{sI}, 1")
        I(f"s_sub_i32 s{sNeed}, s{sNeed}, 3")
        I(f"s_add_u32 s{sI}, s{sI}, 1")
        I(f"s_lshl_b32 s{sVlo}, s{sPhys}, 16")
        I(f"s_lshr_b32 s{sVhi}, s{sPhys}, 16")
        I(f"s_add_u32 s{sK}, s{sKA+2}, s{sVlo}")
        I(f"s_addc_u32 s{sK+1}, s{sKA+3}, s{sVhi}")
        I(f"s_bfe_u32 s{sT2}, s{sNew}, 0x50008")
        I(f"s_lshl_b32 s{sK+2}, s{sT2}, 12")
        I(f"s_and_b32 s{sT3}, s{sNew}, 31")
        I(f"s_lshl_b32 s{sT3}, s{sT3}, 13")
        I(f"s_add_u32 s{sQoff}, s{sT3}, s{sHQ}")
        if not first:
            wait_ge(4)
        I(f"s_mov_b32 m0, s{sSo}")
        I("s_nop 0")
        I(f"buffer_load_dwordx4 v{vQoff}, s[{sQ}:{sQ+3}], s{sQoff} offen lds")
        I(f"s_add_u32 m0, s{sSo}, {K_OFF}")
        I("s_nop 0")
        for n in range(4):
            I(f"buffer_load_dwordx4 v{vKoff+n}, s[{sK}:{sK+3}], 0 offen offset:{n*1024} nt lds")
    elif g == 1:
        I(f"s_add_u32 m0, s{sSo}, {K_OFF + 4096}")
        I("s_nop 0")
        for n in range(4, 8):
            I(f"buffer_load_dwordx4 v{vKoff+n}, s[{sK}:{sK+3}], 0 offen offset:{(n&3)*1024} nt lds")
    elif g == 2:
        I(f"s_add_u32 s{sNeed}, s{sNeed}, 1")
        if not first:
            wait_ge(4)
        I(f"s_add_u32 m0, s{sSo}, {V_OFF}")
        I(f"s_add_u32 s{sV}, s{sKA+4}, s{sVlo}")
        I(f"s_addc_u32 s{sV+1}, s{sKA+5}, s{sVhi}")
        I(f"s_mov_b32 s{sV+2}, s{sK+2}")
        for n in range(4):
            I(f"buffer_load_dwordx4 v{vVoff+n}, s[{sV}:{sV+3}], 0 offen offset:{n*1024} nt lds")
    else:
        I(f"s_add_u32 m0, s{sSo}, {V_OFF + 4096}")
        I("s_nop 0")
        for n in range(4, 8):
            I(f"buffer_load_dwordx4 v{vVoff+n}, s[{sV}:{sV+3}], 0 offen offset:{(n&3)*1024} nt lds")

def issue_one(p, first=False):
    if p == 0:
        I(f"v_readlane_b32 s{sNew}, v{vInfo}, s{sI}")
        I(f"v_readlane_b32 s{sPhys}, v{vPhys}, s{sI}")
        I(f"s_sub_u32 s{sSo}, s{sSum}, s{sSo}")
        I(f"s_lshl_b32 s{sNeed}, s{sI}, 1")
        I(f"s_sub_i32 s{sNeed}, s{sNeed}, 3")
        I(f"s_add_u32 s{sI}, s{sI}, 1")
        I(f"s_lshl_b32 s{sVlo}, s{sPhys}, 16")
        I(f"s_lshr_b32 s{sVhi}, s{sPhys}, 16")
        I(f"s_add_u32 s{sK}, s{sKA+2}, s{sVlo}")
        I(f"s_addc_u32 s{sK+1}, s{sKA+3}, s{sVhi}")
        I(f"s_bfe_u32 s{sT2}, s{sNew}, 0x50008")
        I(f"s_lshl_b32 s{sK+2}, s{sT2}, 12")
        I(f"s_and_b32 s{sT3}, s{sNew}, 31")
        I(f"s_lshl_b32 s{sT3}, s{sT3}, 13")
        I(f"s_add_u32 s{sQoff}, s{sT3}, s{sHQ}")
        if not first:
            wait_ge(4)
        I(f"s_mov_b32 m0, s{sSo}")
        I("s_nop 0")
        I(f"buffer_load_dwordx4 v{vQoff}, s[{sQ}:{sQ+3}], s{sQoff} offen lds")
        I(f"s_add_u32 m0, s{sSo}, {K_OFF}")
    elif p <= 8:
        n = p - 1
        I(f"buffer_load_dwordx4 v{vKoff+n}, s[{sK}:{sK+3}], 0 offen offset:{(n&3)*1024} nt lds")
        if n == 3:
            I(f"s_add_u32 m0, s{sSo}, {K_OFF + 4096}")
    else:
        n = p - 9
        if n == 0:
            I(f"s_add_u32 s{sNeed}, s{sNeed}, 1")
            if not first:
                wait_ge(4)
            I(f"s_add_u32 m0, s{sSo}, {V_OFF}")
            I(f"s_add_u32 s{sV}, s{sKA+4}, s{sVlo}")
            I(f"s_addc_u32 s{sV+1}, s{sKA+5}, s{sVhi}")
            I(f"s_mov_b32 s{sV+2}, s{sK+2}")
        I(f"buffer_load_dwordx4 v{vVoff+n}, s[{sV}:{sV+3}], 0 offen offset:{(n&3)*1024} nt lds")
        if n == 3:
            I(f"s_add_u32 m0, s{sSo}, {V_OFF + 4096}")

def loader():
    E("L_loader:")
    I(f"ds_read_b32 v{vPhys}, v{vT5}")
    I(f"s_mov_b32 s{sI}, 0")
    I(f"s_mov_b32 s{sCnt}, 0")
    I(f"s_lshl_b32 s{sNW}, s{sNW}, 1")
    I(f"s_lshl_b32 s{sHQ}, s{sH}, 10")
    I(f"s_lshl_b32 s{sSum}, s{sWB}, 1")
    I(f"s_add_u32 s{sSum}, s{sSum}, {SLOT}")
    I(f"s_add_u32 s{sSo}, s{sWB}, {SLOT}")
    I(f"s_mov_b32 s{sSeen}, 0")
    I("s_waitcnt lgkmcnt(0)")
    if WIN:
        for p in range(WIN):
            issue_one(p % 17, first=True)
            I("s_nop 0")
    elif TILEG:
        for t in range(TILEG):
            issue_group(2 * (t % 2), first=True)
            issue_group(2 * (t % 2) + 1, first=True)
    else:
        for g in range(WGN):
            issue_group(g % 4, first=True)
    stamp(4)
    I("s_barrier")
    I(f"s_cmp_eq_u32 s{sNW}, 0")
    I("s_cbranch_scc1 L_ld_done")
    E("L_ld_loop:")
    for q in range(17 if WIN else 0):
        I(f"s_waitcnt vmcnt({WIN-1})")
        if q in (8, 16):
            I(f"s_add_u32 s{sCnt}, s{sCnt}, 1")
            signal(0, sCnt)
        issue_one((q + WIN) % 17)
    for t in range(2 if TILEG else 0):
        allowed = sum([9, 8][(t + k) % 2] for k in range(1, TILEG))
        I(f"s_waitcnt vmcnt({allowed})")
        I(f"s_add_u32 s{sCnt}, s{sCnt}, 1")
        signal(0, sCnt)
        issue_group(2 * ((t + TILEG) % 2))
        issue_group(2 * ((t + TILEG) % 2) + 1)
    for g in range(0 if (WIN or TILEG) else 4):
        allowed = sum(GSZ[(g + k) % 4] for k in range(1, WGN))
        I(f"s_waitcnt vmcnt({allowed})")
        if g in (1, 3):
            I(f"s_add_u32 s{sCnt}, s{sCnt}, 1")
            signal(0, sCnt)
        issue_group((g + WGN) % 4)
    if DIAG and "half" in XP:
        I(f"s_cmp_lg_u32 s{sCnt}, 24")
        I("s_cbranch_scc1 L_nohalf")
        stamp(3)
        E("L_nohalf:")
    if WGN2:
        I(f"s_add_u32 s{sT0}, s{sCnt}, {2*XT}")
        I(f"s_cmp_lt_u32 s{sT0}, s{sNW}")
        I("s_cbranch_scc1 L_ld_loop")
        I(f"s_cmp_ge_u32 s{sCnt}, s{sNW}")
        I("s_cbranch_scc1 L_ld_done")
        for g in range(WGN, WGN2):
            issue_group(g % 4)
        E("L_ld_loop2:")
        for g in range(4):
            allowed = sum(GSZ[(g + k) % 4] for k in range(1, WGN2))
            I(f"s_waitcnt vmcnt({allowed})")
            if g in (1, 3):
                I(f"s_add_u32 s{sCnt}, s{sCnt}, 1")
                signal(0, sCnt)
            issue_group((g + WGN2) % 4)
        I(f"s_cmp_lt_u32 s{sCnt}, s{sNW}")
        I("s_cbranch_scc1 L_ld_loop2")
    else:
        I(f"s_cmp_lt_u32 s{sCnt}, s{sNW}")
        I("s_cbranch_scc1 L_ld_loop")
    E("L_ld_done:")
    stamp(5)
    stamp_store()
    I("s_endpgm")

def fire_flag():
    lab[0] += 1
    n = lab[0]
    I(f"v_mov_b32 v{vT0}, {SYNC_BASE + 8}")
    I(f"v_mov_b32 v{vT1}, 1")
    I(f"s_mov_b64 exec, 1")
    I(f"ds_add_rtn_u32 v{vT2}, v{vT0}, v{vT1}")
    I(f"v_mov_b32 v{vT0}, 0")
    I("s_waitcnt lgkmcnt(0)")
    I(f"v_readfirstlane_b32 s{sT0}, v{vT2}")
    I("s_nop 1")
    I(f"s_add_u32 s{sT0}, s{sT0}, 1")
    I(f"s_cmp_lg_u32 s{sT0}, s{sNP}")
    I(f"s_cbranch_scc1 L_ff{n}")
    I(f"s_mov_b32 s{sSpin}, 0")
    if "partial" not in XP:
        I("s_mov_b64 exec, 0xffff")
        I(f"v_mov_b32 v{vT0}, 0")
        I(f"v_lshlrev_b32 v{vT1}, 3, v{vLane}")
    I(f"s_lshl_b32 s{sT1}, s2, 7")
    I(f"s_add_u32 s{sT1}, s{sT1}, {FLAG_BASE}")
    if PLAINN:
        I(f"buffer_load_dwordx2 v[{vT2}:{vT3}], v{vT0}, s[{sD}:{sD+3}], 0 offen")
        I(f"s_branch L_fw{n}")
    E(f"L_fn{n}:")
    I(f"buffer_load_dwordx2 v[{vT2}:{vT3}], v{vT0}, s[{sD}:{sD+3}], 0 offen sc1")
    E(f"L_fw{n}:")
    I("s_waitcnt vmcnt(0)")
    I(f"v_readfirstlane_b32 s{sT0}, v{vT2}")
    I("s_nop 1")
    I(f"s_cmp_lg_u32 s{sT0}, 0")
    I(f"s_cbranch_scc1 L_fs{n}")
    I("s_sleep 8")
    I(f"s_add_u32 s{sSpin}, s{sSpin}, 1")
    I(f"s_cmp_lt_u32 s{sSpin}, 0x200000")
    I(f"s_cbranch_scc1 L_fn{n}")
    E(f"L_fs{n}:")
    I(f"buffer_store_dwordx2 v[{vT2}:{vT3}], v{vT0 if PARTIAL else vT1}, s[{sWS}:{sWS+3}], s{sT1} offen sc1")
    E(f"L_ff{n}:")
    I(f"s_mov_b64 exec, -1")
    I(f"s_mov_b32 s{sPend}, 0")

def dump_partial():
    lab[0] += 1
    n = lab[0]
    E(f"L_bw{n}:")
    I(f"ds_read_b32 v{vT0}, v{vSync} offset:12")
    I("s_waitcnt lgkmcnt(0)")
    I(f"v_readfirstlane_b32 s{sT0}, v{vT0}")
    I("s_nop 1")
    I(f"s_cmp_eq_u32 s{sT0}, 0")
    I(f"s_cbranch_scc1 L_bo{n}")
    I("s_sleep 1")
    I(f"s_branch L_bw{n}")
    E(f"L_bo{n}:")
    xlane("v_add_f32", vLs, vT0, vT1)
    I(f"v_lshlrev_b32 v{vT2}, 2, v{vLane}")
    I(f"v_add_u32 v{vT2}, s{sScr}, v{vT2}")
    I(f"v_add_u32 v{vT3}, 0x400, v{vT2}")
    I(f"v_lshlrev_b32 v{vT4}, 3, v{vLane}")
    I(f"v_add_u32 v{vT4}, s{sScr}, v{vT4}")
    I(f"s_mov_b64 exec, 0xffff")
    for n in range(16):
        a = vT2 if n < 8 else vT3
        o = (n & 7) * 32
        I(f"ds_write2_b32 v{a}, v{vAcc+4*n}, v{vAcc+4*n+1} offset0:{o} offset1:{o+16}")
    I(f"s_mov_b64 exec, 3")
    I(f"ds_write_b64 v{vT4}, v[{vM}:{vM+1}] offset:2048")
    I(f"s_mov_b64 exec, -1")

def compute(slot, tag):
    INCOMP[0] = True
    compute_(slot, tag)
    INCOMP[0] = False

def compute_(slot, tag):
    so = slot * SLOT
    I(f"s_add_u32 s{sT0}, s{sCnt}, 1")
    I(f"v_readlane_b32 s{sCur}, v{vInfo}, s{sCnt}")
    I(f"v_readlane_b32 s{sNxt}, v{vInfo}, s{sT0}")
    I(f"s_lshl_b32 s{sNeed}, s{sCnt}, 1")
    I(f"s_add_u32 s{sNeed}, s{sNeed}, 1")
    wait_ge(0)
    for n in range(8):
        I(f"ds_read_b128 v[{vQ+4*n}:{vQ+4*n+3}], v{vQaddr} offset:{so + n*64}")
        I(f"ds_read_b128 v[{vK+4*n}:{vK+4*n+3}], v{vKaddr+(n&3)} offset:{so + (n>>2)*256}")
    I(f"s_bitcmp1_b32 s{sCur}, 16")
    I(f"s_cselect_b32 s{sScale}, 0, s{sCSC}")
    I(f"s_bfe_u32 s{sValid}, s{sCur}, 0x50008")
    for n in range(8):
        I(f"s_waitcnt lgkmcnt({14-2*n})")
        c = "0" if n == 0 else f"v[{vS}:{vS+3}]"
        I(f"v_mfma_f32_16x16x32_bf16 v[{vS}:{vS+3}], v[{vK+4*n}:{vK+4*n+3}], v[{vQ+4*n}:{vQ+4*n+3}], {c}")
    signal(4, sNeed)
    I(f"s_add_u32 s{sNeed}, s{sNeed}, 1")
    I(f"s_cmp_eq_u32 s{sPend}, 0")
    I(f"s_cbranch_scc1 L_nopend_{tag}")
    I("s_waitcnt vmcnt(0)")
    fire_flag()
    E(f"L_nopend_{tag}:")
    I(f"s_cmp_eq_u32 s{sValid}, 16")
    I("s_nop 1")
    I(f"s_cbranch_scc1 L_full_{tag}")
    for r in range(4):
        I(f"v_cmp_gt_u32 vcc, s{sValid}, v{vTok+r}")
        I("s_nop 1")
        I(f"v_cndmask_b32 v{vS+r}, v{vNeg}, v{vS+r}, vcc")
    E(f"L_full_{tag}:")
    I(f"v_max3_f32 v{vX}, v{vS}, v{vS+1}, v{vS+2}")
    I(f"v_max_f32 v{vX}, v{vX}, v{vS+3}")
    I(f"v_mul_f32 v{vX}, s{sScale}, v{vX}")
    I(f"v_cmp_gt_f32 vcc, v{vX}, v{vM}")
    I("s_nop 1")
    I(f"s_cbranch_vccnz L_rare_{tag}")
    E(f"L_back_{tag}:")
    for r in range(4):
        I(f"v_fma_f32 v{vX+r}, v{vS+r}, s{sScale}, -v{vM}")
    for r in range(4):
        I(f"v_exp_f32 v{vX+r}, v{vX+r}")
    I("s_nop 0")
    I(f"v_cvt_pk_bf16_f32 v{vP}, v{vX}, v{vX+1}")
    I(f"v_cvt_pk_bf16_f32 v{vP+1}, v{vX+2}, v{vX+3}")
    I(f"v_add_f32 v{vX}, v{vX}, v{vX+1}")
    I(f"v_add_f32 v{vX+2}, v{vX+2}, v{vX+3}")
    I(f"v_add_f32 v{vLs}, v{vLs}, v{vX}")
    I(f"v_add_f32 v{vLs}, v{vLs}, v{vX+2}")
    wait_ge(0)
    for n in range(16):
        I(f"ds_read_b64_tr_b16 v[{vV+2*n}:{vV+2*n+1}], v{vVaddr+(n&7)} offset:{so + (n>>3)*256}")
    for n in range(16):
        I(f"s_waitcnt lgkmcnt({15-n})")
        I(f"v_mfma_f32_16x16x16_bf16 v[{vAcc+4*n}:{vAcc+4*n+3}], v[{vP}:{vP+1}], v[{vV+2*n}:{vV+2*n+1}], v[{vAcc+4*n}:{vAcc+4*n+3}]")
    signal(4, sNeed)
    I(f"s_xor_b32 s{sT0}, s{sCur}, s{sNxt}")
    I(f"s_and_b32 s{sT0}, s{sT0}, 31")
    if "norec" not in XP:
        I(f"s_cbranch_scc1 L_flush_{tag}")
    E(f"L_noflush_{tag}:")
    I(f"s_add_u32 s{sCnt}, s{sCnt}, 1")
    I(f"s_cmp_ge_u32 s{sCnt}, s{sNW}")

def rare_path(tag):
    E(f"L_rare_{tag}:")
    I(f"v_max_f32 v{vX}, v{vX}, v{vM}")
    xlane("v_max_f32", vX, vX+1, vX+2)
    I(f"v_sub_f32 v{vX+1}, v{vM}, v{vX}")
    I(f"v_exp_f32 v{vX+1}, v{vX+1}")
    I(f"v_mov_b32 v{vM}, v{vX}")
    I("s_nop 0")
    I(f"v_mul_f32 v{vLs}, v{vLs}, v{vX+1}")
    I(f"v_mov_b32_dpp v{vA0}, v{vX+1} quad_perm:[0,0,0,0] row_mask:0xf bank_mask:0xf")
    I(f"v_mov_b32_dpp v{vA1}, v{vX+1} quad_perm:[1,1,1,1] row_mask:0xf bank_mask:0xf")
    for n in range(16):
        I(f"v_mul_f32 v{vAcc+4*n}, v{vA0}, v{vAcc+4*n}")
        I(f"v_mul_f32 v{vAcc+4*n+1}, v{vA1}, v{vAcc+4*n+1}")
    I(f"s_branch L_back_{tag}")

def flush_path(tag):
    E(f"L_flush_{tag}:")
    I(f"s_cmp_eq_u32 s{sPend}, 0")
    I(f"s_cbranch_scc1 L_fl_np_{tag}")
    I("s_waitcnt vmcnt(0)")
    fire_flag()
    E(f"L_fl_np_{tag}:")
    I("s_nop 7")
    dump_partial()
    I(f"s_and_b32 s{sJ}, s{sCur}, 31")
    I(f"v_mov_b32 v{vT1}, 1")
    I(f"s_lshl_b32 s{sT0}, s{sJ}, 2")
    I(f"s_add_u32 s{sT0}, s{sT0}, {ARR_BASE}")
    I(f"v_mov_b32 v{vT0}, s{sT0}")
    I(f"v_readlane_b32 s{sT1}, v{vEX}, s{sJ}")
    I(f"v_readlane_b32 s{sT2}, v{vEXI}, s{sJ}")
    I("s_mov_b64 exec, 1")
    I(f"ds_write_b32 v{vSync}, v{vT1} offset:12")
    I("s_waitcnt lgkmcnt(0)")
    I(f"ds_add_rtn_u32 v{vT2}, v{vT0}, v{vT1}")
    I("s_mov_b64 exec, -1")
    I(f"s_max_u32 s{sT1}, s{sT1}, s{sCAPB}")
    I(f"s_min_u32 s{sT2}, s{sT2}, s{sCAPE}")
    I(f"s_sub_u32 s{sLen}, s{sT2}, s{sT1}")
    I(f"s_sub_u32 s{sK0}, s{sT1}, s{sCAPB}")
    I(f"s_min_u32 s{sT3}, s{sLen}, 4")
    I(f"v_mov_b32 v{vM}, 0xff800000")
    I("s_waitcnt lgkmcnt(0)")
    I(f"v_readfirstlane_b32 s{sT0}, v{vT2}")
    I("s_nop 1")
    I(f"s_add_u32 s{sT0}, s{sT0}, 1")
    I(f"s_cmp_lg_u32 s{sT0}, s{sT3}")
    I(f"s_cbranch_scc1 L_noflush_{tag}")
    I(f"v_lshrrev_b32 v{vT3}, 2, v{vLane}")
    I(f"v_and_b32 v{vT3}, 1, v{vT3}")
    I(f"v_lshlrev_b32 v{vT3}, 3, v{vT3}")
    I(f"v_add_u32 v{vT3}, {TAB_BASE + 2048}, v{vT3}")
    I(f"v_add_u32 v{vT4}, {TAB_BASE}, v{vQoff}")
    I(f"v_mov_b32 v{vF+8}, 0xff800000")
    I(f"v_mov_b32 v{vF+9}, 0")
    for i in range(8):
        I(f"v_mov_b32 v{vF+i}, 0")
    I(f"v_mov_b32 v{vT5}, {SYNC_BASE}")
    I(f"v_mov_b32 v{vT6}, 0")
    for w in range(4):
        I(f"s_sub_u32 s{sT0}, {w}, s{sK0}")
        I(f"s_and_b32 s{sT0}, s{sT0}, 3")
        I(f"s_cmp_ge_u32 s{sT0}, s{sLen}")
        I(f"s_cbranch_scc1 L_fm{w}_{tag}")
        I(f"ds_read_b64 v[{vRT+8}:{vRT+9}], v{vT3} offset:{w*4096}")
        I(f"ds_read_b128 v[{vRT}:{vRT+3}], v{vT4} offset:{w*4096}")
        I(f"ds_read_b128 v[{vRT+4}:{vRT+7}], v{vT4} offset:{w*4096+1024}")
        I("s_waitcnt lgkmcnt(0)")
        I("s_mov_b64 exec, 1")
        I(f"ds_write_b32 v{vT5}, v{vT6} offset:{w*16+12}")
        I("s_mov_b64 exec, -1")
        I(f"v_max_f32 v{vT0}, v{vF+8}, v{vRT+8}")
        I(f"v_sub_f32 v{vT1}, v{vF+8}, v{vT0}")
        I(f"v_sub_f32 v{vT2}, v{vRT+8}, v{vT0}")
        I(f"v_exp_f32 v{vT1}, v{vT1}")
        I(f"v_exp_f32 v{vT2}, v{vT2}")
        I(f"v_mov_b32 v{vF+8}, v{vT0}")
        I(f"v_mul_f32 v{vF+9}, v{vF+9}, v{vT1}")
        I(f"v_fmac_f32 v{vF+9}, v{vRT+9}, v{vT2}")
        for i in range(8):
            I(f"v_mul_f32 v{vF+i}, v{vF+i}, v{vT1}")
            I(f"v_fmac_f32 v{vF+i}, v{vRT+i}, v{vT2}")
        E(f"L_fm{w}_{tag}:")
    I(f"s_lshl_b32 s{sT1}, s{sJ}, 5")
    I(f"s_add_u32 s{sT1}, s{sT1}, s{sB}")
    I(f"s_lshl_b32 s{sT1}, s{sT1}, 3")
    I(f"s_add_u32 s{sT1}, s{sT1}, s{sH}")
    I(f"s_mul_i32 s{sRec}, s{sT1}, {RECSZ}")
    I(f"v_lshlrev_b32 v{vT0}, 3, v{vLane}")
    I(f"buffer_store_dwordx4 v[{vF}:{vF+3}], v{vQoff}, s[{sWS}:{sWS+3}], s{sRec} offen sc1")
    I(f"buffer_store_dwordx4 v[{vF+4}:{vF+7}], v{vQoff}, s[{sWS}:{sWS+3}], s{sRec} offen offset:1024 sc1")
    I(f"s_mov_b64 exec, 0xffff")
    I(f"buffer_store_dwordx2 v[{vF+8}:{vF+9}], v{vT0}, s[{sWS}:{sWS+3}], s{sRec} offen offset:2048 sc1")
    I(f"s_mov_b64 exec, -1")
    I(f"s_mov_b32 s{sPend}, 1")
    I(f"s_branch L_noflush_{tag}")

def merge_one(m, l, o0, o1):
    M, Ls, A0, A1 = vR, vR+1, vR+2, vR+3
    I(f"v_max_f32 v{vT0}, v{M}, v{m}")
    I(f"v_sub_f32 v{vT1}, v{M}, v{vT0}")
    I(f"v_sub_f32 v{vT2}, v{m}, v{vT0}")
    I(f"v_exp_f32 v{vT1}, v{vT1}")
    I(f"v_exp_f32 v{vT2}, v{vT2}")
    I(f"v_mov_b32 v{M}, v{vT0}")
    I(f"v_mul_f32 v{Ls}, v{Ls}, v{vT1}")
    I(f"v_mul_f32 v{A0}, v{A0}, v{vT1}")
    I(f"v_mul_f32 v{A1}, v{A1}, v{vT1}")
    I(f"v_fmac_f32 v{Ls}, v{l}, v{vT2}")
    I(f"v_fmac_f32 v{A0}, v{o0}, v{vT2}")
    I(f"v_fmac_f32 v{A1}, v{o1}, v{vT2}")

def record_block():
    E("L_rectry:")
    I(f"s_mov_b32 s{sSpin}, 0")
    E("L_poll:")
    I(f"v_mov_b32 v{vT0}, 0")
    I(f"s_mov_b32 s{sT0}, {FLAG_BASE}")
    if PLAINN:
        I(f"s_cmp_lg_u32 s{sSpin2}, 0")
        I("s_cbranch_scc1 L_pn1")
        I(f"buffer_load_dwordx2 v[{vT2}:{vT3}], v{vT0}, s[{sD}:{sD+3}], 0 offen")
        I("s_branch L_pn2")
        E("L_pn1:")
    I(f"buffer_load_dwordx2 v[{vT2}:{vT3}], v{vT0}, s[{sD}:{sD+3}], 0 offen sc1")
    E("L_pn2:")
    I(f"s_mov_b32 s{sSpin2}, 1")
    I(f"s_mov_b64 exec, s[{sNeedM}:{sNeedM+1}]")
    I(f"buffer_load_dwordx2 v[{vT4}:{vT5}], v{vFlagOff}, s[{sWS}:{sWS+3}], s{sT0} offen sc1")
    I("s_waitcnt vmcnt(0)")
    I(f"v_cmp_ne_u64 vcc, v[{vT2}:{vT3}], v[{vT4}:{vT5}]")
    I(f"v_cmp_eq_u32 s[{sM2}:{sM2+1}], 0, v{vT2}")
    I("s_mov_b64 exec, -1")
    I("s_nop 2")
    I(f"s_or_b64 vcc, vcc, s[{sM2}:{sM2+1}]")
    I(f"s_cmp_eq_u64 vcc, 0")
    I("s_cbranch_scc1 L_ready")
    I(f"s_cmp_eq_u32 s{sRecBlock}, 0")
    I("s_cbranch_scc1 L_loop_go")
    I("s_sleep 8")
    I(f"s_add_u32 s{sSpin}, s{sSpin}, 1")
    I(f"s_cmp_lt_u32 s{sSpin}, 0x200000")
    I("s_cbranch_scc1 L_poll")
    E("L_ready:")
    I(f"s_mov_b32 s{sX0}, s{sEXB}")
    I(f"s_add_u32 s{sXE}, s{sEXB}, s{sEXN}")
    E("L_rec:")
    I(f"v_cmp_ge_u32 vcc, s{sX0}, v{vCAPI}")
    I("s_nop 3")
    I(f"s_bcnt1_i32_b64 s{sJ}, vcc")
    I("s_nop 0")
    I(f"v_readlane_b32 s{sT0}, v{vCAP}, s{sJ}")
    I(f"v_readlane_b32 s{sT1}, v{vCAPI}, s{sJ}")
    I("s_nop 3")
    I(f"s_min_u32 s{sX0}, s{sT1}, s{sXE}")
    I(f"s_lshl_b32 s{sT0}, s{sB}, 5")
    I(f"s_add_u32 s{sT0}, s{sT0}, s{sJ}")
    I(f"s_lshl_b32 s{sT0}, s{sT0}, 3")
    I(f"s_add_u32 s{sT0}, s{sT0}, s{sH}")
    I(f"s_mul_i32 s{sRec}, s{sT0}, {RECSZ}")
    I(f"buffer_load_dwordx2 v[{vRT}:{vRT+1}], v{vRS2}, s[{sWS}:{sWS+3}], s{sRec} offen sc1")
    I(f"buffer_load_dwordx2 v[{vRT+2}:{vRT+3}], v{vRO}, s[{sWS}:{sWS+3}], s{sRec} offen sc1")
    I("s_waitcnt vmcnt(0)")
    merge_one(vRT, vRT+1, vRT+2, vRT+3)
    I(f"s_cmp_lt_u32 s{sX0}, s{sXE}")
    I("s_cbranch_scc1 L_rec")
    I(f"s_mov_b32 s{sRecState}, 1")
    I(f"s_cmp_eq_u32 s{sRecBlock}, 0")
    I("s_cbranch_scc1 L_loop_go")
    I("s_branch L_store")

def gen():
    E("; paged attention decode: B=32 Hq=16 Hkv=8 D=256 block=16 tokens, 128 blocks/seq")
    E(f"; @launch grid=(256,1,1) block=(512,1,1) lds={LDS_BYTES}")
    E('.amdgcn_target "amdgcn-amd-amdhsa--gfx950"')
    E(".text")
    E(f".globl {NAME}_kernel")
    E(".p2align 8")
    E(f".type {NAME}_kernel,@function")
    E(f"{NAME}_kernel:")
    I("s_cmp_ge_u32 s2, 256")
    I("s_cbranch_scc1 L_end")
    stamp(0)
    I(f"s_load_dwordx16 s[{sKA}:{sKA+15}], s[0:1], 0")
    I(f"v_and_b32 v{vLane}, 63, v0")
    I(f"v_lshrrev_b32 v{vT0}, 6, v0")
    I(f"s_lshr_b32 s{sB}, s2, 3")
    I(f"s_and_b32 s{sH}, s2, 7")
    I(f"v_readfirstlane_b32 s{sWave}, v{vT0}")
    if "nocpf" not in XP:
        I(f"s_getpc_b64 s[{sM2}:{sM2+1}]")
        I(f"v_lshlrev_b32 v{vT1}, 7, v0")
        I(f"v_min_u32 v{vT1}, L_code_end-{NAME}_kernel-128, v{vT1}")
        I(f"s_cmp_gt_u32 s{sWave}, 1")
        I("s_cbranch_scc1 L_nocpf")
        I(f"global_load_dword v246, v{vT1}, s[{sM2}:{sM2+1}]")
        E("L_nocpf:")
    I(f"v_lshlrev_b32 v{vQoff}, 4, v{vLane}")
    I(f"v_lshlrev_b32 v{vT7}, 2, v{vLane}")
    I(f"s_and_b32 s{sW}, s{sWave}, 3")
    I(f"s_lshr_b32 s{sRole}, s{sWave}, 2")
    I(f"s_mul_i32 s{sWB}, s{sW}, {WAVE_RING}")
    I(f"s_lshl_b32 s{sT0}, s{sW}, 12")
    I(f"s_add_u32 s{sScr}, s{sT0}, {TAB_BASE}")
    I(f"s_lshl_b32 s{sT0}, s{sWave}, 11")
    I(f"v_add_u32 v{vT6}, s{sT0}, v{vQoff}")
    I(f"s_add_u32 m0, s{sT0}, {TAB_BASE}")
    I(f"s_lshl_b32 s{sT1}, s{sW}, 4")
    I(f"s_add_u32 s{sT1}, s{sT1}, {SYNC_BASE}")
    I(f"v_mov_b32 v{vSync}, s{sT1}")
    I("s_waitcnt lgkmcnt(0)")
    stamp(1)
    srd(sT, sKA+8, sKA+9, 128)
    I(f"buffer_load_dword v{vCE}, v{vT7}, s[{sT}:{sT+3}], 0 offen")
    srd(sQ, sKA+6, sKA+7, 16384)
    for n in range(2):
        I(f"buffer_load_dwordx4 v{vT6}, s[{sQ}:{sQ+3}], 0 offen offset:{n*1024} lds")
    srd(sWS, sKA+14, sKA+15, 1074790400)
    I(f"v_mov_b32 v{vT0}, 0")
    I(f"v_mov_b32 v{vT1}, 0")
    I(f"ds_write_b64 v{vSync}, v[{vT0}:{vT1}]")
    I(f"ds_write_b64 v{vSync}, v[{vT0}:{vT1}] offset:8")
    I(f"v_and_b32 v{vT2}, 31, v{vLane}")
    I(f"v_lshlrev_b32 v{vT2}, 2, v{vT2}")
    I(f"v_add_u32 v{vT2}, {ARR_BASE}, v{vT2}")
    I(f"ds_write_b32 v{vT2}, v{vT0}")
    I(f"s_cmp_eq_u32 s{sRole}, 0")
    I("s_cbranch_scc1 L_lpre")
    I("s_waitcnt vmcnt(0) lgkmcnt(0)")
    I("s_barrier")
    I("s_branch L_pre_cons")
    E("L_lpre:")
    I(f"v_lshrrev_b32 v{vT0}, 5, v{vLane}")
    I(f"v_and_b32 v{vT1}, 31, v{vLane}")
    I(f"s_lshl_b32 s{sT0}, s{sH}, 9")
    I(f"v_lshlrev_b32 v{vT2}, 12, v{vT0}")
    I(f"v_add_u32 v{vT2}, s{sT0}, v{vT2}")
    I(f"v_xor_b32 v{vT3}, v{vT1}, v{vT0}")
    I(f"v_lshlrev_b32 v{vT4}, 1, v{vT0}")
    I(f"v_xor_b32 v{vT4}, v{vT1}, v{vT4}")
    for n in range(8):
        I(f"v_xor_b32 v{vT5}, {2*n}, v{vT3}")
        I(f"v_lshl_add_u32 v{vT5}, v{vT5}, 4, v{vT2}")
        I(f"v_add_u32 v{vKoff+n}, {n*8192-(n&3)*1024}, v{vT5}")
        I(f"v_xor_b32 v{vT5}, {((2*n)&7)<<1}, v{vT4}")
        I(f"v_lshl_add_u32 v{vT5}, v{vT5}, 4, v{vT2}")
        I(f"v_add_u32 v{vVoff+n}, {n*8192-(n&3)*1024}, v{vT5}")
    I(f"s_mov_b32 s{sK+3}, 0x00020000")
    I(f"s_mov_b32 s{sV+3}, 0x00020000")
    E("L_sched:")
    I(f"v_cmp_gt_u32 vcc, 32, v{vLane}")
    I("s_waitcnt vmcnt(2)")
    stamp(2)
    I(f"v_cmp_gt_i32 s[{sM2}:{sM2+1}], 1, v{vCE}")
    I(f"v_min_i32 v{vT0}, 0x800, v{vCE}")
    I(f"v_mov_b32 v{vT1}, 0x800")
    I(f"v_cndmask_b32 v{vCE}, v{vT0}, v{vT1}, s[{sM2}:{sM2+1}]")
    I(f"v_cndmask_b32 v{vT7}, 0, 1, s[{sM2}:{sM2+1}]")
    I(f"v_add_u32 v{vNB}, 15, v{vCE}")
    I(f"v_lshrrev_b32 v{vNB}, 4, v{vNB}")
    I(f"v_lshl_or_b32 v{vCE}, v{vT7}, 16, v{vCE}")
    I(f"v_cndmask_b32 v{vNB}, 0, v{vNB}, vcc")
    I(f"v_mov_b32 v{vT0}, v{vNB}")
    scan32(vT0)
    I("s_nop 0")
    I(f"v_readlane_b32 s{sT0}, v{vT0}, 31")
    I("s_nop 3")
    I(f"s_add_u32 s{sT0}, s{sT0}, 31")
    I(f"s_lshr_b32 s{sL}, s{sT0}, 5")
    I(f"v_subrev_u32 v{vT0}, s{sL}, v{vNB}")
    I(f"v_max_i32 v{vT1}, 0, v{vT0}")
    I(f"v_sub_u32 v{vT0}, 0, v{vT0}")
    I(f"v_max_i32 v{vT2}, 0, v{vT0}")
    I(f"v_cndmask_b32 v{vT2}, 0, v{vT2}, vcc")
    I(f"v_lshl_or_b32 v{vT3}, v{vT2}, 16, v{vT1}")
    scan32(vT3)
    I(f"v_and_b32 v{vEXI}, 0xffff, v{vT3}")
    I(f"v_lshrrev_b32 v{vCAPI}, 16, v{vT3}")
    I(f"v_sub_u32 v{vEX}, v{vEXI}, v{vT1}")
    I(f"v_sub_u32 v{vCAP}, v{vCAPI}, v{vT2}")
    I(f"v_readlane_b32 s{sT0}, v{vEXI}, 31")
    I(f"v_readlane_b32 s{sCAPB}, v{vCAP}, s{sB}")
    I(f"v_readlane_b32 s{sT1}, v{vT2}, s{sB}")
    I(f"v_readlane_b32 s{sT2}, v{vNB}, s{sB}")
    I(f"v_readlane_b32 s{sEXB}, v{vEX}, s{sB}")
    I(f"v_readlane_b32 s{sEXN}, v{vT1}, s{sB}")
    I(f"v_readlane_b32 s{sT3}, v{vCE}, s{sB}")
    I(f"v_mov_b32 v{vT0}, 0x7fffffff")
    I(f"v_cndmask_b32 v{vEXI}, v{vT0}, v{vEXI}, vcc")
    I(f"v_cndmask_b32 v{vCAPI}, v{vT0}, v{vCAPI}, vcc")
    I(f"s_sub_i32 s{sT0}, s{sT0}, s{sCAPB}")
    I(f"s_max_i32 s{sT0}, s{sT0}, 0")
    I(f"s_min_i32 s{sHC}, s{sT0}, s{sT1}")
    I(f"s_min_u32 s{sT2}, s{sT2}, s{sL}")
    I(f"s_add_u32 s{sT2}, s{sT2}, s{sHC}")
    I(f"s_sub_i32 s{sT0}, s{sT2}, s{sW}")
    I(f"s_add_i32 s{sT0}, s{sT0}, 3")
    I(f"s_ashr_i32 s{sNW}, s{sT0}, 2")
    I(f"v_lshlrev_b32 v{vT0}, 2, v{vLane}")
    I(f"v_add_u32 v{vT0}, s{sW}, v{vT0}")
    I(f"v_mov_b32 v{vT1}, s{sB}")
    I(f"v_subrev_u32 v{vT2}, s{sHC}, v{vT0}")
    I(f"v_mov_b32 v{vT3}, s{sT3}")
    I(f"v_add_u32 v{vT4}, s{sCAPB}, v{vT0}")
    I(f"v_cmp_gt_u32 s[{sM2}:{sM2+1}], s{sHC}, v{vT0}")
    I(f"s_mov_b32 s{sX0}, s{sCAPB}")
    I(f"s_add_u32 s{sXE}, s{sCAPB}, s{sHC}")
    E("L_piece:")
    I(f"s_cmp_ge_u32 s{sX0}, s{sXE}")
    I("s_cbranch_scc1 L_piece_done")
    I(f"v_cmp_ge_u32 vcc, s{sX0}, v{vEXI}")
    I("s_nop 3")
    I(f"s_bcnt1_i32_b64 s{sT0}, vcc")
    I(f"v_cmp_le_u32 vcc, s{sX0}, v{vT4}")
    I(f"v_readlane_b32 s{sT1}, v{vEX}, s{sT0}")
    I(f"v_readlane_b32 s{sX0}, v{vEXI}, s{sT0}")
    I(f"v_readlane_b32 s{sT3}, v{vCE}, s{sT0}")
    I("s_nop 3")
    I(f"s_and_b64 vcc, vcc, s[{sM2}:{sM2+1}]")
    I(f"s_sub_i32 s{sT1}, s{sL}, s{sT1}")
    I(f"v_mov_b32 v{vT5}, s{sT0}")
    I(f"v_add_u32 v{vT6}, s{sT1}, v{vT4}")
    I(f"v_mov_b32 v{vT7}, s{sT3}")
    I(f"v_cndmask_b32 v{vT1}, v{vT1}, v{vT5}, vcc")
    I(f"v_cndmask_b32 v{vT2}, v{vT2}, v{vT6}, vcc")
    I(f"v_cndmask_b32 v{vT3}, v{vT3}, v{vT7}, vcc")
    I("s_branch L_piece")
    E("L_piece_done:")
    I(f"v_cmp_gt_u32 vcc, s{sT2}, v{vT0}")
    I(f"v_and_b32 v{vT4}, 0xffff, v{vT3}")
    I(f"v_lshlrev_b32 v{vT5}, 4, v{vT2}")
    I(f"v_sub_u32 v{vT4}, v{vT4}, v{vT5}")
    I(f"v_min_i32 v{vT4}, 16, v{vT4}")
    I(f"v_cndmask_b32 v{vT4}, 0, v{vT4}, vcc")
    I(f"v_cndmask_b32 v{vT2}, 0, v{vT2}, vcc")
    I(f"v_and_b32 v{vT3}, 0x10000, v{vT3}")
    I(f"v_lshl_or_b32 v{vInfo}, v{vT4}, 8, v{vT1}")
    I(f"v_or_b32 v{vInfo}, v{vInfo}, v{vT3}")
    I(f"v_lshl_add_u32 v{vT5}, v{vT1}, 7, v{vT2}")
    I(f"v_lshlrev_b32 v{vT5}, 2, v{vT5}")
    I(f"v_add_u32 v{vT5}, {TAB_BASE}, v{vT5}")
    srd(sQ, sKA+0, sKA+1, 262144)
    stamp(3)
    I(f"s_cmp_lg_u32 s{sRole}, 0")
    I("s_cbranch_scc1 L_cons_main")
    I("s_waitcnt vmcnt(0) lgkmcnt(0)")
    I("s_barrier")
    loader()
    E("L_pre_cons:")
    I(f"v_and_b32 v{vT0}, 15, v{vLane}")
    I(f"v_lshrrev_b32 v{vT1}, 4, v{vLane}")
    I(f"v_and_b32 v{vT2}, 1, v{vLane}")
    I(f"v_lshlrev_b32 v{vT2}, 9, v{vT2}")
    I(f"v_lshl_add_u32 v{vT2}, v{vT1}, 4, v{vT2}")
    I(f"v_add_u32 v{vQaddr}, s{sWB}, v{vT2}")
    I(f"v_xor_b32 v{vT2}, v{vT1}, v{vT0}")
    I(f"v_lshlrev_b32 v{vT3}, 9, v{vT0}")
    I(f"v_add_u32 v{vT3}, s{sWB}, v{vT3}")
    I(f"v_add_u32 v{vT3}, {K_OFF}, v{vT3}")
    for q in range(4):
        I(f"v_xor_b32 v{vT4}, {4*q}, v{vT2}")
        I(f"v_lshl_add_u32 v{vKaddr+q}, v{vT4}, 4, v{vT3}")
    I(f"v_lshrrev_b32 v{vT0}, 2, v{vLane}")
    I(f"v_and_b32 v{vT2}, 3, v{vLane}")
    I(f"v_and_b32 v{vT3}, 7, v{vT0}")
    I(f"v_lshlrev_b32 v{vT3}, 1, v{vT3}")
    I(f"v_lshrrev_b32 v{vT4}, 1, v{vT2}")
    I(f"v_xor_b32 v{vT3}, v{vT3}, v{vT4}")
    I(f"v_and_b32 v{vT4}, 1, v{vT2}")
    I(f"v_lshlrev_b32 v{vT4}, 3, v{vT4}")
    I(f"v_lshl_add_u32 v{vT4}, v{vT0}, 9, v{vT4}")
    I(f"v_add_u32 v{vT4}, s{sWB}, v{vT4}")
    I(f"v_add_u32 v{vT4}, {V_OFF}, v{vT4}")
    for q in range(8):
        I(f"v_xor_b32 v{vT5}, {2*q}, v{vT3}")
        I(f"v_lshl_add_u32 v{vVaddr+q}, v{vT5}, 4, v{vT4}")
    I(f"v_lshlrev_b32 v{vTok}, 2, v{vT1}")
    for r in range(1, 4):
        I(f"v_add_u32 v{vTok+r}, {r}, v{vTok}")
    I("s_branch L_sched")
    E("L_cons_main:")
    I(f"v_mov_b32 v{vNeg}, 0xff7fffff")
    I(f"v_mov_b32 v{vM}, 0xff800000")
    I(f"v_mov_b32 v{vLs}, 0")
    for n in range(64):
        I(f"v_mov_b32 v{vAcc+n}, 0")
    I(f"s_mov_b32 s{sCSC}, 0x3db8aa3b")
    I(f"s_mov_b32 s{sPend}, 0")
    I(f"s_mov_b32 s{sCnt}, 0")
    I(f"s_mov_b32 s{sSeen}, 0")
    I(f"s_mov_b32 s{sRecBlock}, 0")
    I(f"s_mov_b32 s{sSpin2}, 0")
    srd(sO, sKA+10, sKA+11, 262144)
    srd(sD, sKA+12, sKA+13, 256)
    I(f"s_add_u32 s{sT0}, s2, s{sW}")
    I(f"s_cmp_lg_u32 s{sT0}, 0")
    I("s_cbranch_scc1 L_nononce")
    I(f"s_memrealtime s[{sM2}:{sM2+1}]")
    I(f"v_mov_b32 v{vT0}, 0")
    I("s_waitcnt lgkmcnt(0)")
    I(f"s_or_b32 s{sT0}, s{sM2}, 1")
    I(f"v_mov_b32 v{vT2}, s{sT0}")
    I(f"v_mov_b32 v{vT3}, s{sM2+1}")
    I("s_mov_b64 exec, 1")
    I(f"buffer_store_dwordx2 v[{vT2}:{vT3}], v{vT0}, s[{sD}:{sD+3}], 0 offen sc1")
    I("s_mov_b64 exec, -1")
    E("L_nononce:")
    I(f"v_and_b32 v0, 255, v0")
    I(f"v_lshrrev_b32 v{vT5}, 7, v0")
    I(f"v_and_b32 v{vT6}, 127, v0")
    I(f"v_lshrrev_b32 v{vT7}, 3, v{vT6}")
    I(f"v_and_b32 v{vT6}, 7, v{vT6}")
    I(f"v_lshlrev_b32 v{vT6}, 3, v{vT6}")
    I(f"v_lshl_add_u32 v{vT6}, v{vT7}, 7, v{vT6}")
    I(f"v_lshl_add_u32 v{vRO}, v{vT5}, 6, v{vT6}")
    I(f"v_lshlrev_b32 v{vT5}, 3, v{vT5}")
    I(f"v_add_u32 v{vRS}, 0x800, v{vT5}")
    I(f"v_lshlrev_b32 v{vT5}, 2, v{vT5}")
    I(f"v_add_u32 v{vRS2}, 0x800, v{vT5}")
    I(f"v_mov_b32 v{vR}, 0xff800000")
    I(f"v_mov_b32 v{vR+1}, 0")
    I(f"v_mov_b32 v{vR+2}, 0")
    I(f"v_mov_b32 v{vR+3}, 0")
    I(f"s_add_u32 s{sXE}, s{sEXB}, s{sEXN}")
    I(f"v_min_u32 v{vT0}, s{sXE}, v{vCAPI}")
    I(f"v_max_u32 v{vT1}, s{sEXB}, v{vCAP}")
    I(f"v_sub_u32 v{vT0}, v{vT0}, v{vT1}")
    I(f"v_cmp_gt_u32 vcc, 32, v{vLane}")
    I(f"v_lshlrev_b32 v{vFlagOff}, 3, v{vLane}")
    I(f"v_add_u32 v{vFlagOff}, s{sH}, v{vFlagOff}")
    I(f"v_lshlrev_b32 v{vFlagOff}, 7, v{vFlagOff}")
    I(f"v_cndmask_b32 v{vT0}, 0, v{vT0}, vcc")
    I(f"v_cmp_lt_i32 s[{sNeedM}:{sNeedM+1}], 0, v{vT0}")
    I(f"s_add_u32 s{sCAPE}, s{sCAPB}, s{sHC}")
    I(f"v_min_u32 v{vT0}, s{sCAPE}, v{vEXI}")
    I(f"v_max_u32 v{vT1}, s{sCAPB}, v{vEX}")
    I(f"v_sub_u32 v{vT0}, v{vT0}, v{vT1}")
    I(f"v_cndmask_b32 v{vT0}, 0, v{vT0}, vcc")
    I(f"v_cmp_lt_i32 vcc, 0, v{vT0}")
    I("s_nop 3")
    I(f"s_bcnt1_i32_b64 s{sNP}, vcc")
    I(f"s_cmp_eq_u32 s{sEXN}, 0")
    I(f"s_cselect_b32 s{sRecState}, 1, 0")
    if "norec" in XP or "noread" in XP:
        I(f"s_mov_b32 s{sRecState}, 1")
    stamp(4)
    I("s_barrier")
    I(f"s_cmp_eq_u32 s{sNW}, 0")
    I("s_cbranch_scc1 L_done")
    E("L_loop:")
    I(f"s_cmp_lg_u32 s{sRecState}, 0")
    I("s_cbranch_scc1 L_loop_go")
    I(f"s_add_u32 s{sT0}, s{sCnt}, 4")
    I(f"s_cmp_ge_u32 s{sT0}, s{sNW}")
    I("s_cbranch_scc1 L_rectry")
    E("L_loop_go:")
    compute(0, "a")
    I("s_cbranch_scc1 L_done")
    compute(1, "b")
    I("s_cbranch_scc0 L_loop")
    E("L_done:")
    stamp(5)
    I(f"s_cmp_eq_u32 s{sPend}, 0")
    I("s_cbranch_scc1 L_fin0")
    I("s_waitcnt vmcnt(0)")
    fire_flag()
    E("L_fin0:")
    I("s_nop 7")
    dump_partial()
    I(f"v_add_u32 v{vT3}, {TAB_BASE}, v{vRO}")
    I(f"v_add_u32 v{vT4}, {TAB_BASE}, v{vRS}")
    I("s_waitcnt lgkmcnt(0)")
    I("s_barrier")
    for w in range(4):
        I(f"ds_read_b64 v[{vRT+4*w}:{vRT+1+4*w}], v{vT4} offset:{w*4096}")
        I(f"ds_read_b64 v[{vRT+2+4*w}:{vRT+3+4*w}], v{vT3} offset:{w*4096}")
    I("s_waitcnt lgkmcnt(0)")
    I(f"v_max3_f32 v{vT0}, v{vRT}, v{vRT+4}, v{vRT+8}")
    I(f"v_max3_f32 v{vT0}, v{vT0}, v{vRT+12}, v{vR}")
    I(f"v_sub_f32 v{vT1}, v{vR}, v{vT0}")
    for w in range(4):
        I(f"v_sub_f32 v{vRT+4*w}, v{vRT+4*w}, v{vT0}")
    I(f"v_exp_f32 v{vT1}, v{vT1}")
    for w in range(4):
        I(f"v_exp_f32 v{vRT+4*w}, v{vRT+4*w}")
    I(f"v_mov_b32 v{vR}, v{vT0}")
    I(f"v_mul_f32 v{vR+1}, v{vR+1}, v{vT1}")
    I(f"v_mul_f32 v{vR+2}, v{vR+2}, v{vT1}")
    I(f"v_mul_f32 v{vR+3}, v{vR+3}, v{vT1}")
    for w in range(4):
        I(f"v_fmac_f32 v{vR+1}, v{vRT+1+4*w}, v{vRT+4*w}")
        I(f"v_fmac_f32 v{vR+2}, v{vRT+2+4*w}, v{vRT+4*w}")
        I(f"v_fmac_f32 v{vR+3}, v{vRT+3+4*w}, v{vRT+4*w}")
    stamp(6)
    I(f"s_mov_b32 s{sRecBlock}, 1")
    I(f"s_cmp_eq_u32 s{sRecState}, 0")
    I("s_cbranch_scc1 L_rectry")
    E("L_store:")
    I(f"v_rcp_f32 v{vT0}, v{vR+1}")
    I(f"s_lshl_b32 s{sT0}, s2, 10")
    I(f"v_lshlrev_b32 v{vT1}, 2, v0")
    I(f"v_mul_f32 v{vR+2}, v{vR+2}, v{vT0}")
    I(f"v_mul_f32 v{vR+3}, v{vR+3}, v{vT0}")
    I(f"v_cvt_pk_bf16_f32 v{vT2}, v{vR+2}, v{vR+3}")
    I(f"buffer_store_dword v{vT2}, v{vT1}, s[{sO}:{sO+3}], s{sT0} offen")
    stamp(7)
    stamp_store()
    E("L_end:")
    I("s_endpgm")
    for tag in ("a", "b"):
        rare_path(tag)
        flush_path(tag)
    record_block()
    E("L_code_end:")
    E('.section .rodata,"a"')
    E(".p2align 6")
    E(f".amdhsa_kernel {NAME}_kernel")
    E("  .amdhsa_next_free_vgpr 256")
    E("  .amdhsa_next_free_sgpr 102")
    E("  .amdhsa_accum_offset 256")
    E("  .amdhsa_group_segment_fixed_size 0")
    E("  .amdhsa_kernarg_size 64")
    E("  .amdhsa_user_sgpr_count 2")
    E("  .amdhsa_user_sgpr_kernarg_segment_ptr 1")
    E("  .amdhsa_system_sgpr_workgroup_id_x 1")
    E(".end_amdhsa_kernel")

gen()
path = sys.argv[1] if len(sys.argv) > 1 else f"cdna_kernels/{NAME}.s"
open(path, "w").write("\n".join(out) + "\n")
print("wrote", path, len(out), "lines")
```

```python
import sys, os
DIAG = os.environ.get("DIAG", "0") == "1"
WGN = int(os.environ.get("WGN", "2"))
QSKIP = os.environ.get("QSKIP", "0") == "1"
GSZ = [4, 4, 4, 4] if QSKIP else [5, 4, 4, 4]
WGN2 = int(os.environ.get("WGN2", "0"))
XT = int(os.environ.get("XT", "6"))
TILEG = int(os.environ.get("TILEG", "0"))
WIN = int(os.environ.get("WIN", "0"))
SLEEP = int(os.environ.get("SLEEP", "1"))
XP = os.environ.get("XP", "")
PARTIAL = "partial" in XP
PLAINN = "sc1nonce" not in XP

NAME = "standalone__paged_block_table_kv_pagedattention__sampling"

SLOT = 17408
WAVE_RING = 2 * SLOT
K_OFF = 1024
V_OFF = 9216
TAB_BASE = 4 * WAVE_RING
SYNC_BASE = TAB_BASE + 16384
ARR_BASE = SYNC_BASE + 64
LDS_BYTES = ARR_BASE + 128
FLAG_BASE = 0x10000000
RECSZ = 2304

out = []
def E(s=""):
    out.append(s)
KPOL = os.environ.get("KPOL", "nt")
VPOL = os.environ.get("VPOL", "nt")
def I(s):
    if s.endswith(" nt lds"):
        pol = KPOL if ("s[%d:" % sK) in s else VPOL
        s = s[:-len(" nt lds")] + (" " + pol if pol else "") + " lds"
    if "nords" in XP and (s.startswith("ds_read_b128 v[%d" % 0) or s.startswith("ds_read_b64_tr") or (s.startswith("ds_read_b128") and "offset" in s and INCOMP[0])):
        return
    if "nomfma" in XP and s.startswith("v_mfma"):
        return
    if "nostore" in XP and s.startswith("buffer_store_dwordx4") and "sc1" in s:
        return
    if "plainst" in XP and s.startswith("buffer_store_dwordx4") and "sc1" in s:
        s = s.replace(" sc1", "")
    if "ntst" in XP and s.startswith("buffer_store_dwordx4") and "sc1" in s:
        s = s.replace(" sc1", " sc1 nt")
    if "noatom" in XP and s.startswith("buffer_atomic"):
        return
    out.append("    " + s)
INCOMP = [False]

sVlo, sVhi, sHQ, sValid, sRole, sSo, sSum, sSeen, sNeed, sWave = 3, 4, 5, 6, 7, 8, 9, 10, 11, 12
sRecState, sRecBlock, sSpin2 = 13, 14, 15
sKA = 16
sK = 32
sV = 36
sQ = 40
sT = 44
sWS = 48
sO = 52
sD = 56
sB, sH, sW = 60, 61, 62
sL = 63
sWB = 64
sNW = 65
sI = 66
sCur, sNxt, sNew = 67, 68, 69
sPhys = 70
sT0, sT1, sT2, sT3 = 71, 72, 73, 74
sPend, sNP, sCAPE = 75, 76, 77
sScale = 78
sHC = 79
sCAPB = 80
sEXB, sEXN = 81, 82
sX0, sXE = 83, 84
sCnt = 85
sQoff = 86
sScr = 87
sNeedM = 88
sM2 = 90
sExp = 92
sRec = 93
sK0 = 94
sLen = 95
sJ = 96
sSpin = 97
sCSC = 98

vLane = 1
vT0, vT1, vT2, vT3, vT4, vT5, vT6, vT7 = 2, 3, 4, 5, 6, 7, 8, 9
vPhys, vInfo = 10, 11
vCAP, vCAPI = 12, 13
vEX, vEXI = 14, 15
vKoff = 16
vVoff = 24
vRT = 16
vQoff = 32
vQaddr = 33
vKaddr = 34
vVaddr = 38
vTok = 46
vM, vLs = 50, 51
vS = 52
vP = 56
vX = 58
vA0, vA1 = 62, 63
vQ = 64
vK = 96
vV = 128
vAcc = 160
vNeg = 224
vCE = 225
vNB = 226
vSync = 227
vR = 228
vRO, vRS = 232, 233
vFlagOff = 234
vRS2 = 235
vF = 236
vNon = 246

def stamp(k):
    if not DIAG:
        return
    I("s_memrealtime s[100:101]")
    I("s_waitcnt lgkmcnt(0)")
    I(f"v_mov_b32 v{248+k}, s100")

def stamp_store():
    if not DIAG:
        return
    I(f"s_lshl_b32 s{sT0}, s2, 3")
    I(f"s_add_u32 s{sT0}, s{sT0}, s{sWave}")
    I(f"s_lshl_b32 s{sT0}, s{sT0}, 5")
    I(f"s_add_u32 s{sT0}, s{sT0}, 0x20000000")
    I(f"v_mov_b32 v{vT1}, 0")
    I("s_mov_b64 exec, 1")
    I(f"buffer_store_dwordx4 v[248:251], v{vT1}, s[{sWS}:{sWS+3}], s{sT0} offen")
    I(f"buffer_store_dwordx4 v[252:255], v{vT1}, s[{sWS}:{sWS+3}], s{sT0} offen offset:16")

def srd(s, lo, hi, nrec):
    I(f"s_mov_b32 s{s}, s{lo}")
    I(f"s_and_b32 s{s+1}, s{hi}, 0xffff")
    I(f"s_mov_b32 s{s+2}, {nrec}")
    I(f"s_mov_b32 s{s+3}, 0x00020000")

def scan32(v):
    for sh in (1, 2, 4, 8):
        I("s_nop 1")
        I(f"v_add_u32_dpp v{v}, v{v}, v{v} row_shr:{sh} row_mask:0xf bank_mask:0xf bound_ctrl:0")
    I("s_nop 1")
    I(f"v_add_u32_dpp v{v}, v{v}, v{v} row_bcast:15 row_mask:0xa bank_mask:0xf")

def xlane(op, v, ta, tb):
    I(f"v_mov_b32 v{ta}, v{v}")
    I(f"v_mov_b32 v{tb}, v{v}")
    I("s_nop 1")
    I(f"v_permlane32_swap_b32 v{ta}, v{tb}")
    I("s_nop 1")
    I(f"{op} v{v}, v{ta}, v{tb}")
    I(f"v_mov_b32 v{ta}, v{v}")
    I("s_nop 0")
    I(f"v_mov_b32 v{tb}, v{v}")
    I("s_nop 1")
    I(f"v_permlane16_swap_b32 v{ta}, v{tb}")
    I("s_nop 1")
    I(f"{op} v{v}, v{ta}, v{tb}")

lab = [0]
def wait_ge(off):
    lab[0] += 1
    n = lab[0]
    I(f"s_cmp_ge_i32 s{sSeen}, s{sNeed}")
    I(f"s_cbranch_scc1 L_wok{n}")
    E(f"L_wp{n}:")
    I(f"ds_read_b32 v{vT0}, v{vSync} offset:{off}")
    I("s_waitcnt lgkmcnt(0)")
    I(f"v_readfirstlane_b32 s{sSeen}, v{vT0}")
    I("s_nop 1")
    I(f"s_cmp_ge_i32 s{sSeen}, s{sNeed}")
    I(f"s_cbranch_scc1 L_wok{n}")
    I(f"s_sleep {SLEEP}")
    I(f"s_branch L_wp{n}")
    E(f"L_wok{n}:")

def signal(off, sval):
    I(f"v_mov_b32 v{vT1}, s{sval}")
    I("s_mov_b64 exec, 1")
    I(f"ds_write_b32 v{vSync}, v{vT1} offset:{off}")
    I("s_mov_b64 exec, -1")

def issue_group(g, first=False):
    if g == 0:
        I(f"v_readlane_b32 s{sNew}, v{vInfo}, s{sI}")
        I(f"v_readlane_b32 s{sPhys}, v{vPhys}, s{sI}")
        I(f"s_sub_u32 s{sSo}, s{sSum}, s{sSo}")
        I(f"s_lshl_b32 s{sNeed}, s{sI}, 1")
        I(f"s_sub_i32 s{sNeed}, s{sNeed}, 3")
        I(f"s_add_u32 s{sI}, s{sI}, 1")
        I(f"s_lshl_b32 s{sVlo}, s{sPhys}, 16")
        I(f"s_lshr_b32 s{sVhi}, s{sPhys}, 16")
        I(f"s_add_u32 s{sK}, s{sKA+2}, s{sVlo}")
        I(f"s_addc_u32 s{sK+1}, s{sKA+3}, s{sVhi}")
        I(f"s_bfe_u32 s{sT2}, s{sNew}, 0x50008")
        I(f"s_lshl_b32 s{sK+2}, s{sT2}, 12")
        I(f"s_and_b32 s{sT3}, s{sNew}, 31")
        I(f"s_lshl_b32 s{sT3}, s{sT3}, 13")
        I(f"s_add_u32 s{sT3}, s{sT3}, s{sHQ}")
        if not first:
            wait_ge(4)
        I(f"s_mov_b32 m0, s{sSo}")
        if QSKIP:
            lab[0] += 1
            I(f"s_cmp_eq_u32 s{sT3}, s{sQoff}")
            I(f"s_cbranch_scc1 L_noq{lab[0]}")
        I(f"s_mov_b32 s{sQoff}, s{sT3}")
        I(f"buffer_load_dwordx4 v{vQoff}, s[{sQ}:{sQ+3}], s{sQoff} offen lds")
        if QSKIP:
            E(f"L_noq{lab[0]}:")
        I(f"s_add_u32 m0, s{sSo}, {K_OFF}")
        I("s_nop 0")
        for n in range(4):
            I(f"buffer_load_dwordx4 v{vKoff+n}, s[{sK}:{sK+3}], 0 offen offset:{n*1024} nt lds")
    elif g == 1:
        I(f"s_add_u32 m0, s{sSo}, {K_OFF + 4096}")
        I("s_nop 0")
        for n in range(4, 8):
            I(f"buffer_load_dwordx4 v{vKoff+n}, s[{sK}:{sK+3}], 0 offen offset:{(n&3)*1024} nt lds")
    elif g == 2:
        I(f"s_add_u32 s{sNeed}, s{sNeed}, 1")
        if not first:
            wait_ge(4)
        I(f"s_add_u32 m0, s{sSo}, {V_OFF}")
        I(f"s_add_u32 s{sV}, s{sKA+4}, s{sVlo}")
        I(f"s_addc_u32 s{sV+1}, s{sKA+5}, s{sVhi}")
        I(f"s_mov_b32 s{sV+2}, s{sK+2}")
        for n in range(4):
            I(f"buffer_load_dwordx4 v{vVoff+n}, s[{sV}:{sV+3}], 0 offen offset:{n*1024} nt lds")
    else:
        I(f"s_add_u32 m0, s{sSo}, {V_OFF + 4096}")
        I("s_nop 0")
        for n in range(4, 8):
            I(f"buffer_load_dwordx4 v{vVoff+n}, s[{sV}:{sV+3}], 0 offen offset:{(n&3)*1024} nt lds")

def issue_one(p, first=False):
    if p == 0:
        I(f"v_readlane_b32 s{sNew}, v{vInfo}, s{sI}")
        I(f"v_readlane_b32 s{sPhys}, v{vPhys}, s{sI}")
        I(f"s_sub_u32 s{sSo}, s{sSum}, s{sSo}")
        I(f"s_lshl_b32 s{sNeed}, s{sI}, 1")
        I(f"s_sub_i32 s{sNeed}, s{sNeed}, 3")
        I(f"s_add_u32 s{sI}, s{sI}, 1")
        I(f"s_lshl_b32 s{sVlo}, s{sPhys}, 16")
        I(f"s_lshr_b32 s{sVhi}, s{sPhys}, 16")
        I(f"s_add_u32 s{sK}, s{sKA+2}, s{sVlo}")
        I(f"s_addc_u32 s{sK+1}, s{sKA+3}, s{sVhi}")
        I(f"s_bfe_u32 s{sT2}, s{sNew}, 0x50008")
        I(f"s_lshl_b32 s{sK+2}, s{sT2}, 12")
        I(f"s_and_b32 s{sT3}, s{sNew}, 31")
        I(f"s_lshl_b32 s{sT3}, s{sT3}, 13")
        I(f"s_add_u32 s{sQoff}, s{sT3}, s{sHQ}")
        if not first:
            wait_ge(4)
        I(f"s_mov_b32 m0, s{sSo}")
        I("s_nop 0")
        I(f"buffer_load_dwordx4 v{vQoff}, s[{sQ}:{sQ+3}], s{sQoff} offen lds")
        I(f"s_add_u32 m0, s{sSo}, {K_OFF}")
    elif p <= 8:
        n = p - 1
        I(f"buffer_load_dwordx4 v{vKoff+n}, s[{sK}:{sK+3}], 0 offen offset:{(n&3)*1024} nt lds")
        if n == 3:
            I(f"s_add_u32 m0, s{sSo}, {K_OFF + 4096}")
    else:
        n = p - 9
        if n == 0:
            I(f"s_add_u32 s{sNeed}, s{sNeed}, 1")
            if not first:
                wait_ge(4)
            I(f"s_add_u32 m0, s{sSo}, {V_OFF}")
            I(f"s_add_u32 s{sV}, s{sKA+4}, s{sVlo}")
            I(f"s_addc_u32 s{sV+1}, s{sKA+5}, s{sVhi}")
            I(f"s_mov_b32 s{sV+2}, s{sK+2}")
        I(f"buffer_load_dwordx4 v{vVoff+n}, s[{sV}:{sV+3}], 0 offen offset:{(n&3)*1024} nt lds")
        if n == 3:
            I(f"s_add_u32 m0, s{sSo}, {V_OFF + 4096}")

def loader():
    E("L_loader:")
    I(f"ds_read_b32 v{vPhys}, v{vT5}")
    I(f"s_mov_b32 s{sI}, 0")
    I(f"s_mov_b32 s{sCnt}, 0")
    I(f"s_lshl_b32 s{sNW}, s{sNW}, 1")
    I(f"s_lshl_b32 s{sHQ}, s{sH}, 10")
    I(f"s_lshl_b32 s{sSum}, s{sWB}, 1")
    I(f"s_add_u32 s{sSum}, s{sSum}, {SLOT}")
    I(f"s_add_u32 s{sSo}, s{sWB}, {SLOT}")
    I(f"s_mov_b32 s{sSeen}, 0")
    I(f"s_mov_b32 s{sQoff}, -1")
    I("s_waitcnt lgkmcnt(0)")
    if WIN:
        for p in range(WIN):
            issue_one(p % 17, first=True)
            I("s_nop 0")
    elif TILEG:
        for t in range(TILEG):
            issue_group(2 * (t % 2), first=True)
            issue_group(2 * (t % 2) + 1, first=True)
    else:
        for g in range(WGN):
            issue_group(g % 4, first=True)
    stamp(4)
    I("s_barrier")
    I(f"s_cmp_eq_u32 s{sNW}, 0")
    I("s_cbranch_scc1 L_ld_done")
    E("L_ld_loop:")
    for q in range(17 if WIN else 0):
        I(f"s_waitcnt vmcnt({WIN-1})")
        if q in (8, 16):
            I(f"s_add_u32 s{sCnt}, s{sCnt}, 1")
            signal(0, sCnt)
        issue_one((q + WIN) % 17)
    for t in range(2 if TILEG else 0):
        allowed = sum([9, 8][(t + k) % 2] for k in range(1, TILEG))
        I(f"s_waitcnt vmcnt({allowed})")
        I(f"s_add_u32 s{sCnt}, s{sCnt}, 1")
        signal(0, sCnt)
        issue_group(2 * ((t + TILEG) % 2))
        issue_group(2 * ((t + TILEG) % 2) + 1)
    for g in range(0 if (WIN or TILEG) else 4):
        allowed = sum(GSZ[(g + k) % 4] for k in range(1, WGN))
        I(f"s_waitcnt vmcnt({allowed})")
        if g in (1, 3):
            I(f"s_add_u32 s{sCnt}, s{sCnt}, 1")
            signal(0, sCnt)
        issue_group((g + WGN) % 4)
    if DIAG and "half" in XP:
        I(f"s_cmp_lg_u32 s{sCnt}, 24")
        I("s_cbranch_scc1 L_nohalf")
        stamp(3)
        E("L_nohalf:")
    if WGN2:
        I(f"s_add_u32 s{sT0}, s{sCnt}, {2*XT}")
        I(f"s_cmp_lt_u32 s{sT0}, s{sNW}")
        I("s_cbranch_scc1 L_ld_loop")
        I(f"s_cmp_ge_u32 s{sCnt}, s{sNW}")
        I("s_cbranch_scc1 L_ld_done")
        for g in range(WGN, WGN2):
            issue_group(g % 4)
        E("L_ld_loop2:")
        for g in range(4):
            allowed = sum(GSZ[(g + k) % 4] for k in range(1, WGN2))
            I(f"s_waitcnt vmcnt({allowed})")
            if g in (1, 3):
                I(f"s_add_u32 s{sCnt}, s{sCnt}, 1")
                signal(0, sCnt)
            issue_group((g + WGN2) % 4)
        I(f"s_cmp_lt_u32 s{sCnt}, s{sNW}")
        I("s_cbranch_scc1 L_ld_loop2")
    else:
        I(f"s_cmp_lt_u32 s{sCnt}, s{sNW}")
        I("s_cbranch_scc1 L_ld_loop")
    E("L_ld_done:")
    stamp(5)
    stamp_store()
    I("s_endpgm")

def fire_flag():
    lab[0] += 1
    n = lab[0]
    I(f"v_mov_b32 v{vT0}, {SYNC_BASE + 8}")
    I(f"v_mov_b32 v{vT1}, 1")
    I(f"s_mov_b64 exec, 1")
    I(f"ds_add_rtn_u32 v{vT2}, v{vT0}, v{vT1}")
    I(f"v_mov_b32 v{vT0}, 0")
    I("s_waitcnt lgkmcnt(0)")
    I(f"v_readfirstlane_b32 s{sT0}, v{vT2}")
    I("s_nop 1")
    I(f"s_add_u32 s{sT0}, s{sT0}, 1")
    I(f"s_cmp_lg_u32 s{sT0}, s{sNP}")
    I(f"s_cbranch_scc1 L_ff{n}")
    I(f"s_mov_b32 s{sSpin}, 0")
    if "partial" not in XP:
        I("s_mov_b64 exec, 0xffff")
        I(f"v_mov_b32 v{vT0}, 0")
        I(f"v_lshlrev_b32 v{vT1}, 3, v{vLane}")
    I(f"s_lshl_b32 s{sT1}, s2, 7")
    I(f"s_add_u32 s{sT1}, s{sT1}, {FLAG_BASE}")
    I(f"s_branch L_fw{n}")
    E(f"L_fn{n}:")
    I(f"buffer_load_dwordx2 v[{vNon}:{vNon+1}], v{vT0}, s[{sD}:{sD+3}], 0 offen sc1")
    I("s_waitcnt vmcnt(0)")
    E(f"L_fw{n}:")
    I(f"v_readfirstlane_b32 s{sT0}, v{vNon}")
    I("s_nop 1")
    I(f"s_cmp_lg_u32 s{sT0}, 0")
    I(f"s_cbranch_scc1 L_fs{n}")
    I("s_sleep 8")
    I(f"s_add_u32 s{sSpin}, s{sSpin}, 1")
    I(f"s_cmp_lt_u32 s{sSpin}, 0x200000")
    I(f"s_cbranch_scc1 L_fn{n}")
    E(f"L_fs{n}:")
    I(f"buffer_store_dwordx2 v[{vNon}:{vNon+1}], v{vT1}, s[{sWS}:{sWS+3}], s{sT1} offen sc1")
    E(f"L_ff{n}:")
    I(f"s_mov_b64 exec, -1")
    I(f"s_mov_b32 s{sPend}, 0")

def dump_partial():
    lab[0] += 1
    n = lab[0]
    E(f"L_bw{n}:")
    I(f"ds_read_b32 v{vT0}, v{vSync} offset:12")
    I("s_waitcnt lgkmcnt(0)")
    I(f"v_readfirstlane_b32 s{sT0}, v{vT0}")
    I("s_nop 1")
    I(f"s_cmp_eq_u32 s{sT0}, 0")
    I(f"s_cbranch_scc1 L_bo{n}")
    I("s_sleep 1")
    I(f"s_branch L_bw{n}")
    E(f"L_bo{n}:")
    xlane("v_add_f32", vLs, vT0, vT1)
    I(f"v_lshlrev_b32 v{vT2}, 2, v{vLane}")
    I(f"v_add_u32 v{vT2}, s{sScr}, v{vT2}")
    I(f"v_add_u32 v{vT3}, 0x400, v{vT2}")
    I(f"v_lshlrev_b32 v{vT4}, 3, v{vLane}")
    I(f"v_add_u32 v{vT4}, s{sScr}, v{vT4}")
    I(f"s_mov_b64 exec, 0xffff")
    for n in range(16):
        a = vT2 if n < 8 else vT3
        o = (n & 7) * 32
        I(f"ds_write2_b32 v{a}, v{vAcc+4*n}, v{vAcc+4*n+1} offset0:{o} offset1:{o+16}")
    I(f"s_mov_b64 exec, 3")
    I(f"ds_write_b64 v{vT4}, v[{vM}:{vM+1}] offset:2048")
    I(f"s_mov_b64 exec, -1")

def compute(slot, tag):
    INCOMP[0] = True
    compute_(slot, tag)
    INCOMP[0] = False

def compute_(slot, tag):
    so = slot * SLOT
    I(f"s_add_u32 s{sT0}, s{sCnt}, 1")
    I(f"v_readlane_b32 s{sCur}, v{vInfo}, s{sCnt}")
    I(f"v_readlane_b32 s{sNxt}, v{vInfo}, s{sT0}")
    I(f"s_lshl_b32 s{sNeed}, s{sCnt}, 1")
    I(f"s_add_u32 s{sNeed}, s{sNeed}, 1")
    wait_ge(0)
    I(f"s_and_b32 s{sT0}, s{sCur}, 31")
    if QSKIP:
        I(f"s_cmp_eq_u32 s{sT0}, s{sQoff}")
        I(f"s_cbranch_scc1 L_sameq_{tag}")
    I(f"s_mov_b32 s{sQoff}, s{sT0}")
    for n in range(8):
        I(f"ds_read_b128 v[{vQ+4*n}:{vQ+4*n+3}], v{vQaddr} offset:{so + n*64}")
    E(f"L_sameq_{tag}:")
    for n in range(8):
        I(f"ds_read_b128 v[{vK+4*n}:{vK+4*n+3}], v{vKaddr+(n&3)} offset:{so + (n>>2)*256}")
    I(f"s_bitcmp1_b32 s{sCur}, 16")
    I(f"s_cselect_b32 s{sScale}, 0, s{sCSC}")
    I(f"s_bfe_u32 s{sValid}, s{sCur}, 0x50008")
    for n in range(8):
        I(f"s_waitcnt lgkmcnt({7-n})")
        c = "0" if n == 0 else f"v[{vS}:{vS+3}]"
        I(f"v_mfma_f32_16x16x32_bf16 v[{vS}:{vS+3}], v[{vK+4*n}:{vK+4*n+3}], v[{vQ+4*n}:{vQ+4*n+3}], {c}")
    signal(4, sNeed)
    I(f"s_add_u32 s{sNeed}, s{sNeed}, 1")
    I(f"s_cmp_eq_u32 s{sPend}, 0")
    I(f"s_cbranch_scc1 L_nopend_{tag}")
    I("s_waitcnt vmcnt(0)")
    fire_flag()
    E(f"L_nopend_{tag}:")
    I(f"s_cmp_eq_u32 s{sValid}, 16")
    I("s_nop 1")
    I(f"s_cbranch_scc1 L_full_{tag}")
    for r in range(4):
        I(f"v_cmp_gt_u32 vcc, s{sValid}, v{vTok+r}")
        I("s_nop 1")
        I(f"v_cndmask_b32 v{vS+r}, v{vNeg}, v{vS+r}, vcc")
    E(f"L_full_{tag}:")
    I(f"v_max3_f32 v{vX}, v{vS}, v{vS+1}, v{vS+2}")
    I(f"v_max_f32 v{vX}, v{vX}, v{vS+3}")
    I(f"v_mul_f32 v{vX}, s{sScale}, v{vX}")
    I(f"v_cmp_gt_f32 vcc, v{vX}, v{vM}")
    I("s_nop 1")
    I(f"s_cbranch_vccnz L_rare_{tag}")
    E(f"L_back_{tag}:")
    for r in range(4):
        I(f"v_fma_f32 v{vX+r}, v{vS+r}, s{sScale}, -v{vM}")
    for r in range(4):
        I(f"v_exp_f32 v{vX+r}, v{vX+r}")
    I("s_nop 0")
    I(f"v_cvt_pk_bf16_f32 v{vP}, v{vX}, v{vX+1}")
    I(f"v_cvt_pk_bf16_f32 v{vP+1}, v{vX+2}, v{vX+3}")
    I(f"v_add_f32 v{vX}, v{vX}, v{vX+1}")
    I(f"v_add_f32 v{vX+2}, v{vX+2}, v{vX+3}")
    I(f"v_add_f32 v{vLs}, v{vLs}, v{vX}")
    I(f"v_add_f32 v{vLs}, v{vLs}, v{vX+2}")
    wait_ge(0)
    for n in range(16):
        I(f"ds_read_b64_tr_b16 v[{vV+2*n}:{vV+2*n+1}], v{vVaddr+(n&7)} offset:{so + (n>>3)*256}")
    for n in range(16):
        I(f"s_waitcnt lgkmcnt({15-n})")
        I(f"v_mfma_f32_16x16x16_bf16 v[{vAcc+4*n}:{vAcc+4*n+3}], v[{vP}:{vP+1}], v[{vV+2*n}:{vV+2*n+1}], v[{vAcc+4*n}:{vAcc+4*n+3}]")
    signal(4, sNeed)
    I(f"s_xor_b32 s{sT0}, s{sCur}, s{sNxt}")
    I(f"s_and_b32 s{sT0}, s{sT0}, 31")
    if "norec" not in XP:
        I(f"s_cbranch_scc1 L_flush_{tag}")
    E(f"L_noflush_{tag}:")
    I(f"s_add_u32 s{sCnt}, s{sCnt}, 1")
    I(f"s_cmp_ge_u32 s{sCnt}, s{sNW}")

def rare_path(tag):
    E(f"L_rare_{tag}:")
    I(f"v_max_f32 v{vX}, v{vX}, v{vM}")
    xlane("v_max_f32", vX, vX+1, vX+2)
    I(f"v_sub_f32 v{vX+1}, v{vM}, v{vX}")
    I(f"v_exp_f32 v{vX+1}, v{vX+1}")
    I(f"v_mov_b32 v{vM}, v{vX}")
    I("s_nop 0")
    I(f"v_mul_f32 v{vLs}, v{vLs}, v{vX+1}")
    I(f"v_mov_b32_dpp v{vA0}, v{vX+1} quad_perm:[0,0,0,0] row_mask:0xf bank_mask:0xf")
    I(f"v_mov_b32_dpp v{vA1}, v{vX+1} quad_perm:[1,1,1,1] row_mask:0xf bank_mask:0xf")
    for n in range(16):
        I(f"v_mul_f32 v{vAcc+4*n}, v{vA0}, v{vAcc+4*n}")
        I(f"v_mul_f32 v{vAcc+4*n+1}, v{vA1}, v{vAcc+4*n+1}")
    I(f"s_branch L_back_{tag}")

def flush_path(tag):
    E(f"L_flush_{tag}:")
    I(f"s_cmp_eq_u32 s{sPend}, 0")
    I(f"s_cbranch_scc1 L_fl_np_{tag}")
    I("s_waitcnt vmcnt(0)")
    fire_flag()
    E(f"L_fl_np_{tag}:")
    I("s_nop 7")
    dump_partial()
    I(f"s_and_b32 s{sJ}, s{sCur}, 31")
    I(f"v_mov_b32 v{vT1}, 1")
    I(f"s_lshl_b32 s{sT0}, s{sJ}, 2")
    I(f"s_add_u32 s{sT0}, s{sT0}, {ARR_BASE}")
    I(f"v_mov_b32 v{vT0}, s{sT0}")
    I(f"v_readlane_b32 s{sT1}, v{vEX}, s{sJ}")
    I(f"v_readlane_b32 s{sT2}, v{vEXI}, s{sJ}")
    I("s_mov_b64 exec, 1")
    I(f"ds_write_b32 v{vSync}, v{vT1} offset:12")
    I("s_waitcnt lgkmcnt(0)")
    I(f"ds_add_rtn_u32 v{vT2}, v{vT0}, v{vT1}")
    I("s_mov_b64 exec, -1")
    I(f"s_max_u32 s{sT1}, s{sT1}, s{sCAPB}")
    I(f"s_min_u32 s{sT2}, s{sT2}, s{sCAPE}")
    I(f"s_sub_u32 s{sLen}, s{sT2}, s{sT1}")
    I(f"s_sub_u32 s{sK0}, s{sT1}, s{sCAPB}")
    I(f"s_min_u32 s{sT3}, s{sLen}, 4")
    I(f"v_mov_b32 v{vM}, 0xff800000")
    I("s_waitcnt lgkmcnt(0)")
    I(f"v_readfirstlane_b32 s{sT0}, v{vT2}")
    I("s_nop 1")
    I(f"s_add_u32 s{sT0}, s{sT0}, 1")
    I(f"s_cmp_lg_u32 s{sT0}, s{sT3}")
    I(f"s_cbranch_scc1 L_noflush_{tag}")
    I(f"v_lshrrev_b32 v{vT3}, 2, v{vLane}")
    I(f"v_and_b32 v{vT3}, 1, v{vT3}")
    I(f"v_lshlrev_b32 v{vT3}, 3, v{vT3}")
    I(f"v_add_u32 v{vT3}, {TAB_BASE + 2048}, v{vT3}")
    I(f"v_add_u32 v{vT4}, {TAB_BASE}, v{vQoff}")
    I(f"v_mov_b32 v{vF+8}, 0xff800000")
    I(f"v_mov_b32 v{vF+9}, 0")
    for i in range(8):
        I(f"v_mov_b32 v{vF+i}, 0")
    I(f"v_mov_b32 v{vT5}, {SYNC_BASE}")
    I(f"v_mov_b32 v{vT6}, 0")
    for w in range(4):
        I(f"s_sub_u32 s{sT0}, {w}, s{sK0}")
        I(f"s_and_b32 s{sT0}, s{sT0}, 3")
        I(f"s_cmp_ge_u32 s{sT0}, s{sLen}")
        I(f"s_cbranch_scc1 L_fm{w}_{tag}")
        I(f"ds_read_b64 v[{vRT+8}:{vRT+9}], v{vT3} offset:{w*4096}")
        I(f"ds_read_b128 v[{vRT}:{vRT+3}], v{vT4} offset:{w*4096}")
        I(f"ds_read_b128 v[{vRT+4}:{vRT+7}], v{vT4} offset:{w*4096+1024}")
        I("s_waitcnt lgkmcnt(0)")
        I("s_mov_b64 exec, 1")
        I(f"ds_write_b32 v{vT5}, v{vT6} offset:{w*16+12}")
        I("s_mov_b64 exec, -1")
        I(f"v_max_f32 v{vT0}, v{vF+8}, v{vRT+8}")
        I(f"v_sub_f32 v{vT1}, v{vF+8}, v{vT0}")
        I(f"v_sub_f32 v{vT2}, v{vRT+8}, v{vT0}")
        I(f"v_exp_f32 v{vT1}, v{vT1}")
        I(f"v_exp_f32 v{vT2}, v{vT2}")
        I(f"v_mov_b32 v{vF+8}, v{vT0}")
        I(f"v_mul_f32 v{vF+9}, v{vF+9}, v{vT1}")
        I(f"v_fmac_f32 v{vF+9}, v{vRT+9}, v{vT2}")
        for i in range(8):
            I(f"v_mul_f32 v{vF+i}, v{vF+i}, v{vT1}")
            I(f"v_fmac_f32 v{vF+i}, v{vRT+i}, v{vT2}")
        E(f"L_fm{w}_{tag}:")
    I(f"s_lshl_b32 s{sT1}, s{sJ}, 5")
    I(f"s_add_u32 s{sT1}, s{sT1}, s{sB}")
    I(f"s_lshl_b32 s{sT1}, s{sT1}, 3")
    I(f"s_add_u32 s{sT1}, s{sT1}, s{sH}")
    I(f"s_mul_i32 s{sRec}, s{sT1}, {RECSZ}")
    I(f"v_lshlrev_b32 v{vT0}, 3, v{vLane}")
    I(f"buffer_store_dwordx4 v[{vF}:{vF+3}], v{vQoff}, s[{sWS}:{sWS+3}], s{sRec} offen sc1")
    I(f"buffer_store_dwordx4 v[{vF+4}:{vF+7}], v{vQoff}, s[{sWS}:{sWS+3}], s{sRec} offen offset:1024 sc1")
    I(f"s_mov_b64 exec, 0xffff")
    I(f"buffer_store_dwordx2 v[{vF+8}:{vF+9}], v{vT0}, s[{sWS}:{sWS+3}], s{sRec} offen offset:2048 sc1")
    I(f"s_mov_b64 exec, -1")
    I(f"buffer_load_dwordx2 v[{vNon}:{vNon+1}], v{vT6}, s[{sD}:{sD+3}], 0 offen")
    I(f"s_mov_b32 s{sPend}, 1")
    I(f"s_branch L_noflush_{tag}")

def merge_one(m, l, o0, o1):
    M, Ls, A0, A1 = vR, vR+1, vR+2, vR+3
    I(f"v_max_f32 v{vT0}, v{M}, v{m}")
    I(f"v_sub_f32 v{vT1}, v{M}, v{vT0}")
    I(f"v_sub_f32 v{vT2}, v{m}, v{vT0}")
    I(f"v_exp_f32 v{vT1}, v{vT1}")
    I(f"v_exp_f32 v{vT2}, v{vT2}")
    I(f"v_mov_b32 v{M}, v{vT0}")
    I(f"v_mul_f32 v{Ls}, v{Ls}, v{vT1}")
    I(f"v_mul_f32 v{A0}, v{A0}, v{vT1}")
    I(f"v_mul_f32 v{A1}, v{A1}, v{vT1}")
    I(f"v_fmac_f32 v{Ls}, v{l}, v{vT2}")
    I(f"v_fmac_f32 v{A0}, v{o0}, v{vT2}")
    I(f"v_fmac_f32 v{A1}, v{o1}, v{vT2}")

def record_block():
    def ret():
        I(f"s_cmp_eq_u32 s{sRecBlock}, 0")
        I("s_cbranch_scc1 L_loop_go")
    E("L_rectry:")
    I(f"s_cmp_eq_u32 s{sRecState}, 2")
    I("s_cbranch_scc1 L_rs_check")
    I(f"s_cmp_eq_u32 s{sRecState}, 3")
    I("s_cbranch_scc1 L_rs_merge")
    E("L_rs_poll:")
    I(f"v_mov_b32 v{vT0}, 0")
    I(f"s_mov_b32 s{sT0}, {FLAG_BASE}")
    I(f"s_cmp_lg_u32 s{sSpin2}, 0")
    I("s_cbranch_scc1 L_pn1")
    I(f"buffer_load_dwordx2 v[{vRT}:{vRT+1}], v{vT0}, s[{sD}:{sD+3}], 0 offen")
    I("s_branch L_pn2")
    E("L_pn1:")
    I(f"buffer_load_dwordx2 v[{vRT}:{vRT+1}], v{vT0}, s[{sD}:{sD+3}], 0 offen sc1")
    E("L_pn2:")
    I(f"s_mov_b32 s{sSpin2}, 1")
    I(f"s_mov_b64 exec, s[{sNeedM}:{sNeedM+1}]")
    I(f"buffer_load_dwordx2 v[{vRT+2}:{vRT+3}], v{vFlagOff}, s[{sWS}:{sWS+3}], s{sT0} offen sc1")
    I("s_mov_b64 exec, -1")
    I(f"s_mov_b32 s{sRecState}, 2")
    ret()
    E("L_rs_check:")
    I("s_waitcnt vmcnt(0)")
    I(f"s_mov_b64 exec, s[{sNeedM}:{sNeedM+1}]")
    I(f"v_cmp_ne_u64 vcc, v[{vRT}:{vRT+1}], v[{vRT+2}:{vRT+3}]")
    I(f"v_cmp_eq_u32 s[{sM2}:{sM2+1}], 0, v{vRT}")
    I("s_mov_b64 exec, -1")
    I("s_nop 2")
    I(f"s_or_b64 vcc, vcc, s[{sM2}:{sM2+1}]")
    I(f"s_cmp_eq_u64 vcc, 0")
    I("s_cbranch_scc1 L_ready")
    I(f"s_mov_b32 s{sRecState}, 0")
    ret()
    I("s_sleep 8")
    I(f"s_add_u32 s{sSpin}, s{sSpin}, 1")
    I(f"s_cmp_lt_u32 s{sSpin}, 0x200000")
    I("s_cbranch_scc1 L_rs_poll")
    E("L_ready:")
    I(f"s_mov_b32 s{sX0}, s{sEXB}")
    I(f"s_add_u32 s{sXE}, s{sEXB}, s{sEXN}")
    E("L_rs_issue:")
    I(f"s_mov_b32 s{sLen}, 0")
    for q in range(4):
        if q:
            I(f"s_cmp_ge_u32 s{sX0}, s{sXE}")
            I("s_cbranch_scc1 L_rs_issued")
        I(f"v_cmp_ge_u32 vcc, s{sX0}, v{vCAPI}")
        I("s_nop 3")
        I(f"s_bcnt1_i32_b64 s{sJ}, vcc")
        I(f"s_lshl_b32 s{sT0}, s{sB}, 5")
        I(f"v_readlane_b32 s{sT1}, v{vCAPI}, s{sJ}")
        I(f"s_add_u32 s{sT0}, s{sT0}, s{sJ}")
        I(f"s_lshl_b32 s{sT0}, s{sT0}, 3")
        I(f"s_add_u32 s{sT0}, s{sT0}, s{sH}")
        I(f"s_mul_i32 s{sRec}, s{sT0}, {RECSZ}")
        I(f"s_min_u32 s{sX0}, s{sT1}, s{sXE}")
        I(f"buffer_load_dwordx2 v[{vRT+4*q}:{vRT+4*q+1}], v{vRS2}, s[{sWS}:{sWS+3}], s{sRec} offen sc1")
        I(f"buffer_load_dwordx2 v[{vRT+4*q+2}:{vRT+4*q+3}], v{vRO}, s[{sWS}:{sWS+3}], s{sRec} offen sc1")
        I(f"s_mov_b32 s{sLen}, {q+1}")
    E("L_rs_issued:")
    I(f"s_mov_b32 s{sRecState}, 3")
    ret()
    E("L_rs_merge:")
    I("s_waitcnt vmcnt(0)")
    for q in range(4):
        if q:
            I(f"s_cmp_le_u32 s{sLen}, {q}")
            I("s_cbranch_scc1 L_rs_merged")
        merge_one(vRT+4*q, vRT+4*q+1, vRT+4*q+2, vRT+4*q+3)
    E("L_rs_merged:")
    I(f"s_cmp_lt_u32 s{sX0}, s{sXE}")
    I("s_cbranch_scc1 L_rs_issue")
    I(f"s_mov_b32 s{sRecState}, 1")
    ret()
    I("s_branch L_store")

def gen():
    E("; paged attention decode: B=32 Hq=16 Hkv=8 D=256 block=16 tokens, 128 blocks/seq")
    E(f"; @launch grid=(256,1,1) block=(512,1,1) lds={LDS_BYTES}")
    E('.amdgcn_target "amdgcn-amd-amdhsa--gfx950"')
    E(".text")
    E(f".globl {NAME}_kernel")
    E(".p2align 8")
    E(f".type {NAME}_kernel,@function")
    E(f"{NAME}_kernel:")
    I("s_cmp_ge_u32 s2, 256")
    I("s_cbranch_scc1 L_end")
    stamp(0)
    I(f"s_load_dwordx16 s[{sKA}:{sKA+15}], s[0:1], 0")
    I(f"v_and_b32 v{vLane}, 63, v0")
    I(f"v_lshrrev_b32 v{vT0}, 6, v0")
    I(f"s_lshr_b32 s{sB}, s2, 3")
    I(f"s_and_b32 s{sH}, s2, 7")
    I(f"v_readfirstlane_b32 s{sWave}, v{vT0}")
    if "nocpf" not in XP:
        I(f"s_getpc_b64 s[{sM2}:{sM2+1}]")
        I(f"v_lshlrev_b32 v{vT1}, 7, v0")
        I(f"v_min_u32 v{vT1}, L_code_end-{NAME}_kernel-128, v{vT1}")
        I(f"s_cmp_gt_u32 s{sWave}, 1")
        I("s_cbranch_scc1 L_nocpf")
        I(f"global_load_dword v246, v{vT1}, s[{sM2}:{sM2+1}]")
        E("L_nocpf:")
    I(f"v_lshlrev_b32 v{vQoff}, 4, v{vLane}")
    I(f"v_lshlrev_b32 v{vT7}, 2, v{vLane}")
    I(f"s_and_b32 s{sW}, s{sWave}, 3")
    I(f"s_cmp_lt_u32 s{sWave}, 4")
    I(f"s_cselect_b32 s{sRole}, 0, 1")
    I(f"s_mul_i32 s{sWB}, s{sW}, {WAVE_RING}")
    I(f"s_lshl_b32 s{sT0}, s{sW}, 12")
    I(f"s_add_u32 s{sScr}, s{sT0}, {TAB_BASE}")
    I(f"s_lshl_b32 s{sT0}, s{sWave}, 11")
    I(f"v_add_u32 v{vT6}, s{sT0}, v{vQoff}")
    I(f"s_add_u32 m0, s{sT0}, {TAB_BASE}")
    I(f"s_lshl_b32 s{sT1}, s{sW}, 4")
    I(f"s_add_u32 s{sT1}, s{sT1}, {SYNC_BASE}")
    I(f"v_mov_b32 v{vSync}, s{sT1}")
    I("s_waitcnt lgkmcnt(0)")
    stamp(1)
    srd(sT, sKA+8, sKA+9, 128)
    I(f"buffer_load_dword v{vCE}, v{vT7}, s[{sT}:{sT+3}], 0 offen")
    srd(sQ, sKA+6, sKA+7, 16384)
    for n in range(2):
        I(f"buffer_load_dwordx4 v{vT6}, s[{sQ}:{sQ+3}], 0 offen offset:{n*1024} lds")
    srd(sWS, sKA+14, sKA+15, 1074790400)
    srd(sO, sKA+10, sKA+11, 262144)
    srd(sD, sKA+12, sKA+13, 256)
    srd(sK, sKA+2, sKA+3, 0)
    srd(sV, sKA+4, sKA+5, 0)
    I(f"v_mov_b32 v{vT0}, 0")
    I(f"v_mov_b32 v{vT1}, 0")
    I(f"ds_write_b64 v{vSync}, v[{vT0}:{vT1}]")
    I(f"ds_write_b64 v{vSync}, v[{vT0}:{vT1}] offset:8")
    I(f"v_and_b32 v{vT2}, 31, v{vLane}")
    I(f"v_lshlrev_b32 v{vT2}, 2, v{vT2}")
    I(f"v_add_u32 v{vT2}, {ARR_BASE}, v{vT2}")
    I(f"ds_write_b32 v{vT2}, v{vT0}")
    I(f"s_cmp_eq_u32 s{sRole}, 0")
    I("s_cbranch_scc1 L_lpre")
    I("s_waitcnt vmcnt(0) lgkmcnt(0)")
    I("s_barrier")
    I("s_branch L_pre_cons")
    E("L_lpre:")
    I(f"v_lshrrev_b32 v{vT0}, 5, v{vLane}")
    I(f"v_and_b32 v{vT1}, 31, v{vLane}")
    I(f"s_lshl_b32 s{sT0}, s{sH}, 9")
    I(f"v_lshlrev_b32 v{vT2}, 12, v{vT0}")
    I(f"v_add_u32 v{vT2}, s{sT0}, v{vT2}")
    I(f"v_xor_b32 v{vT3}, v{vT1}, v{vT0}")
    I(f"v_lshlrev_b32 v{vT4}, 1, v{vT0}")
    I(f"v_xor_b32 v{vT4}, v{vT1}, v{vT4}")
    for n in range(8):
        I(f"v_xor_b32 v{vT5}, {2*n}, v{vT3}")
        I(f"v_lshl_add_u32 v{vT5}, v{vT5}, 4, v{vT2}")
        I(f"v_add_u32 v{vKoff+n}, {n*8192-(n&3)*1024}, v{vT5}")
        I(f"v_xor_b32 v{vT5}, {((2*n)&7)<<1}, v{vT4}")
        I(f"v_lshl_add_u32 v{vT5}, v{vT5}, 4, v{vT2}")
        I(f"v_add_u32 v{vVoff+n}, {n*8192-(n&3)*1024}, v{vT5}")
    E("L_sched:")
    I(f"v_cmp_gt_u32 vcc, 32, v{vLane}")
    I("s_waitcnt vmcnt(2)")
    stamp(2)
    I(f"v_cmp_gt_i32 s[{sM2}:{sM2+1}], 1, v{vCE}")
    I(f"v_min_i32 v{vT0}, 0x800, v{vCE}")
    I(f"v_mov_b32 v{vT1}, 0x800")
    I(f"v_cndmask_b32 v{vCE}, v{vT0}, v{vT1}, s[{sM2}:{sM2+1}]")
    I(f"v_cndmask_b32 v{vT7}, 0, 1, s[{sM2}:{sM2+1}]")
    I(f"v_add_u32 v{vNB}, 15, v{vCE}")
    I(f"v_lshrrev_b32 v{vNB}, 4, v{vNB}")
    I(f"v_lshl_or_b32 v{vCE}, v{vT7}, 16, v{vCE}")
    I(f"v_cndmask_b32 v{vNB}, 0, v{vNB}, vcc")
    I(f"v_mov_b32 v{vT0}, v{vNB}")
    scan32(vT0)
    I("s_nop 0")
    I(f"v_readlane_b32 s{sT0}, v{vT0}, 31")
    I("s_nop 3")
    I(f"s_add_u32 s{sT0}, s{sT0}, 31")
    I(f"s_lshr_b32 s{sL}, s{sT0}, 5")
    I(f"v_subrev_u32 v{vT0}, s{sL}, v{vNB}")
    I(f"v_max_i32 v{vT1}, 0, v{vT0}")
    I(f"v_sub_u32 v{vT0}, 0, v{vT0}")
    I(f"v_max_i32 v{vT2}, 0, v{vT0}")
    I(f"v_cndmask_b32 v{vT2}, 0, v{vT2}, vcc")
    I(f"v_lshl_or_b32 v{vT3}, v{vT2}, 16, v{vT1}")
    scan32(vT3)
    I(f"v_and_b32 v{vEXI}, 0xffff, v{vT3}")
    I(f"v_lshrrev_b32 v{vCAPI}, 16, v{vT3}")
    I(f"v_sub_u32 v{vEX}, v{vEXI}, v{vT1}")
    I(f"v_sub_u32 v{vCAP}, v{vCAPI}, v{vT2}")
    I(f"v_readlane_b32 s{sT0}, v{vEXI}, 31")
    I(f"v_readlane_b32 s{sCAPB}, v{vCAP}, s{sB}")
    I(f"v_readlane_b32 s{sT1}, v{vT2}, s{sB}")
    I(f"v_readlane_b32 s{sT2}, v{vNB}, s{sB}")
    I(f"v_readlane_b32 s{sEXB}, v{vEX}, s{sB}")
    I(f"v_readlane_b32 s{sEXN}, v{vT1}, s{sB}")
    I(f"v_readlane_b32 s{sT3}, v{vCE}, s{sB}")
    I(f"v_mov_b32 v{vT0}, 0x7fffffff")
    I(f"v_cndmask_b32 v{vEXI}, v{vT0}, v{vEXI}, vcc")
    I(f"v_cndmask_b32 v{vCAPI}, v{vT0}, v{vCAPI}, vcc")
    I(f"s_sub_i32 s{sT0}, s{sT0}, s{sCAPB}")
    I(f"s_max_i32 s{sT0}, s{sT0}, 0")
    I(f"s_min_i32 s{sHC}, s{sT0}, s{sT1}")
    I(f"s_min_u32 s{sT2}, s{sT2}, s{sL}")
    I(f"s_add_u32 s{sT2}, s{sT2}, s{sHC}")
    I(f"s_sub_i32 s{sT0}, s{sT2}, s{sW}")
    I(f"s_add_i32 s{sT0}, s{sT0}, 3")
    I(f"s_ashr_i32 s{sNW}, s{sT0}, 2")
    I(f"v_lshlrev_b32 v{vT0}, 2, v{vLane}")
    I(f"v_add_u32 v{vT0}, s{sW}, v{vT0}")
    I(f"v_mov_b32 v{vT1}, s{sB}")
    I(f"v_subrev_u32 v{vT2}, s{sHC}, v{vT0}")
    I(f"v_mov_b32 v{vT3}, s{sT3}")
    I(f"v_add_u32 v{vT4}, s{sCAPB}, v{vT0}")
    I(f"v_cmp_gt_u32 s[{sM2}:{sM2+1}], s{sHC}, v{vT0}")
    I(f"s_mov_b32 s{sX0}, s{sCAPB}")
    I(f"s_add_u32 s{sXE}, s{sCAPB}, s{sHC}")
    E("L_piece:")
    I(f"s_cmp_ge_u32 s{sX0}, s{sXE}")
    I("s_cbranch_scc1 L_piece_done")
    I(f"v_cmp_ge_u32 vcc, s{sX0}, v{vEXI}")
    I("s_nop 3")
    I(f"s_bcnt1_i32_b64 s{sT0}, vcc")
    I(f"v_cmp_le_u32 vcc, s{sX0}, v{vT4}")
    I(f"v_readlane_b32 s{sT1}, v{vEX}, s{sT0}")
    I(f"v_readlane_b32 s{sX0}, v{vEXI}, s{sT0}")
    I(f"v_readlane_b32 s{sT3}, v{vCE}, s{sT0}")
    I("s_nop 3")
    I(f"s_and_b64 vcc, vcc, s[{sM2}:{sM2+1}]")
    I(f"s_sub_i32 s{sT1}, s{sL}, s{sT1}")
    I(f"v_mov_b32 v{vT5}, s{sT0}")
    I(f"v_add_u32 v{vT6}, s{sT1}, v{vT4}")
    I(f"v_mov_b32 v{vT7}, s{sT3}")
    I(f"v_cndmask_b32 v{vT1}, v{vT1}, v{vT5}, vcc")
    I(f"v_cndmask_b32 v{vT2}, v{vT2}, v{vT6}, vcc")
    I(f"v_cndmask_b32 v{vT3}, v{vT3}, v{vT7}, vcc")
    I("s_branch L_piece")
    E("L_piece_done:")
    I(f"v_cmp_gt_u32 vcc, s{sT2}, v{vT0}")
    I(f"v_and_b32 v{vT4}, 0xffff, v{vT3}")
    I(f"v_lshlrev_b32 v{vT5}, 4, v{vT2}")
    I(f"v_sub_u32 v{vT4}, v{vT4}, v{vT5}")
    I(f"v_min_i32 v{vT4}, 16, v{vT4}")
    I(f"v_cndmask_b32 v{vT4}, 0, v{vT4}, vcc")
    I(f"v_cndmask_b32 v{vT2}, 0, v{vT2}, vcc")
    I(f"v_and_b32 v{vT3}, 0x10000, v{vT3}")
    I(f"v_lshl_or_b32 v{vInfo}, v{vT4}, 8, v{vT1}")
    I(f"v_or_b32 v{vInfo}, v{vInfo}, v{vT3}")
    I(f"v_lshl_add_u32 v{vT5}, v{vT1}, 7, v{vT2}")
    I(f"v_lshlrev_b32 v{vT5}, 2, v{vT5}")
    I(f"v_add_u32 v{vT5}, {TAB_BASE}, v{vT5}")
    srd(sQ, sKA+0, sKA+1, 262144)
    stamp(3)
    I(f"s_cmp_lg_u32 s{sRole}, 0")
    I("s_cbranch_scc1 L_cons_main")
    I("s_waitcnt vmcnt(0) lgkmcnt(0)")
    I("s_barrier")
    loader()
    E("L_pre_cons:")
    I(f"v_and_b32 v{vT0}, 15, v{vLane}")
    I(f"v_lshrrev_b32 v{vT1}, 4, v{vLane}")
    I(f"v_and_b32 v{vT2}, 1, v{vLane}")
    I(f"v_lshlrev_b32 v{vT2}, 9, v{vT2}")
    I(f"v_lshl_add_u32 v{vT2}, v{vT1}, 4, v{vT2}")
    I(f"v_add_u32 v{vQaddr}, s{sWB}, v{vT2}")
    I(f"v_xor_b32 v{vT2}, v{vT1}, v{vT0}")
    I(f"v_lshlrev_b32 v{vT3}, 9, v{vT0}")
    I(f"v_add_u32 v{vT3}, s{sWB}, v{vT3}")
    I(f"v_add_u32 v{vT3}, {K_OFF}, v{vT3}")
    for q in range(4):
        I(f"v_xor_b32 v{vT4}, {4*q}, v{vT2}")
        I(f"v_lshl_add_u32 v{vKaddr+q}, v{vT4}, 4, v{vT3}")
    I(f"v_lshrrev_b32 v{vT0}, 2, v{vLane}")
    I(f"v_and_b32 v{vT2}, 3, v{vLane}")
    I(f"v_and_b32 v{vT3}, 7, v{vT0}")
    I(f"v_lshlrev_b32 v{vT3}, 1, v{vT3}")
    I(f"v_lshrrev_b32 v{vT4}, 1, v{vT2}")
    I(f"v_xor_b32 v{vT3}, v{vT3}, v{vT4}")
    I(f"v_and_b32 v{vT4}, 1, v{vT2}")
    I(f"v_lshlrev_b32 v{vT4}, 3, v{vT4}")
    I(f"v_lshl_add_u32 v{vT4}, v{vT0}, 9, v{vT4}")
    I(f"v_add_u32 v{vT4}, s{sWB}, v{vT4}")
    I(f"v_add_u32 v{vT4}, {V_OFF}, v{vT4}")
    for q in range(8):
        I(f"v_xor_b32 v{vT5}, {2*q}, v{vT3}")
        I(f"v_lshl_add_u32 v{vVaddr+q}, v{vT5}, 4, v{vT4}")
    I(f"v_lshlrev_b32 v{vTok}, 2, v{vT1}")
    for r in range(1, 4):
        I(f"v_add_u32 v{vTok+r}, {r}, v{vTok}")
    I("s_branch L_sched")
    E("L_cons_main:")
    I(f"v_mov_b32 v{vNeg}, 0xff7fffff")
    I(f"v_mov_b32 v{vM}, 0xff800000")
    I(f"v_mov_b32 v{vLs}, 0")
    for n in range(64):
        I(f"v_mov_b32 v{vAcc+n}, 0")
    I(f"s_mov_b32 s{sCSC}, 0x3db8aa3b")
    I(f"s_mov_b32 s{sPend}, 0")
    I(f"s_mov_b32 s{sCnt}, 0")
    I(f"s_mov_b32 s{sSeen}, 0")
    I(f"s_mov_b32 s{sRecBlock}, 0")
    I(f"s_mov_b32 s{sQoff}, -1")
    I(f"s_mov_b32 s{sSpin2}, 0")
    I(f"s_mov_b32 s{sSpin}, 0")
    I(f"s_add_u32 s{sT0}, s2, s{sW}")
    I(f"s_cmp_lg_u32 s{sT0}, 0")
    I("s_cbranch_scc1 L_nononce")
    I(f"s_memrealtime s[{sM2}:{sM2+1}]")
    I(f"v_mov_b32 v{vT0}, 0")
    I("s_waitcnt lgkmcnt(0)")
    I(f"s_or_b32 s{sT0}, s{sM2}, 1")
    I(f"v_mov_b32 v{vT2}, s{sT0}")
    I(f"v_mov_b32 v{vT3}, s{sM2+1}")
    I("s_mov_b64 exec, 1")
    I(f"buffer_store_dwordx2 v[{vT2}:{vT3}], v{vT0}, s[{sD}:{sD+3}], 0 offen sc1")
    I("s_mov_b64 exec, -1")
    E("L_nononce:")
    I(f"v_and_b32 v0, 255, v0")
    I(f"v_lshrrev_b32 v{vT5}, 7, v0")
    I(f"v_and_b32 v{vT6}, 127, v0")
    I(f"v_lshrrev_b32 v{vT7}, 3, v{vT6}")
    I(f"v_and_b32 v{vT6}, 7, v{vT6}")
    I(f"v_lshlrev_b32 v{vT6}, 3, v{vT6}")
    I(f"v_lshl_add_u32 v{vT6}, v{vT7}, 7, v{vT6}")
    I(f"v_lshl_add_u32 v{vRO}, v{vT5}, 6, v{vT6}")
    I(f"v_lshlrev_b32 v{vT5}, 3, v{vT5}")
    I(f"v_add_u32 v{vRS}, 0x800, v{vT5}")
    I(f"v_lshlrev_b32 v{vT5}, 2, v{vT5}")
    I(f"v_add_u32 v{vRS2}, 0x800, v{vT5}")
    I(f"v_mov_b32 v{vR}, 0xff800000")
    I(f"v_mov_b32 v{vR+1}, 0")
    I(f"v_mov_b32 v{vR+2}, 0")
    I(f"v_mov_b32 v{vR+3}, 0")
    I(f"s_add_u32 s{sXE}, s{sEXB}, s{sEXN}")
    I(f"v_min_u32 v{vT0}, s{sXE}, v{vCAPI}")
    I(f"v_max_u32 v{vT1}, s{sEXB}, v{vCAP}")
    I(f"v_sub_u32 v{vT0}, v{vT0}, v{vT1}")
    I(f"v_cmp_gt_u32 vcc, 32, v{vLane}")
    I(f"v_lshlrev_b32 v{vFlagOff}, 3, v{vLane}")
    I(f"v_add_u32 v{vFlagOff}, s{sH}, v{vFlagOff}")
    I(f"v_lshlrev_b32 v{vFlagOff}, 7, v{vFlagOff}")
    I(f"v_cndmask_b32 v{vT0}, 0, v{vT0}, vcc")
    I(f"v_cmp_lt_i32 s[{sNeedM}:{sNeedM+1}], 0, v{vT0}")
    I(f"s_add_u32 s{sCAPE}, s{sCAPB}, s{sHC}")
    I(f"v_min_u32 v{vT0}, s{sCAPE}, v{vEXI}")
    I(f"v_max_u32 v{vT1}, s{sCAPB}, v{vEX}")
    I(f"v_sub_u32 v{vT0}, v{vT0}, v{vT1}")
    I(f"v_cndmask_b32 v{vT0}, 0, v{vT0}, vcc")
    I(f"v_cmp_lt_i32 vcc, 0, v{vT0}")
    I("s_nop 3")
    I(f"s_bcnt1_i32_b64 s{sNP}, vcc")
    I(f"s_cmp_eq_u32 s{sEXN}, 0")
    I(f"s_cselect_b32 s{sRecState}, 1, 0")
    if "norec" in XP or "noread" in XP:
        I(f"s_mov_b32 s{sRecState}, 1")
    stamp(4)
    I("s_barrier")
    I(f"s_cmp_eq_u32 s{sNW}, 0")
    I("s_cbranch_scc1 L_done")
    E("L_loop:")
    I(f"s_cmp_eq_u32 s{sRecState}, 1")
    I("s_cbranch_scc1 L_loop_go")
    I(f"s_add_u32 s{sT0}, s{sCnt}, 10")
    I(f"s_cmp_ge_u32 s{sT0}, s{sNW}")
    I("s_cbranch_scc1 L_rectry")
    E("L_loop_go:")
    compute(0, "a")
    I("s_cbranch_scc1 L_done")
    compute(1, "b")
    I("s_cbranch_scc0 L_loop")
    E("L_done:")
    stamp(5)
    I(f"s_cmp_eq_u32 s{sPend}, 0")
    I("s_cbranch_scc1 L_fin0")
    I("s_waitcnt vmcnt(0)")
    fire_flag()
    E("L_fin0:")
    I("s_nop 7")
    dump_partial()
    I(f"v_add_u32 v{vT3}, {TAB_BASE}, v{vRO}")
    I(f"v_add_u32 v{vT4}, {TAB_BASE}, v{vRS}")
    I("s_waitcnt lgkmcnt(0)")
    I("s_barrier")
    for w in range(4):
        I(f"ds_read_b64 v[{vQ+4*w}:{vQ+1+4*w}], v{vT4} offset:{w*4096}")
        I(f"ds_read_b64 v[{vQ+2+4*w}:{vQ+3+4*w}], v{vT3} offset:{w*4096}")
    I("s_waitcnt lgkmcnt(0)")
    I(f"v_max3_f32 v{vT0}, v{vQ}, v{vQ+4}, v{vQ+8}")
    I(f"v_max3_f32 v{vT0}, v{vT0}, v{vQ+12}, v{vR}")
    I(f"v_sub_f32 v{vT1}, v{vR}, v{vT0}")
    for w in range(4):
        I(f"v_sub_f32 v{vQ+4*w}, v{vQ+4*w}, v{vT0}")
    I(f"v_exp_f32 v{vT1}, v{vT1}")
    for w in range(4):
        I(f"v_exp_f32 v{vQ+4*w}, v{vQ+4*w}")
    I(f"v_mov_b32 v{vR}, v{vT0}")
    I(f"v_mul_f32 v{vR+1}, v{vR+1}, v{vT1}")
    I(f"v_mul_f32 v{vR+2}, v{vR+2}, v{vT1}")
    I(f"v_mul_f32 v{vR+3}, v{vR+3}, v{vT1}")
    for w in range(4):
        I(f"v_fmac_f32 v{vR+1}, v{vQ+1+4*w}, v{vQ+4*w}")
        I(f"v_fmac_f32 v{vR+2}, v{vQ+2+4*w}, v{vQ+4*w}")
        I(f"v_fmac_f32 v{vR+3}, v{vQ+3+4*w}, v{vQ+4*w}")
    stamp(6)
    I(f"s_mov_b32 s{sRecBlock}, 1")
    I(f"s_cmp_lg_u32 s{sRecState}, 1")
    I("s_cbranch_scc1 L_rectry")
    E("L_store:")
    I(f"v_rcp_f32 v{vT0}, v{vR+1}")
    I(f"s_lshl_b32 s{sT0}, s2, 10")
    I(f"v_lshlrev_b32 v{vT1}, 2, v0")
    I(f"v_mul_f32 v{vR+2}, v{vR+2}, v{vT0}")
    I(f"v_mul_f32 v{vR+3}, v{vR+3}, v{vT0}")
    I(f"v_cvt_pk_bf16_f32 v{vT2}, v{vR+2}, v{vR+3}")
    I(f"buffer_store_dword v{vT2}, v{vT1}, s[{sO}:{sO+3}], s{sT0} offen" + os.environ.get("OUTPOL", ""))
    stamp(7)
    stamp_store()
    E("L_end:")
    I("s_endpgm")
    for tag in ("a", "b"):
        rare_path(tag)
        flush_path(tag)
    record_block()
    E("L_code_end:")
    E('.section .rodata,"a"')
    E(".p2align 6")
    E(f".amdhsa_kernel {NAME}_kernel")
    E("  .amdhsa_next_free_vgpr 256")
    E("  .amdhsa_next_free_sgpr 102")
    E("  .amdhsa_accum_offset 256")
    E("  .amdhsa_group_segment_fixed_size 0")
    E("  .amdhsa_kernarg_size 64")
    E("  .amdhsa_user_sgpr_count 2")
    E("  .amdhsa_user_sgpr_kernarg_segment_ptr 1")
    E("  .amdhsa_system_sgpr_workgroup_id_x 1")
    E(".end_amdhsa_kernel")

gen()
path = sys.argv[1] if len(sys.argv) > 1 else f"cdna_kernels/{NAME}.s"
open(path, "w").write("\n".join(out) + "\n")
print("wrote", path, len(out), "lines")
```

```python
import sys, os
DIAG = os.environ.get("DIAG", "0") == "1"
WGN = int(os.environ.get("WGN", "2"))
QSKIP = os.environ.get("QSKIP", "0") == "1"
GSZ = [4, 4, 4, 4] if QSKIP else [5, 4, 4, 4]
WGN2 = int(os.environ.get("WGN2", "0"))
XT = int(os.environ.get("XT", "6"))
ITEMG = int(os.environ.get("ITEMG", "0"))
TILEG = int(os.environ.get("TILEG", "1"))
WIN = int(os.environ.get("WIN", "0"))
SLEEP = int(os.environ.get("SLEEP", "1"))
XP = os.environ.get("XP", "")
PARTIAL = "partial" in XP
PLAINN = "sc1nonce" not in XP

NAME = "standalone__paged_block_table_kv_pagedattention__sampling"

SLOT = 17408
WAVE_RING = 2 * SLOT
K_OFF = 1024
V_OFF = 9216
TAB_BASE = 4 * WAVE_RING
SYNC_BASE = TAB_BASE + 16384
ARR_BASE = SYNC_BASE + 64
LDS_BYTES = ARR_BASE + 128
FLAG_BASE = 0x10000000
RECSZ = 2304

out = []
def E(s=""):
    out.append(s)
KPOL = os.environ.get("KPOL", "nt")
VPOL = os.environ.get("VPOL", "nt")
def I(s):
    if s.endswith(" nt lds"):
        pol = KPOL if ("s[%d:" % sK) in s else VPOL
        s = s[:-len(" nt lds")] + (" " + pol if pol else "") + " lds"
    if "nords" in XP and (s.startswith("ds_read_b128 v[%d" % 0) or s.startswith("ds_read_b64_tr") or (s.startswith("ds_read_b128") and "offset" in s and INCOMP[0])):
        return
    if "nomfma" in XP and s.startswith("v_mfma"):
        return
    if "nostore" in XP and s.startswith("buffer_store_dwordx4") and "sc1" in s:
        return
    if "plainst" in XP and s.startswith("buffer_store_dwordx4") and "sc1" in s:
        s = s.replace(" sc1", "")
    if "ntst" in XP and s.startswith("buffer_store_dwordx4") and "sc1" in s:
        s = s.replace(" sc1", " sc1 nt")
    if "noatom" in XP and s.startswith("buffer_atomic"):
        return
    out.append("    " + s)
INCOMP = [False]

sVlo, sVhi, sHQ, sValid, sRole, sSo, sSum, sSeen, sNeed, sWave = 3, 4, 5, 6, 7, 8, 9, 10, 11, 12
sRecState, sRecBlock, sSpin2 = 13, 14, 15
sKA = 16
sK = 32
sV = 36
sQ = 40
sT = 44
sWS = 48
sO = 52
sD = 56
sB, sH, sW = 60, 61, 62
sL = 63
sWB = 64
sNW = 65
sI = 66
sCur, sNxt, sNew = 67, 68, 69
sPhys = 70
sT0, sT1, sT2, sT3 = 71, 72, 73, 74
sPend, sNP, sCAPE = 75, 76, 77
sScale = 78
sHC = 79
sCAPB = 80
sEXB, sEXN = 81, 82
sX0, sXE = 83, 84
sCnt = 85
sQoff = 86
sScr = 87
sNeedM = 88
sM2 = 90
sExp = 92
sRec = 93
sK0 = 94
sLen = 95
sJ = 96
sSpin = 97
sCSC = 98

vLane = 1
vT0, vT1, vT2, vT3, vT4, vT5, vT6, vT7 = 2, 3, 4, 5, 6, 7, 8, 9
vPhys, vInfo = 10, 11
vCAP, vCAPI = 12, 13
vEX, vEXI = 14, 15
vKoff = 16
vVoff = 24
vRT = 16
vQoff = 32
vQaddr = 33
vKaddr = 34
vVaddr = 38
vTok = 46
vM, vLs = 50, 51
vS = 52
vP = 56
vX = 58
vA0, vA1 = 62, 63
vQ = 64
vK = 96
vV = 128
vAcc = 160
vNeg = 224
vCE = 225
vNB = 226
vSync = 227
vR = 228
vRO, vRS = 232, 233
vFlagOff = 234
vRS2 = 235
vF = 236
vNon = 246

def stamp(k):
    if not DIAG:
        return
    I("s_memrealtime s[100:101]")
    I("s_waitcnt lgkmcnt(0)")
    I(f"v_mov_b32 v{248+k}, s100")

def stamp_store():
    if not DIAG:
        return
    I(f"s_lshl_b32 s{sT0}, s2, 3")
    I(f"s_add_u32 s{sT0}, s{sT0}, s{sWave}")
    I(f"s_lshl_b32 s{sT0}, s{sT0}, 5")
    I(f"s_add_u32 s{sT0}, s{sT0}, 0x20000000")
    I(f"v_mov_b32 v{vT1}, 0")
    I("s_mov_b64 exec, 1")
    I(f"buffer_store_dwordx4 v[248:251], v{vT1}, s[{sWS}:{sWS+3}], s{sT0} offen")
    I(f"buffer_store_dwordx4 v[252:255], v{vT1}, s[{sWS}:{sWS+3}], s{sT0} offen offset:16")

def srd(s, lo, hi, nrec):
    I(f"s_mov_b32 s{s}, s{lo}")
    I(f"s_and_b32 s{s+1}, s{hi}, 0xffff")
    I(f"s_mov_b32 s{s+2}, {nrec}")
    I(f"s_mov_b32 s{s+3}, 0x00020000")

def scan32(v):
    for sh in (1, 2, 4, 8):
        I("s_nop 1")
        I(f"v_add_u32_dpp v{v}, v{v}, v{v} row_shr:{sh} row_mask:0xf bank_mask:0xf bound_ctrl:0")
    I("s_nop 1")
    I(f"v_add_u32_dpp v{v}, v{v}, v{v} row_bcast:15 row_mask:0xa bank_mask:0xf")

def xlane(op, v, ta, tb):
    I(f"v_mov_b32 v{ta}, v{v}")
    I(f"v_mov_b32 v{tb}, v{v}")
    I("s_nop 1")
    I(f"v_permlane32_swap_b32 v{ta}, v{tb}")
    I("s_nop 1")
    I(f"{op} v{v}, v{ta}, v{tb}")
    I(f"v_mov_b32 v{ta}, v{v}")
    I("s_nop 0")
    I(f"v_mov_b32 v{tb}, v{v}")
    I("s_nop 1")
    I(f"v_permlane16_swap_b32 v{ta}, v{tb}")
    I("s_nop 1")
    I(f"{op} v{v}, v{ta}, v{tb}")

lab = [0]
def wait_ge(off):
    lab[0] += 1
    n = lab[0]
    I(f"s_cmp_ge_i32 s{sSeen}, s{sNeed}")
    I(f"s_cbranch_scc1 L_wok{n}")
    E(f"L_wp{n}:")
    I(f"ds_read_b32 v{vT0}, v{vSync} offset:{off}")
    I("s_waitcnt lgkmcnt(0)")
    I(f"v_readfirstlane_b32 s{sSeen}, v{vT0}")
    I("s_nop 1")
    I(f"s_cmp_ge_i32 s{sSeen}, s{sNeed}")
    I(f"s_cbranch_scc1 L_wok{n}")
    I(f"s_sleep {SLEEP}")
    I(f"s_branch L_wp{n}")
    E(f"L_wok{n}:")

def signal(off, sval):
    I(f"v_mov_b32 v{vT1}, s{sval}")
    I("s_mov_b64 exec, 1")
    I(f"ds_write_b32 v{vSync}, v{vT1} offset:{off}")
    I("s_mov_b64 exec, -1")

def issue_group(g, first=False):
    if g == 0:
        I(f"v_readlane_b32 s{sNew}, v{vInfo}, s{sI}")
        I(f"v_readlane_b32 s{sPhys}, v{vPhys}, s{sI}")
        I(f"s_sub_u32 s{sSo}, s{sSum}, s{sSo}")
        I(f"s_lshl_b32 s{sNeed}, s{sI}, 1")
        I(f"s_sub_i32 s{sNeed}, s{sNeed}, 3")
        I(f"s_add_u32 s{sI}, s{sI}, 1")
        I(f"s_lshl_b32 s{sVlo}, s{sPhys}, 16")
        I(f"s_lshr_b32 s{sVhi}, s{sPhys}, 16")
        I(f"s_add_u32 s{sK}, s{sKA+2}, s{sVlo}")
        I(f"s_addc_u32 s{sK+1}, s{sKA+3}, s{sVhi}")
        I(f"s_bfe_u32 s{sT2}, s{sNew}, 0x50008")
        I(f"s_lshl_b32 s{sK+2}, s{sT2}, 12")
        I(f"s_and_b32 s{sT3}, s{sNew}, 31")
        I(f"s_lshl_b32 s{sT3}, s{sT3}, 13")
        I(f"s_add_u32 s{sT3}, s{sT3}, s{sHQ}")
        if not first:
            wait_ge(4)
        I(f"s_mov_b32 m0, s{sSo}")
        if QSKIP:
            lab[0] += 1
            I(f"s_cmp_eq_u32 s{sT3}, s{sQoff}")
            I(f"s_cbranch_scc1 L_noq{lab[0]}")
        I(f"s_mov_b32 s{sQoff}, s{sT3}")
        I(f"buffer_load_dwordx4 v{vQoff}, s[{sQ}:{sQ+3}], s{sQoff} offen lds")
        if QSKIP:
            E(f"L_noq{lab[0]}:")
        I(f"s_add_u32 m0, s{sSo}, {K_OFF}")
        I("s_nop 0")
        for n in range(4):
            I(f"buffer_load_dwordx4 v{vKoff+n}, s[{sK}:{sK+3}], 0 offen offset:{n*1024} nt lds")
    elif g == 1:
        I(f"s_add_u32 m0, s{sSo}, {K_OFF + 4096}")
        I("s_nop 0")
        for n in range(4, 8):
            I(f"buffer_load_dwordx4 v{vKoff+n}, s[{sK}:{sK+3}], 0 offen offset:{(n&3)*1024} nt lds")
    elif g == 2:
        I(f"s_add_u32 s{sNeed}, s{sNeed}, 1")
        if not first:
            wait_ge(4)
        I(f"s_add_u32 m0, s{sSo}, {V_OFF}")
        I(f"s_add_u32 s{sV}, s{sKA+4}, s{sVlo}")
        I(f"s_addc_u32 s{sV+1}, s{sKA+5}, s{sVhi}")
        I(f"s_mov_b32 s{sV+2}, s{sK+2}")
        for n in range(4):
            I(f"buffer_load_dwordx4 v{vVoff+n}, s[{sV}:{sV+3}], 0 offen offset:{n*1024} nt lds")
    else:
        I(f"s_add_u32 m0, s{sSo}, {V_OFF + 4096}")
        I("s_nop 0")
        for n in range(4, 8):
            I(f"buffer_load_dwordx4 v{vVoff+n}, s[{sV}:{sV+3}], 0 offen offset:{(n&3)*1024} nt lds")

def issue_one(p, first=False):
    if p == 0:
        I(f"v_readlane_b32 s{sNew}, v{vInfo}, s{sI}")
        I(f"v_readlane_b32 s{sPhys}, v{vPhys}, s{sI}")
        I(f"s_sub_u32 s{sSo}, s{sSum}, s{sSo}")
        I(f"s_lshl_b32 s{sNeed}, s{sI}, 1")
        I(f"s_sub_i32 s{sNeed}, s{sNeed}, 3")
        I(f"s_add_u32 s{sI}, s{sI}, 1")
        I(f"s_lshl_b32 s{sVlo}, s{sPhys}, 16")
        I(f"s_lshr_b32 s{sVhi}, s{sPhys}, 16")
        I(f"s_add_u32 s{sK}, s{sKA+2}, s{sVlo}")
        I(f"s_addc_u32 s{sK+1}, s{sKA+3}, s{sVhi}")
        I(f"s_bfe_u32 s{sT2}, s{sNew}, 0x50008")
        I(f"s_lshl_b32 s{sK+2}, s{sT2}, 12")
        I(f"s_and_b32 s{sT3}, s{sNew}, 31")
        I(f"s_lshl_b32 s{sT3}, s{sT3}, 13")
        I(f"s_add_u32 s{sQoff}, s{sT3}, s{sHQ}")
        if not first:
            wait_ge(4)
        I(f"s_mov_b32 m0, s{sSo}")
        I("s_nop 0")
        I(f"buffer_load_dwordx4 v{vQoff}, s[{sQ}:{sQ+3}], s{sQoff} offen lds")
        I(f"s_add_u32 m0, s{sSo}, {K_OFF}")
    elif p <= 8:
        n = p - 1
        I(f"buffer_load_dwordx4 v{vKoff+n}, s[{sK}:{sK+3}], 0 offen offset:{(n&3)*1024} nt lds")
        if n == 3:
            I(f"s_add_u32 m0, s{sSo}, {K_OFF + 4096}")
    else:
        n = p - 9
        if n == 0:
            I(f"s_add_u32 s{sNeed}, s{sNeed}, 1")
            if not first:
                wait_ge(4)
            I(f"s_add_u32 m0, s{sSo}, {V_OFF}")
            I(f"s_add_u32 s{sV}, s{sKA+4}, s{sVlo}")
            I(f"s_addc_u32 s{sV+1}, s{sKA+5}, s{sVhi}")
            I(f"s_mov_b32 s{sV+2}, s{sK+2}")
        I(f"buffer_load_dwordx4 v{vVoff+n}, s[{sV}:{sV+3}], 0 offen offset:{(n&3)*1024} nt lds")
        if n == 3:
            I(f"s_add_u32 m0, s{sSo}, {V_OFF + 4096}")

def loader():
    E("L_loader:")
    I(f"ds_read_b32 v{vPhys}, v{vT5}")
    I(f"s_mov_b32 s{sI}, 0")
    I(f"s_mov_b32 s{sCnt}, 0")
    I(f"s_lshl_b32 s{sNW}, s{sNW}, 1")
    I(f"s_lshl_b32 s{sHQ}, s{sH}, 10")
    I(f"s_lshl_b32 s{sSum}, s{sWB}, 1")
    I(f"s_add_u32 s{sSum}, s{sSum}, {SLOT}")
    I(f"s_add_u32 s{sSo}, s{sWB}, {SLOT}")
    I(f"s_mov_b32 s{sSeen}, 0")
    I(f"s_mov_b32 s{sQoff}, -1")
    I("s_waitcnt lgkmcnt(0)")
    if WIN:
        for p in range(WIN):
            issue_one(p % 17, first=True)
            I("s_nop 0")
    elif ITEMG:
        for g in range(4):
            issue_group(g, first=True)
    elif TILEG:
        for t in range(TILEG):
            issue_group(2 * (t % 2), first=True)
            issue_group(2 * (t % 2) + 1, first=True)
    else:
        for g in range(WGN):
            issue_group(g % 4, first=True)
    stamp(4)
    if DIAG:
        I("s_memtime s[100:101]")
        I("s_waitcnt lgkmcnt(0)")
        I("v_mov_b32 v254, s100")
    I("s_barrier")
    I(f"s_cmp_eq_u32 s{sNW}, 0")
    I("s_cbranch_scc1 L_ld_done")
    E("L_ld_loop:")
    for q in range(17 if WIN else 0):
        I(f"s_waitcnt vmcnt({WIN-1})")
        if q in (8, 16):
            I(f"s_add_u32 s{sCnt}, s{sCnt}, 1")
            signal(0, sCnt)
        issue_one((q + WIN) % 17)
    if ITEMG:
        I("s_waitcnt vmcnt(8)")
        I(f"s_add_u32 s{sCnt}, s{sCnt}, 1")
        signal(0, sCnt)
        I("s_waitcnt vmcnt(0)")
        I(f"s_add_u32 s{sCnt}, s{sCnt}, 1")
        signal(0, sCnt)
        for g in range(4):
            issue_group(g)
    for t in range(2 if TILEG else 0):
        allowed = sum([9, 8][(t + k) % 2] for k in range(1, TILEG))
        I(f"s_waitcnt vmcnt({allowed})")
        I(f"s_add_u32 s{sCnt}, s{sCnt}, 1")
        signal(0, sCnt)
        issue_group(2 * ((t + TILEG) % 2))
        issue_group(2 * ((t + TILEG) % 2) + 1)
    for g in range(0 if (WIN or TILEG or ITEMG) else 4):
        allowed = sum(GSZ[(g + k) % 4] for k in range(1, WGN))
        I(f"s_waitcnt vmcnt({allowed})")
        if g in (1, 3):
            I(f"s_add_u32 s{sCnt}, s{sCnt}, 1")
            signal(0, sCnt)
        issue_group((g + WGN) % 4)
    if DIAG and "half" in XP:
        I(f"s_cmp_lg_u32 s{sCnt}, 24")
        I("s_cbranch_scc1 L_nohalf")
        stamp(3)
        E("L_nohalf:")
    if WGN2:
        I(f"s_add_u32 s{sT0}, s{sCnt}, {2*XT}")
        I(f"s_cmp_lt_u32 s{sT0}, s{sNW}")
        I("s_cbranch_scc1 L_ld_loop")
        I(f"s_cmp_ge_u32 s{sCnt}, s{sNW}")
        I("s_cbranch_scc1 L_ld_done")
        for g in range(WGN, WGN2):
            issue_group(g % 4)
        E("L_ld_loop2:")
        for g in range(4):
            allowed = sum(GSZ[(g + k) % 4] for k in range(1, WGN2))
            I(f"s_waitcnt vmcnt({allowed})")
            if g in (1, 3):
                I(f"s_add_u32 s{sCnt}, s{sCnt}, 1")
                signal(0, sCnt)
            issue_group((g + WGN2) % 4)
        I(f"s_cmp_lt_u32 s{sCnt}, s{sNW}")
        I("s_cbranch_scc1 L_ld_loop2")
    else:
        I(f"s_cmp_lt_u32 s{sCnt}, s{sNW}")
        I("s_cbranch_scc1 L_ld_loop")
    E("L_ld_done:")
    stamp(5)
    if DIAG:
        I("s_memtime s[100:101]")
        I("s_waitcnt lgkmcnt(0)")
        I("v_mov_b32 v255, s100")
    stamp_store()
    I("s_endpgm")

def fire_flag():
    lab[0] += 1
    n = lab[0]
    I(f"v_mov_b32 v{vT0}, {SYNC_BASE + 8}")
    I(f"v_mov_b32 v{vT1}, 1")
    I(f"s_mov_b64 exec, 1")
    I(f"ds_add_rtn_u32 v{vT2}, v{vT0}, v{vT1}")
    I(f"v_mov_b32 v{vT0}, 0")
    I("s_waitcnt lgkmcnt(0)")
    I(f"v_readfirstlane_b32 s{sT0}, v{vT2}")
    I("s_nop 1")
    I(f"s_add_u32 s{sT0}, s{sT0}, 1")
    I(f"s_cmp_lg_u32 s{sT0}, s{sNP}")
    I(f"s_cbranch_scc1 L_ff{n}")
    I(f"s_mov_b32 s{sSpin}, 0")
    if "partial" not in XP:
        I("s_mov_b64 exec, 0xffff")
        I(f"v_mov_b32 v{vT0}, 0")
        I(f"v_lshlrev_b32 v{vT1}, 3, v{vLane}")
    I(f"s_lshl_b32 s{sT1}, s2, 7")
    I(f"s_add_u32 s{sT1}, s{sT1}, {FLAG_BASE}")
    I(f"s_branch L_fw{n}")
    E(f"L_fn{n}:")
    I(f"buffer_load_dwordx2 v[{vNon}:{vNon+1}], v{vT0}, s[{sD}:{sD+3}], 0 offen sc1")
    I("s_waitcnt vmcnt(0)")
    E(f"L_fw{n}:")
    I(f"v_readfirstlane_b32 s{sT0}, v{vNon}")
    I("s_nop 1")
    I(f"s_cmp_lg_u32 s{sT0}, 0")
    I(f"s_cbranch_scc1 L_fs{n}")
    I("s_sleep 8")
    I(f"s_add_u32 s{sSpin}, s{sSpin}, 1")
    I(f"s_cmp_lt_u32 s{sSpin}, 0x200000")
    I(f"s_cbranch_scc1 L_fn{n}")
    E(f"L_fs{n}:")
    I(f"buffer_store_dwordx2 v[{vNon}:{vNon+1}], v{vT1}, s[{sWS}:{sWS+3}], s{sT1} offen sc1")
    E(f"L_ff{n}:")
    I(f"s_mov_b64 exec, -1")
    I(f"s_mov_b32 s{sPend}, 0")

def dump_partial():
    lab[0] += 1
    n = lab[0]
    E(f"L_bw{n}:")
    I(f"ds_read_b32 v{vT0}, v{vSync} offset:12")
    I("s_waitcnt lgkmcnt(0)")
    I(f"v_readfirstlane_b32 s{sT0}, v{vT0}")
    I("s_nop 1")
    I(f"s_cmp_eq_u32 s{sT0}, 0")
    I(f"s_cbranch_scc1 L_bo{n}")
    I("s_sleep 1")
    I(f"s_branch L_bw{n}")
    E(f"L_bo{n}:")
    xlane("v_add_f32", vLs, vT0, vT1)
    I(f"v_lshlrev_b32 v{vT2}, 2, v{vLane}")
    I(f"v_add_u32 v{vT2}, s{sScr}, v{vT2}")
    I(f"v_add_u32 v{vT3}, 0x400, v{vT2}")
    I(f"v_lshlrev_b32 v{vT4}, 3, v{vLane}")
    I(f"v_add_u32 v{vT4}, s{sScr}, v{vT4}")
    I(f"s_mov_b64 exec, 0xffff")
    for n in range(16):
        a = vT2 if n < 8 else vT3
        o = (n & 7) * 32
        I(f"ds_write2_b32 v{a}, v{vAcc+4*n}, v{vAcc+4*n+1} offset0:{o} offset1:{o+16}")
    I(f"s_mov_b64 exec, 3")
    I(f"ds_write_b64 v{vT4}, v[{vM}:{vM+1}] offset:2048")
    I(f"s_mov_b64 exec, -1")

def compute(slot, tag):
    INCOMP[0] = True
    compute_(slot, tag)
    INCOMP[0] = False

def compute_(slot, tag):
    so = slot * SLOT
    I(f"s_add_u32 s{sT0}, s{sCnt}, 1")
    I(f"v_readlane_b32 s{sCur}, v{vInfo}, s{sCnt}")
    I(f"v_readlane_b32 s{sNxt}, v{vInfo}, s{sT0}")
    I(f"s_lshl_b32 s{sNeed}, s{sCnt}, 1")
    I(f"s_add_u32 s{sNeed}, s{sNeed}, 1")
    wait_ge(0)
    I(f"s_and_b32 s{sT0}, s{sCur}, 31")
    if QSKIP:
        I(f"s_cmp_eq_u32 s{sT0}, s{sQoff}")
        I(f"s_cbranch_scc1 L_sameq_{tag}")
    I(f"s_mov_b32 s{sQoff}, s{sT0}")
    for n in range(8):
        I(f"ds_read_b128 v[{vQ+4*n}:{vQ+4*n+3}], v{vQaddr} offset:{so + n*64}")
    E(f"L_sameq_{tag}:")
    for n in range(8):
        I(f"ds_read_b128 v[{vK+4*n}:{vK+4*n+3}], v{vKaddr+(n&3)} offset:{so + (n>>2)*256}")
    I(f"s_bitcmp1_b32 s{sCur}, 16")
    I(f"s_cselect_b32 s{sScale}, 0, s{sCSC}")
    I(f"s_bfe_u32 s{sValid}, s{sCur}, 0x50008")
    for n in range(8):
        I(f"s_waitcnt lgkmcnt({7-n})")
        c = "0" if n == 0 else f"v[{vS}:{vS+3}]"
        I(f"v_mfma_f32_16x16x32_bf16 v[{vS}:{vS+3}], v[{vK+4*n}:{vK+4*n+3}], v[{vQ+4*n}:{vQ+4*n+3}], {c}")
    signal(4, sNeed)
    I(f"s_add_u32 s{sNeed}, s{sNeed}, 1")
    I(f"s_cmp_eq_u32 s{sPend}, 0")
    I(f"s_cbranch_scc1 L_nopend_{tag}")
    I("s_waitcnt vmcnt(0)")
    fire_flag()
    E(f"L_nopend_{tag}:")
    I(f"s_cmp_eq_u32 s{sValid}, 16")
    I("s_nop 1")
    I(f"s_cbranch_scc1 L_full_{tag}")
    for r in range(4):
        I(f"v_cmp_gt_u32 vcc, s{sValid}, v{vTok+r}")
        I("s_nop 1")
        I(f"v_cndmask_b32 v{vS+r}, v{vNeg}, v{vS+r}, vcc")
    E(f"L_full_{tag}:")
    I(f"v_max3_f32 v{vX}, v{vS}, v{vS+1}, v{vS+2}")
    I(f"v_max_f32 v{vX}, v{vX}, v{vS+3}")
    I(f"v_mul_f32 v{vX}, s{sScale}, v{vX}")
    I(f"v_cmp_gt_f32 vcc, v{vX}, v{vM}")
    I("s_nop 1")
    I(f"s_cbranch_vccnz L_rare_{tag}")
    E(f"L_back_{tag}:")
    for r in range(4):
        I(f"v_fma_f32 v{vX+r}, v{vS+r}, s{sScale}, -v{vM}")
    for r in range(4):
        I(f"v_exp_f32 v{vX+r}, v{vX+r}")
    I("s_nop 0")
    I(f"v_cvt_pk_bf16_f32 v{vP}, v{vX}, v{vX+1}")
    I(f"v_cvt_pk_bf16_f32 v{vP+1}, v{vX+2}, v{vX+3}")
    I(f"v_add_f32 v{vX}, v{vX}, v{vX+1}")
    I(f"v_add_f32 v{vX+2}, v{vX+2}, v{vX+3}")
    I(f"v_add_f32 v{vLs}, v{vLs}, v{vX}")
    I(f"v_add_f32 v{vLs}, v{vLs}, v{vX+2}")
    wait_ge(0)
    for n in range(16):
        I(f"ds_read_b64_tr_b16 v[{vV+2*n}:{vV+2*n+1}], v{vVaddr+(n&7)} offset:{so + (n>>3)*256}")
    for n in range(16):
        I(f"s_waitcnt lgkmcnt({15-n})")
        I(f"v_mfma_f32_16x16x16_bf16 v[{vAcc+4*n}:{vAcc+4*n+3}], v[{vP}:{vP+1}], v[{vV+2*n}:{vV+2*n+1}], v[{vAcc+4*n}:{vAcc+4*n+3}]")
    signal(4, sNeed)
    I(f"s_xor_b32 s{sT0}, s{sCur}, s{sNxt}")
    I(f"s_and_b32 s{sT0}, s{sT0}, 31")
    if "norec" not in XP:
        I(f"s_cbranch_scc1 L_flush_{tag}")
    E(f"L_noflush_{tag}:")
    I(f"s_add_u32 s{sCnt}, s{sCnt}, 1")
    I(f"s_cmp_ge_u32 s{sCnt}, s{sNW}")

def rare_path(tag):
    E(f"L_rare_{tag}:")
    I(f"v_max_f32 v{vX}, v{vX}, v{vM}")
    xlane("v_max_f32", vX, vX+1, vX+2)
    I(f"v_sub_f32 v{vX+1}, v{vM}, v{vX}")
    I(f"v_exp_f32 v{vX+1}, v{vX+1}")
    I(f"v_mov_b32 v{vM}, v{vX}")
    I("s_nop 0")
    I(f"v_mul_f32 v{vLs}, v{vLs}, v{vX+1}")
    I(f"v_mov_b32_dpp v{vA0}, v{vX+1} quad_perm:[0,0,0,0] row_mask:0xf bank_mask:0xf")
    I(f"v_mov_b32_dpp v{vA1}, v{vX+1} quad_perm:[1,1,1,1] row_mask:0xf bank_mask:0xf")
    for n in range(16):
        I(f"v_mul_f32 v{vAcc+4*n}, v{vA0}, v{vAcc+4*n}")
        I(f"v_mul_f32 v{vAcc+4*n+1}, v{vA1}, v{vAcc+4*n+1}")
    I(f"s_branch L_back_{tag}")

def flush_path(tag):
    E(f"L_flush_{tag}:")
    I(f"s_cmp_eq_u32 s{sPend}, 0")
    I(f"s_cbranch_scc1 L_fl_np_{tag}")
    I("s_waitcnt vmcnt(0)")
    fire_flag()
    E(f"L_fl_np_{tag}:")
    I("s_nop 7")
    dump_partial()
    I(f"s_and_b32 s{sJ}, s{sCur}, 31")
    I(f"v_mov_b32 v{vT1}, 1")
    I(f"s_lshl_b32 s{sT0}, s{sJ}, 2")
    I(f"s_add_u32 s{sT0}, s{sT0}, {ARR_BASE}")
    I(f"v_mov_b32 v{vT0}, s{sT0}")
    I(f"v_readlane_b32 s{sT1}, v{vEX}, s{sJ}")
    I(f"v_readlane_b32 s{sT2}, v{vEXI}, s{sJ}")
    I("s_mov_b64 exec, 1")
    I(f"ds_write_b32 v{vSync}, v{vT1} offset:12")
    I("s_waitcnt lgkmcnt(0)")
    I(f"ds_add_rtn_u32 v{vT2}, v{vT0}, v{vT1}")
    I("s_mov_b64 exec, -1")
    I(f"s_max_u32 s{sT1}, s{sT1}, s{sCAPB}")
    I(f"s_min_u32 s{sT2}, s{sT2}, s{sCAPE}")
    I(f"s_sub_u32 s{sLen}, s{sT2}, s{sT1}")
    I(f"s_sub_u32 s{sK0}, s{sT1}, s{sCAPB}")
    I(f"s_min_u32 s{sT3}, s{sLen}, 4")
    I(f"v_mov_b32 v{vM}, 0xff800000")
    I("s_waitcnt lgkmcnt(0)")
    I(f"v_readfirstlane_b32 s{sT0}, v{vT2}")
    I("s_nop 1")
    I(f"s_add_u32 s{sT0}, s{sT0}, 1")
    I(f"s_cmp_lg_u32 s{sT0}, s{sT3}")
    I(f"s_cbranch_scc1 L_noflush_{tag}")
    I(f"v_lshrrev_b32 v{vT3}, 2, v{vLane}")
    I(f"v_and_b32 v{vT3}, 1, v{vT3}")
    I(f"v_lshlrev_b32 v{vT3}, 3, v{vT3}")
    I(f"v_add_u32 v{vT3}, {TAB_BASE + 2048}, v{vT3}")
    I(f"v_add_u32 v{vT4}, {TAB_BASE}, v{vQoff}")
    I(f"v_mov_b32 v{vF+8}, 0xff800000")
    I(f"v_mov_b32 v{vF+9}, 0")
    for i in range(8):
        I(f"v_mov_b32 v{vF+i}, 0")
    I(f"v_mov_b32 v{vT5}, {SYNC_BASE}")
    I(f"v_mov_b32 v{vT6}, 0")
    for w in range(4):
        I(f"s_sub_u32 s{sT0}, {w}, s{sK0}")
        I(f"s_and_b32 s{sT0}, s{sT0}, 3")
        I(f"s_cmp_ge_u32 s{sT0}, s{sLen}")
        I(f"s_cbranch_scc1 L_fm{w}_{tag}")
        I(f"ds_read_b64 v[{vRT+8}:{vRT+9}], v{vT3} offset:{w*4096}")
        I(f"ds_read_b128 v[{vRT}:{vRT+3}], v{vT4} offset:{w*4096}")
        I(f"ds_read_b128 v[{vRT+4}:{vRT+7}], v{vT4} offset:{w*4096+1024}")
        I("s_waitcnt lgkmcnt(0)")
        I("s_mov_b64 exec, 1")
        I(f"ds_write_b32 v{vT5}, v{vT6} offset:{w*16+12}")
        I("s_mov_b64 exec, -1")
        I(f"v_max_f32 v{vT0}, v{vF+8}, v{vRT+8}")
        I(f"v_sub_f32 v{vT1}, v{vF+8}, v{vT0}")
        I(f"v_sub_f32 v{vT2}, v{vRT+8}, v{vT0}")
        I(f"v_exp_f32 v{vT1}, v{vT1}")
        I(f"v_exp_f32 v{vT2}, v{vT2}")
        I(f"v_mov_b32 v{vF+8}, v{vT0}")
        I(f"v_mul_f32 v{vF+9}, v{vF+9}, v{vT1}")
        I(f"v_fmac_f32 v{vF+9}, v{vRT+9}, v{vT2}")
        for i in range(8):
            I(f"v_mul_f32 v{vF+i}, v{vF+i}, v{vT1}")
            I(f"v_fmac_f32 v{vF+i}, v{vRT+i}, v{vT2}")
        E(f"L_fm{w}_{tag}:")
    I(f"s_lshl_b32 s{sT1}, s{sJ}, 5")
    I(f"s_add_u32 s{sT1}, s{sT1}, s{sB}")
    I(f"s_lshl_b32 s{sT1}, s{sT1}, 3")
    I(f"s_add_u32 s{sT1}, s{sT1}, s{sH}")
    I(f"s_mul_i32 s{sRec}, s{sT1}, {RECSZ}")
    I(f"v_lshlrev_b32 v{vT0}, 3, v{vLane}")
    I(f"buffer_store_dwordx4 v[{vF}:{vF+3}], v{vQoff}, s[{sWS}:{sWS+3}], s{sRec} offen sc1")
    I(f"buffer_store_dwordx4 v[{vF+4}:{vF+7}], v{vQoff}, s[{sWS}:{sWS+3}], s{sRec} offen offset:1024 sc1")
    I(f"s_mov_b64 exec, 0xffff")
    I(f"buffer_store_dwordx2 v[{vF+8}:{vF+9}], v{vT0}, s[{sWS}:{sWS+3}], s{sRec} offen offset:2048 sc1")
    I(f"s_mov_b64 exec, -1")
    I(f"buffer_load_dwordx2 v[{vNon}:{vNon+1}], v{vT6}, s[{sD}:{sD+3}], 0 offen")
    I(f"s_mov_b32 s{sPend}, 1")
    I(f"s_branch L_noflush_{tag}")

def merge_one(m, l, o0, o1):
    M, Ls, A0, A1 = vR, vR+1, vR+2, vR+3
    I(f"v_max_f32 v{vT0}, v{M}, v{m}")
    I(f"v_sub_f32 v{vT1}, v{M}, v{vT0}")
    I(f"v_sub_f32 v{vT2}, v{m}, v{vT0}")
    I(f"v_exp_f32 v{vT1}, v{vT1}")
    I(f"v_exp_f32 v{vT2}, v{vT2}")
    I(f"v_mov_b32 v{M}, v{vT0}")
    I(f"v_mul_f32 v{Ls}, v{Ls}, v{vT1}")
    I(f"v_mul_f32 v{A0}, v{A0}, v{vT1}")
    I(f"v_mul_f32 v{A1}, v{A1}, v{vT1}")
    I(f"v_fmac_f32 v{Ls}, v{l}, v{vT2}")
    I(f"v_fmac_f32 v{A0}, v{o0}, v{vT2}")
    I(f"v_fmac_f32 v{A1}, v{o1}, v{vT2}")

def record_block():
    def ret():
        I(f"s_cmp_eq_u32 s{sRecBlock}, 0")
        I("s_cbranch_scc1 L_loop_go")
    E("L_rectry:")
    I(f"s_cmp_eq_u32 s{sRecState}, 2")
    I("s_cbranch_scc1 L_rs_check")
    I(f"s_cmp_eq_u32 s{sRecState}, 3")
    I("s_cbranch_scc1 L_rs_merge")
    E("L_rs_poll:")
    I(f"v_mov_b32 v{vT0}, 0")
    I(f"s_mov_b32 s{sT0}, {FLAG_BASE}")
    I(f"s_cmp_lg_u32 s{sSpin2}, 0")
    I("s_cbranch_scc1 L_pn1")
    I(f"buffer_load_dwordx2 v[{vRT}:{vRT+1}], v{vT0}, s[{sD}:{sD+3}], 0 offen")
    I("s_branch L_pn2")
    E("L_pn1:")
    I(f"buffer_load_dwordx2 v[{vRT}:{vRT+1}], v{vT0}, s[{sD}:{sD+3}], 0 offen sc1")
    E("L_pn2:")
    I(f"s_mov_b32 s{sSpin2}, 1")
    I(f"s_mov_b64 exec, s[{sNeedM}:{sNeedM+1}]")
    I(f"buffer_load_dwordx2 v[{vRT+2}:{vRT+3}], v{vFlagOff}, s[{sWS}:{sWS+3}], s{sT0} offen sc1")
    I("s_mov_b64 exec, -1")
    I(f"s_mov_b32 s{sRecState}, 2")
    ret()
    E("L_rs_check:")
    I("s_waitcnt vmcnt(0)")
    I(f"s_mov_b64 exec, s[{sNeedM}:{sNeedM+1}]")
    I(f"v_cmp_ne_u64 vcc, v[{vRT}:{vRT+1}], v[{vRT+2}:{vRT+3}]")
    I(f"v_cmp_eq_u32 s[{sM2}:{sM2+1}], 0, v{vRT}")
    I("s_mov_b64 exec, -1")
    I("s_nop 2")
    I(f"s_or_b64 vcc, vcc, s[{sM2}:{sM2+1}]")
    I(f"s_cmp_eq_u64 vcc, 0")
    I("s_cbranch_scc1 L_ready")
    I(f"s_mov_b32 s{sRecState}, 0")
    ret()
    I("s_sleep 8")
    I(f"s_add_u32 s{sSpin}, s{sSpin}, 1")
    I(f"s_cmp_lt_u32 s{sSpin}, 0x200000")
    I("s_cbranch_scc1 L_rs_poll")
    E("L_ready:")
    I(f"s_mov_b32 s{sX0}, s{sEXB}")
    I(f"s_add_u32 s{sXE}, s{sEXB}, s{sEXN}")
    E("L_rs_issue:")
    I(f"s_mov_b32 s{sLen}, 0")
    for q in range(4):
        if q:
            I(f"s_cmp_ge_u32 s{sX0}, s{sXE}")
            I("s_cbranch_scc1 L_rs_issued")
        I(f"v_cmp_ge_u32 vcc, s{sX0}, v{vCAPI}")
        I("s_nop 3")
        I(f"s_bcnt1_i32_b64 s{sJ}, vcc")
        I(f"s_lshl_b32 s{sT0}, s{sB}, 5")
        I(f"v_readlane_b32 s{sT1}, v{vCAPI}, s{sJ}")
        I(f"s_add_u32 s{sT0}, s{sT0}, s{sJ}")
        I(f"s_lshl_b32 s{sT0}, s{sT0}, 3")
        I(f"s_add_u32 s{sT0}, s{sT0}, s{sH}")
        I(f"s_mul_i32 s{sRec}, s{sT0}, {RECSZ}")
        I(f"s_min_u32 s{sX0}, s{sT1}, s{sXE}")
        I(f"buffer_load_dwordx2 v[{vRT+4*q}:{vRT+4*q+1}], v{vRS2}, s[{sWS}:{sWS+3}], s{sRec} offen sc1")
        I(f"buffer_load_dwordx2 v[{vRT+4*q+2}:{vRT+4*q+3}], v{vRO}, s[{sWS}:{sWS+3}], s{sRec} offen sc1")
        I(f"s_mov_b32 s{sLen}, {q+1}")
    E("L_rs_issued:")
    I(f"s_mov_b32 s{sRecState}, 3")
    ret()
    E("L_rs_merge:")
    I("s_waitcnt vmcnt(0)")
    for q in range(4):
        if q:
            I(f"s_cmp_le_u32 s{sLen}, {q}")
            I("s_cbranch_scc1 L_rs_merged")
        merge_one(vRT+4*q, vRT+4*q+1, vRT+4*q+2, vRT+4*q+3)
    E("L_rs_merged:")
    I(f"s_cmp_lt_u32 s{sX0}, s{sXE}")
    I("s_cbranch_scc1 L_rs_issue")
    I(f"s_mov_b32 s{sRecState}, 1")
    ret()
    I("s_branch L_store")

def gen():
    E("; paged attention decode: B=32 Hq=16 Hkv=8 D=256 block=16 tokens, 128 blocks/seq")
    E(f"; @launch grid=(256,1,1) block=(512,1,1) lds={LDS_BYTES}")
    E('.amdgcn_target "amdgcn-amd-amdhsa--gfx950"')
    E(".text")
    E(f".globl {NAME}_kernel")
    E(".p2align 8")
    E(f".type {NAME}_kernel,@function")
    E(f"{NAME}_kernel:")
    I("s_cmp_ge_u32 s2, 256")
    I("s_cbranch_scc1 L_end")
    stamp(0)
    I(f"s_load_dwordx16 s[{sKA}:{sKA+15}], s[0:1], 0")
    I(f"v_and_b32 v{vLane}, 63, v0")
    I(f"v_lshrrev_b32 v{vT0}, 6, v0")
    I(f"s_lshr_b32 s{sB}, s2, 3")
    I(f"s_and_b32 s{sH}, s2, 7")
    I(f"v_readfirstlane_b32 s{sWave}, v{vT0}")
    if "nocpf" not in XP:
        I(f"s_getpc_b64 s[{sM2}:{sM2+1}]")
        I(f"v_lshlrev_b32 v{vT1}, 7, v0")
        I(f"v_min_u32 v{vT1}, L_code_end-{NAME}_kernel-128, v{vT1}")
        I(f"s_cmp_gt_u32 s{sWave}, 1")
        I("s_cbranch_scc1 L_nocpf")
        I(f"global_load_dword v246, v{vT1}, s[{sM2}:{sM2+1}]")
        E("L_nocpf:")
    I(f"v_lshlrev_b32 v{vQoff}, 4, v{vLane}")
    I(f"v_lshlrev_b32 v{vT7}, 2, v{vLane}")
    I(f"s_and_b32 s{sW}, s{sWave}, 3")
    I(f"s_cmp_lt_u32 s{sWave}, 4")
    I(f"s_cselect_b32 s{sRole}, 0, 1")
    I(f"s_mul_i32 s{sWB}, s{sW}, {WAVE_RING}")
    I(f"s_lshl_b32 s{sT0}, s{sW}, 12")
    I(f"s_add_u32 s{sScr}, s{sT0}, {TAB_BASE}")
    I(f"s_lshl_b32 s{sT0}, s{sWave}, 11")
    I(f"v_add_u32 v{vT6}, s{sT0}, v{vQoff}")
    I(f"s_add_u32 m0, s{sT0}, {TAB_BASE}")
    I(f"s_lshl_b32 s{sT1}, s{sW}, 4")
    I(f"s_add_u32 s{sT1}, s{sT1}, {SYNC_BASE}")
    I(f"v_mov_b32 v{vSync}, s{sT1}")
    I("s_waitcnt lgkmcnt(0)")
    stamp(1)
    srd(sT, sKA+8, sKA+9, 128)
    I(f"buffer_load_dword v{vCE}, v{vT7}, s[{sT}:{sT+3}], 0 offen")
    srd(sQ, sKA+6, sKA+7, 16384)
    for n in range(2):
        I(f"buffer_load_dwordx4 v{vT6}, s[{sQ}:{sQ+3}], 0 offen offset:{n*1024} lds")
    srd(sWS, sKA+14, sKA+15, 1074790400)
    srd(sO, sKA+10, sKA+11, 262144)
    srd(sD, sKA+12, sKA+13, 256)
    srd(sK, sKA+2, sKA+3, 0)
    srd(sV, sKA+4, sKA+5, 0)
    I(f"v_mov_b32 v{vT0}, 0")
    I(f"v_mov_b32 v{vT1}, 0")
    I(f"ds_write_b64 v{vSync}, v[{vT0}:{vT1}]")
    I(f"ds_write_b64 v{vSync}, v[{vT0}:{vT1}] offset:8")
    I(f"v_and_b32 v{vT2}, 31, v{vLane}")
    I(f"v_lshlrev_b32 v{vT2}, 2, v{vT2}")
    I(f"v_add_u32 v{vT2}, {ARR_BASE}, v{vT2}")
    I(f"ds_write_b32 v{vT2}, v{vT0}")
    I(f"s_cmp_eq_u32 s{sRole}, 0")
    I("s_cbranch_scc1 L_lpre")
    I("s_waitcnt vmcnt(0) lgkmcnt(0)")
    I("s_barrier")
    I("s_branch L_pre_cons")
    E("L_lpre:")
    I(f"v_lshrrev_b32 v{vT0}, 5, v{vLane}")
    I(f"v_and_b32 v{vT1}, 31, v{vLane}")
    I(f"s_lshl_b32 s{sT0}, s{sH}, 9")
    I(f"v_lshlrev_b32 v{vT2}, 12, v{vT0}")
    I(f"v_add_u32 v{vT2}, s{sT0}, v{vT2}")
    I(f"v_xor_b32 v{vT3}, v{vT1}, v{vT0}")
    I(f"v_lshlrev_b32 v{vT4}, 1, v{vT0}")
    I(f"v_xor_b32 v{vT4}, v{vT1}, v{vT4}")
    for n in range(8):
        I(f"v_xor_b32 v{vT5}, {2*n}, v{vT3}")
        I(f"v_lshl_add_u32 v{vT5}, v{vT5}, 4, v{vT2}")
        I(f"v_add_u32 v{vKoff+n}, {n*8192-(n&3)*1024}, v{vT5}")
        I(f"v_xor_b32 v{vT5}, {((2*n)&7)<<1}, v{vT4}")
        I(f"v_lshl_add_u32 v{vT5}, v{vT5}, 4, v{vT2}")
        I(f"v_add_u32 v{vVoff+n}, {n*8192-(n&3)*1024}, v{vT5}")
    E("L_sched:")
    I(f"v_cmp_gt_u32 vcc, 32, v{vLane}")
    I("s_waitcnt vmcnt(2)")
    stamp(2)
    I(f"v_cmp_gt_i32 s[{sM2}:{sM2+1}], 1, v{vCE}")
    I(f"v_min_i32 v{vT0}, 0x800, v{vCE}")
    I(f"v_mov_b32 v{vT1}, 0x800")
    I(f"v_cndmask_b32 v{vCE}, v{vT0}, v{vT1}, s[{sM2}:{sM2+1}]")
    I(f"v_cndmask_b32 v{vT7}, 0, 1, s[{sM2}:{sM2+1}]")
    I(f"v_add_u32 v{vNB}, 15, v{vCE}")
    I(f"v_lshrrev_b32 v{vNB}, 4, v{vNB}")
    I(f"v_lshl_or_b32 v{vCE}, v{vT7}, 16, v{vCE}")
    I(f"v_cndmask_b32 v{vNB}, 0, v{vNB}, vcc")
    I(f"v_mov_b32 v{vT0}, v{vNB}")
    scan32(vT0)
    I("s_nop 0")
    I(f"v_readlane_b32 s{sT0}, v{vT0}, 31")
    I("s_nop 3")
    I(f"s_add_u32 s{sT0}, s{sT0}, 31")
    I(f"s_lshr_b32 s{sL}, s{sT0}, 5")
    I(f"v_subrev_u32 v{vT0}, s{sL}, v{vNB}")
    I(f"v_max_i32 v{vT1}, 0, v{vT0}")
    I(f"v_sub_u32 v{vT0}, 0, v{vT0}")
    I(f"v_max_i32 v{vT2}, 0, v{vT0}")
    I(f"v_cndmask_b32 v{vT2}, 0, v{vT2}, vcc")
    I(f"v_lshl_or_b32 v{vT3}, v{vT2}, 16, v{vT1}")
    scan32(vT3)
    I(f"v_and_b32 v{vEXI}, 0xffff, v{vT3}")
    I(f"v_lshrrev_b32 v{vCAPI}, 16, v{vT3}")
    I(f"v_sub_u32 v{vEX}, v{vEXI}, v{vT1}")
    I(f"v_sub_u32 v{vCAP}, v{vCAPI}, v{vT2}")
    I(f"v_readlane_b32 s{sT0}, v{vEXI}, 31")
    I(f"v_readlane_b32 s{sCAPB}, v{vCAP}, s{sB}")
    I(f"v_readlane_b32 s{sT1}, v{vT2}, s{sB}")
    I(f"v_readlane_b32 s{sT2}, v{vNB}, s{sB}")
    I(f"v_readlane_b32 s{sEXB}, v{vEX}, s{sB}")
    I(f"v_readlane_b32 s{sEXN}, v{vT1}, s{sB}")
    I(f"v_readlane_b32 s{sT3}, v{vCE}, s{sB}")
    I(f"v_mov_b32 v{vT0}, 0x7fffffff")
    I(f"v_cndmask_b32 v{vEXI}, v{vT0}, v{vEXI}, vcc")
    I(f"v_cndmask_b32 v{vCAPI}, v{vT0}, v{vCAPI}, vcc")
    I(f"s_sub_i32 s{sT0}, s{sT0}, s{sCAPB}")
    I(f"s_max_i32 s{sT0}, s{sT0}, 0")
    I(f"s_min_i32 s{sHC}, s{sT0}, s{sT1}")
    I(f"s_min_u32 s{sT2}, s{sT2}, s{sL}")
    I(f"s_add_u32 s{sT2}, s{sT2}, s{sHC}")
    I(f"s_sub_i32 s{sT0}, s{sT2}, s{sW}")
    I(f"s_add_i32 s{sT0}, s{sT0}, 3")
    I(f"s_ashr_i32 s{sNW}, s{sT0}, 2")
    I(f"v_lshlrev_b32 v{vT0}, 2, v{vLane}")
    I(f"v_add_u32 v{vT0}, s{sW}, v{vT0}")
    I(f"v_mov_b32 v{vT1}, s{sB}")
    I(f"v_subrev_u32 v{vT2}, s{sHC}, v{vT0}")
    I(f"v_mov_b32 v{vT3}, s{sT3}")
    I(f"v_add_u32 v{vT4}, s{sCAPB}, v{vT0}")
    I(f"v_cmp_gt_u32 s[{sM2}:{sM2+1}], s{sHC}, v{vT0}")
    I(f"s_mov_b32 s{sX0}, s{sCAPB}")
    I(f"s_add_u32 s{sXE}, s{sCAPB}, s{sHC}")
    E("L_piece:")
    I(f"s_cmp_ge_u32 s{sX0}, s{sXE}")
    I("s_cbranch_scc1 L_piece_done")
    I(f"v_cmp_ge_u32 vcc, s{sX0}, v{vEXI}")
    I("s_nop 3")
    I(f"s_bcnt1_i32_b64 s{sT0}, vcc")
    I(f"v_cmp_le_u32 vcc, s{sX0}, v{vT4}")
    I(f"v_readlane_b32 s{sT1}, v{vEX}, s{sT0}")
    I(f"v_readlane_b32 s{sX0}, v{vEXI}, s{sT0}")
    I(f"v_readlane_b32 s{sT3}, v{vCE}, s{sT0}")
    I("s_nop 3")
    I(f"s_and_b64 vcc, vcc, s[{sM2}:{sM2+1}]")
    I(f"s_sub_i32 s{sT1}, s{sL}, s{sT1}")
    I(f"v_mov_b32 v{vT5}, s{sT0}")
    I(f"v_add_u32 v{vT6}, s{sT1}, v{vT4}")
    I(f"v_mov_b32 v{vT7}, s{sT3}")
    I(f"v_cndmask_b32 v{vT1}, v{vT1}, v{vT5}, vcc")
    I(f"v_cndmask_b32 v{vT2}, v{vT2}, v{vT6}, vcc")
    I(f"v_cndmask_b32 v{vT3}, v{vT3}, v{vT7}, vcc")
    I("s_branch L_piece")
    E("L_piece_done:")
    I(f"v_cmp_gt_u32 vcc, s{sT2}, v{vT0}")
    I(f"v_and_b32 v{vT4}, 0xffff, v{vT3}")
    I(f"v_lshlrev_b32 v{vT5}, 4, v{vT2}")
    I(f"v_sub_u32 v{vT4}, v{vT4}, v{vT5}")
    I(f"v_min_i32 v{vT4}, 16, v{vT4}")
    I(f"v_cndmask_b32 v{vT4}, 0, v{vT4}, vcc")
    I(f"v_cndmask_b32 v{vT2}, 0, v{vT2}, vcc")
    I(f"v_and_b32 v{vT3}, 0x10000, v{vT3}")
    I(f"v_lshl_or_b32 v{vInfo}, v{vT4}, 8, v{vT1}")
    I(f"v_or_b32 v{vInfo}, v{vInfo}, v{vT3}")
    I(f"v_lshl_add_u32 v{vT5}, v{vT1}, 7, v{vT2}")
    I(f"v_lshlrev_b32 v{vT5}, 2, v{vT5}")
    I(f"v_add_u32 v{vT5}, {TAB_BASE}, v{vT5}")
    srd(sQ, sKA+0, sKA+1, 262144)
    stamp(3)
    I(f"s_cmp_lg_u32 s{sRole}, 0")
    I("s_cbranch_scc1 L_cons_main")
    I("s_waitcnt vmcnt(0) lgkmcnt(0)")
    I("s_barrier")
    loader()
    E("L_pre_cons:")
    I(f"v_and_b32 v{vT0}, 15, v{vLane}")
    I(f"v_lshrrev_b32 v{vT1}, 4, v{vLane}")
    I(f"v_and_b32 v{vT2}, 1, v{vLane}")
    I(f"v_lshlrev_b32 v{vT2}, 9, v{vT2}")
    I(f"v_lshl_add_u32 v{vT2}, v{vT1}, 4, v{vT2}")
    I(f"v_add_u32 v{vQaddr}, s{sWB}, v{vT2}")
    I(f"v_xor_b32 v{vT2}, v{vT1}, v{vT0}")
    I(f"v_lshlrev_b32 v{vT3}, 9, v{vT0}")
    I(f"v_add_u32 v{vT3}, s{sWB}, v{vT3}")
    I(f"v_add_u32 v{vT3}, {K_OFF}, v{vT3}")
    for q in range(4):
        I(f"v_xor_b32 v{vT4}, {4*q}, v{vT2}")
        I(f"v_lshl_add_u32 v{vKaddr+q}, v{vT4}, 4, v{vT3}")
    I(f"v_lshrrev_b32 v{vT0}, 2, v{vLane}")
    I(f"v_and_b32 v{vT2}, 3, v{vLane}")
    I(f"v_and_b32 v{vT3}, 7, v{vT0}")
    I(f"v_lshlrev_b32 v{vT3}, 1, v{vT3}")
    I(f"v_lshrrev_b32 v{vT4}, 1, v{vT2}")
    I(f"v_xor_b32 v{vT3}, v{vT3}, v{vT4}")
    I(f"v_and_b32 v{vT4}, 1, v{vT2}")
    I(f"v_lshlrev_b32 v{vT4}, 3, v{vT4}")
    I(f"v_lshl_add_u32 v{vT4}, v{vT0}, 9, v{vT4}")
    I(f"v_add_u32 v{vT4}, s{sWB}, v{vT4}")
    I(f"v_add_u32 v{vT4}, {V_OFF}, v{vT4}")
    for q in range(8):
        I(f"v_xor_b32 v{vT5}, {2*q}, v{vT3}")
        I(f"v_lshl_add_u32 v{vVaddr+q}, v{vT5}, 4, v{vT4}")
    I(f"v_lshlrev_b32 v{vTok}, 2, v{vT1}")
    for r in range(1, 4):
        I(f"v_add_u32 v{vTok+r}, {r}, v{vTok}")
    I("s_branch L_sched")
    E("L_cons_main:")
    I(f"v_mov_b32 v{vNeg}, 0xff7fffff")
    I(f"v_mov_b32 v{vM}, 0xff800000")
    I(f"v_mov_b32 v{vLs}, 0")
    for n in range(64):
        I(f"v_mov_b32 v{vAcc+n}, 0")
    I(f"s_mov_b32 s{sCSC}, 0x3db8aa3b")
    I(f"s_mov_b32 s{sPend}, 0")
    I(f"s_mov_b32 s{sCnt}, 0")
    I(f"s_mov_b32 s{sSeen}, 0")
    I(f"s_mov_b32 s{sRecBlock}, 0")
    I(f"s_mov_b32 s{sQoff}, -1")
    I(f"s_mov_b32 s{sSpin2}, 0")
    I(f"s_mov_b32 s{sSpin}, 0")
    I(f"s_add_u32 s{sT0}, s2, s{sW}")
    I(f"s_cmp_lg_u32 s{sT0}, 0")
    I("s_cbranch_scc1 L_nononce")
    I(f"s_memrealtime s[{sM2}:{sM2+1}]")
    I(f"v_mov_b32 v{vT0}, 0")
    I("s_waitcnt lgkmcnt(0)")
    I(f"s_or_b32 s{sT0}, s{sM2}, 1")
    I(f"v_mov_b32 v{vT2}, s{sT0}")
    I(f"v_mov_b32 v{vT3}, s{sM2+1}")
    I("s_mov_b64 exec, 1")
    I(f"buffer_store_dwordx2 v[{vT2}:{vT3}], v{vT0}, s[{sD}:{sD+3}], 0 offen sc1")
    I("s_mov_b64 exec, -1")
    E("L_nononce:")
    I(f"v_and_b32 v0, 255, v0")
    I(f"v_lshrrev_b32 v{vT5}, 7, v0")
    I(f"v_and_b32 v{vT6}, 127, v0")
    I(f"v_lshrrev_b32 v{vT7}, 3, v{vT6}")
    I(f"v_and_b32 v{vT6}, 7, v{vT6}")
    I(f"v_lshlrev_b32 v{vT6}, 3, v{vT6}")
    I(f"v_lshl_add_u32 v{vT6}, v{vT7}, 7, v{vT6}")
    I(f"v_lshl_add_u32 v{vRO}, v{vT5}, 6, v{vT6}")
    I(f"v_lshlrev_b32 v{vT5}, 3, v{vT5}")
    I(f"v_add_u32 v{vRS}, 0x800, v{vT5}")
    I(f"v_lshlrev_b32 v{vT5}, 2, v{vT5}")
    I(f"v_add_u32 v{vRS2}, 0x800, v{vT5}")
    I(f"v_mov_b32 v{vR}, 0xff800000")
    I(f"v_mov_b32 v{vR+1}, 0")
    I(f"v_mov_b32 v{vR+2}, 0")
    I(f"v_mov_b32 v{vR+3}, 0")
    I(f"s_add_u32 s{sXE}, s{sEXB}, s{sEXN}")
    I(f"v_min_u32 v{vT0}, s{sXE}, v{vCAPI}")
    I(f"v_max_u32 v{vT1}, s{sEXB}, v{vCAP}")
    I(f"v_sub_u32 v{vT0}, v{vT0}, v{vT1}")
    I(f"v_cmp_gt_u32 vcc, 32, v{vLane}")
    I(f"v_lshlrev_b32 v{vFlagOff}, 3, v{vLane}")
    I(f"v_add_u32 v{vFlagOff}, s{sH}, v{vFlagOff}")
    I(f"v_lshlrev_b32 v{vFlagOff}, 7, v{vFlagOff}")
    I(f"v_cndmask_b32 v{vT0}, 0, v{vT0}, vcc")
    I(f"v_cmp_lt_i32 s[{sNeedM}:{sNeedM+1}], 0, v{vT0}")
    I(f"s_add_u32 s{sCAPE}, s{sCAPB}, s{sHC}")
    I(f"v_min_u32 v{vT0}, s{sCAPE}, v{vEXI}")
    I(f"v_max_u32 v{vT1}, s{sCAPB}, v{vEX}")
    I(f"v_sub_u32 v{vT0}, v{vT0}, v{vT1}")
    I(f"v_cndmask_b32 v{vT0}, 0, v{vT0}, vcc")
    I(f"v_cmp_lt_i32 vcc, 0, v{vT0}")
    I("s_nop 3")
    I(f"s_bcnt1_i32_b64 s{sNP}, vcc")
    I(f"s_cmp_eq_u32 s{sEXN}, 0")
    I(f"s_cselect_b32 s{sRecState}, 1, 0")
    if "norec" in XP or "noread" in XP:
        I(f"s_mov_b32 s{sRecState}, 1")
    stamp(4)
    I("s_barrier")
    I(f"s_cmp_eq_u32 s{sNW}, 0")
    I("s_cbranch_scc1 L_done")
    E("L_loop:")
    I(f"s_cmp_eq_u32 s{sRecState}, 1")
    I("s_cbranch_scc1 L_loop_go")
    I(f"s_add_u32 s{sT0}, s{sCnt}, 10")
    I(f"s_cmp_ge_u32 s{sT0}, s{sNW}")
    I("s_cbranch_scc1 L_rectry")
    E("L_loop_go:")
    compute(0, "a")
    I("s_cbranch_scc1 L_done")
    compute(1, "b")
    I("s_cbranch_scc0 L_loop")
    E("L_done:")
    stamp(5)
    I(f"s_cmp_eq_u32 s{sPend}, 0")
    I("s_cbranch_scc1 L_fin0")
    I("s_waitcnt vmcnt(0)")
    fire_flag()
    E("L_fin0:")
    I("s_nop 7")
    dump_partial()
    I(f"v_add_u32 v{vT3}, {TAB_BASE}, v{vRO}")
    I(f"v_add_u32 v{vT4}, {TAB_BASE}, v{vRS}")
    I("s_waitcnt lgkmcnt(0)")
    I("s_barrier")
    for w in range(4):
        I(f"ds_read_b64 v[{vQ+4*w}:{vQ+1+4*w}], v{vT4} offset:{w*4096}")
        I(f"ds_read_b64 v[{vQ+2+4*w}:{vQ+3+4*w}], v{vT3} offset:{w*4096}")
    I("s_waitcnt lgkmcnt(0)")
    I(f"v_max3_f32 v{vT0}, v{vQ}, v{vQ+4}, v{vQ+8}")
    I(f"v_max3_f32 v{vT0}, v{vT0}, v{vQ+12}, v{vR}")
    I(f"v_sub_f32 v{vT1}, v{vR}, v{vT0}")
    for w in range(4):
        I(f"v_sub_f32 v{vQ+4*w}, v{vQ+4*w}, v{vT0}")
    I(f"v_exp_f32 v{vT1}, v{vT1}")
    for w in range(4):
        I(f"v_exp_f32 v{vQ+4*w}, v{vQ+4*w}")
    I(f"v_mov_b32 v{vR}, v{vT0}")
    I(f"v_mul_f32 v{vR+1}, v{vR+1}, v{vT1}")
    I(f"v_mul_f32 v{vR+2}, v{vR+2}, v{vT1}")
    I(f"v_mul_f32 v{vR+3}, v{vR+3}, v{vT1}")
    for w in range(4):
        I(f"v_fmac_f32 v{vR+1}, v{vQ+1+4*w}, v{vQ+4*w}")
        I(f"v_fmac_f32 v{vR+2}, v{vQ+2+4*w}, v{vQ+4*w}")
        I(f"v_fmac_f32 v{vR+3}, v{vQ+3+4*w}, v{vQ+4*w}")
    stamp(6)
    I(f"s_mov_b32 s{sRecBlock}, 1")
    I(f"s_cmp_lg_u32 s{sRecState}, 1")
    I("s_cbranch_scc1 L_rectry")
    E("L_store:")
    I(f"v_rcp_f32 v{vT0}, v{vR+1}")
    I(f"s_lshl_b32 s{sT0}, s2, 10")
    I(f"v_lshlrev_b32 v{vT1}, 2, v0")
    I(f"v_mul_f32 v{vR+2}, v{vR+2}, v{vT0}")
    I(f"v_mul_f32 v{vR+3}, v{vR+3}, v{vT0}")
    I(f"v_cvt_pk_bf16_f32 v{vT2}, v{vR+2}, v{vR+3}")
    I(f"buffer_store_dword v{vT2}, v{vT1}, s[{sO}:{sO+3}], s{sT0} offen" + os.environ.get("OUTPOL", ""))
    stamp(7)
    stamp_store()
    E("L_end:")
    I("s_endpgm")
    for tag in ("a", "b"):
        rare_path(tag)
        flush_path(tag)
    record_block()
    E("L_code_end:")
    E('.section .rodata,"a"')
    E(".p2align 6")
    E(f".amdhsa_kernel {NAME}_kernel")
    E("  .amdhsa_next_free_vgpr 256")
    E("  .amdhsa_next_free_sgpr 102")
    E("  .amdhsa_accum_offset 256")
    E("  .amdhsa_group_segment_fixed_size 0")
    E("  .amdhsa_kernarg_size 64")
    E("  .amdhsa_user_sgpr_count 2")
    E("  .amdhsa_user_sgpr_kernarg_segment_ptr 1")
    E("  .amdhsa_system_sgpr_workgroup_id_x 1")
    E(".end_amdhsa_kernel")

gen()
path = sys.argv[1] if len(sys.argv) > 1 else f"cdna_kernels/{NAME}.s"
open(path, "w").write("\n".join(out) + "\n")
print("wrote", path, len(out), "lines")
```

```python
import sys, os
DIAG = os.environ.get("DIAG", "0") == "1"
WGN = int(os.environ.get("WGN", "2"))
QSKIP = os.environ.get("QSKIP", "0") == "1"
GSZ = [4, 4, 4, 4] if QSKIP else [5, 4, 4, 4]
WGN2 = int(os.environ.get("WGN2", "0"))
XT = int(os.environ.get("XT", "6"))
ITEMG = int(os.environ.get("ITEMG", "0"))
TILEG = int(os.environ.get("TILEG", "0"))
WIN = int(os.environ.get("WIN", "0"))
SLEEP = int(os.environ.get("SLEEP", "1"))
XP = os.environ.get("XP", "")
PARTIAL = "partial" in XP
PLAINN = "sc1nonce" not in XP

NAME = "standalone__paged_block_table_kv_pagedattention__sampling"

SLOT = 17408
WAVE_RING = 2 * SLOT
K_OFF = 1024
V_OFF = 9216
TAB_BASE = 4 * WAVE_RING
SYNC_BASE = TAB_BASE + 16384
ARR_BASE = SYNC_BASE + 64
LDS_BYTES = ARR_BASE + 128
FLAG_BASE = 0x10000000
RECSZ = 2304

out = []
def E(s=""):
    out.append(s)
KPOL = os.environ.get("KPOL", "nt")
VPOL = os.environ.get("VPOL", "nt")
def I(s):
    if s.endswith(" nt lds"):
        pol = KPOL if ("s[%d:" % sK) in s else VPOL
        s = s[:-len(" nt lds")] + (" " + pol if pol else "") + " lds"
    if "nords" in XP and (s.startswith("ds_read_b128 v[%d" % 0) or s.startswith("ds_read_b64_tr") or (s.startswith("ds_read_b128") and "offset" in s and INCOMP[0])):
        return
    if "nomfma" in XP and s.startswith("v_mfma"):
        return
    if "nostore" in XP and s.startswith("buffer_store_dwordx4") and "sc1" in s:
        return
    if "plainst" in XP and s.startswith("buffer_store_dwordx4") and "sc1" in s:
        s = s.replace(" sc1", "")
    if "ntst" in XP and s.startswith("buffer_store_dwordx4") and "sc1" in s:
        s = s.replace(" sc1", " sc1 nt")
    if "noatom" in XP and s.startswith("buffer_atomic"):
        return
    out.append("    " + s)
INCOMP = [False]

sVlo, sVhi, sHQ, sValid, sRole, sSo, sSum, sSeen, sNeed, sWave = 3, 4, 5, 6, 7, 8, 9, 10, 11, 12
sRecState, sRecBlock, sSpin2 = 13, 14, 15
sKA = 16
sK = 32
sV = 36
sQ = 40
sT = 44
sWS = 48
sO = 52
sD = 56
sB, sH, sW = 60, 61, 62
sL = 63
sWB = 64
sNW = 65
sI = 66
sCur, sNxt, sNew = 67, 68, 69
sPhys = 70
sT0, sT1, sT2, sT3 = 71, 72, 73, 74
sPend, sNP, sCAPE = 75, 76, 77
sScale = 78
sHC = 79
sCAPB = 80
sEXB, sEXN = 81, 82
sX0, sXE = 83, 84
sCnt = 85
sQoff = 86
sScr = 87
sNeedM = 88
sM2 = 90
sExp = 92
sRec = 93
sK0 = 94
sLen = 95
sJ = 96
sSpin = 97
sCSC = 98

vLane = 1
vT0, vT1, vT2, vT3, vT4, vT5, vT6, vT7 = 2, 3, 4, 5, 6, 7, 8, 9
vPhys, vInfo = 10, 11
vCAP, vCAPI = 12, 13
vEX, vEXI = 14, 15
vKoff = 16
vVoff = 24
vRT = 16
vQoff = 32
vQaddr = 33
vKaddr = 34
vVaddr = 38
vTok = 46
vM, vLs = 50, 51
vS = 52
vP = 56
vX = 58
vA0, vA1 = 62, 63
vQ = 64
vK = 96
vV = 128
vAcc = 160
vNeg = 224
vCE = 225
vNB = 226
vSync = 227
vR = 228
vRO, vRS = 232, 233
vFlagOff = 234
vRS2 = 235
vF = 236
vNon = 246

def stamp(k):
    if not DIAG:
        return
    I("s_memrealtime s[100:101]")
    I("s_waitcnt lgkmcnt(0)")
    I(f"v_mov_b32 v{248+k}, s100")

def stamp_store():
    if not DIAG:
        return
    I(f"s_lshl_b32 s{sT0}, s2, 3")
    I(f"s_add_u32 s{sT0}, s{sT0}, s{sWave}")
    I(f"s_lshl_b32 s{sT0}, s{sT0}, 5")
    I(f"s_add_u32 s{sT0}, s{sT0}, 0x20000000")
    I(f"v_mov_b32 v{vT1}, 0")
    I("s_mov_b64 exec, 1")
    I(f"buffer_store_dwordx4 v[248:251], v{vT1}, s[{sWS}:{sWS+3}], s{sT0} offen")
    I(f"buffer_store_dwordx4 v[252:255], v{vT1}, s[{sWS}:{sWS+3}], s{sT0} offen offset:16")

def srd(s, lo, hi, nrec):
    I(f"s_mov_b32 s{s}, s{lo}")
    I(f"s_and_b32 s{s+1}, s{hi}, 0xffff")
    I(f"s_mov_b32 s{s+2}, {nrec}")
    I(f"s_mov_b32 s{s+3}, 0x00020000")

def scan32(v):
    for sh in (1, 2, 4, 8):
        I("s_nop 1")
        I(f"v_add_u32_dpp v{v}, v{v}, v{v} row_shr:{sh} row_mask:0xf bank_mask:0xf bound_ctrl:0")
    I("s_nop 1")
    I(f"v_add_u32_dpp v{v}, v{v}, v{v} row_bcast:15 row_mask:0xa bank_mask:0xf")

def xlane(op, v, ta, tb):
    I(f"v_mov_b32 v{ta}, v{v}")
    I(f"v_mov_b32 v{tb}, v{v}")
    I("s_nop 1")
    I(f"v_permlane32_swap_b32 v{ta}, v{tb}")
    I("s_nop 1")
    I(f"{op} v{v}, v{ta}, v{tb}")
    I(f"v_mov_b32 v{ta}, v{v}")
    I("s_nop 0")
    I(f"v_mov_b32 v{tb}, v{v}")
    I("s_nop 1")
    I(f"v_permlane16_swap_b32 v{ta}, v{tb}")
    I("s_nop 1")
    I(f"{op} v{v}, v{ta}, v{tb}")

lab = [0]
def wait_ge(off):
    lab[0] += 1
    n = lab[0]
    I(f"s_cmp_ge_i32 s{sSeen}, s{sNeed}")
    I(f"s_cbranch_scc1 L_wok{n}")
    E(f"L_wp{n}:")
    I(f"ds_read_b32 v{vT0}, v{vSync} offset:{off}")
    I("s_waitcnt lgkmcnt(0)")
    I(f"v_readfirstlane_b32 s{sSeen}, v{vT0}")
    I("s_nop 1")
    I(f"s_cmp_ge_i32 s{sSeen}, s{sNeed}")
    I(f"s_cbranch_scc1 L_wok{n}")
    I(f"s_sleep {SLEEP}")
    I(f"s_branch L_wp{n}")
    E(f"L_wok{n}:")

def signal(off, sval):
    I(f"v_mov_b32 v{vT1}, s{sval}")
    I("s_mov_b64 exec, 1")
    I(f"ds_write_b32 v{vSync}, v{vT1} offset:{off}")
    I("s_mov_b64 exec, -1")

def issue_group(g, first=False):
    if g == 0:
        I(f"v_readlane_b32 s{sNew}, v{vInfo}, s{sI}")
        I(f"v_readlane_b32 s{sPhys}, v{vPhys}, s{sI}")
        I(f"s_sub_u32 s{sSo}, s{sSum}, s{sSo}")
        I(f"s_lshl_b32 s{sNeed}, s{sI}, 1")
        I(f"s_sub_i32 s{sNeed}, s{sNeed}, 3")
        I(f"s_add_u32 s{sI}, s{sI}, 1")
        I(f"s_lshl_b32 s{sVlo}, s{sPhys}, 16")
        I(f"s_lshr_b32 s{sVhi}, s{sPhys}, 16")
        I(f"s_add_u32 s{sK}, s{sKA+2}, s{sVlo}")
        I(f"s_addc_u32 s{sK+1}, s{sKA+3}, s{sVhi}")
        I(f"s_bfe_u32 s{sT2}, s{sNew}, 0x50008")
        I(f"s_lshl_b32 s{sK+2}, s{sT2}, 12")
        I(f"s_and_b32 s{sT3}, s{sNew}, 31")
        I(f"s_lshl_b32 s{sT3}, s{sT3}, 13")
        I(f"s_add_u32 s{sT3}, s{sT3}, s{sHQ}")
        if not first:
            wait_ge(4)
        I(f"s_mov_b32 m0, s{sSo}")
        if QSKIP:
            lab[0] += 1
            I(f"s_cmp_eq_u32 s{sT3}, s{sQoff}")
            I(f"s_cbranch_scc1 L_noq{lab[0]}")
        I(f"s_mov_b32 s{sQoff}, s{sT3}")
        I(f"buffer_load_dwordx4 v{vQoff}, s[{sQ}:{sQ+3}], s{sQoff} offen lds")
        if QSKIP:
            E(f"L_noq{lab[0]}:")
        I(f"s_add_u32 m0, s{sSo}, {K_OFF}")
        I("s_nop 0")
        for n in range(4):
            I(f"buffer_load_dwordx4 v{vKoff+n}, s[{sK}:{sK+3}], 0 offen offset:{n*1024} nt lds")
    elif g == 1:
        I(f"s_add_u32 m0, s{sSo}, {K_OFF + 4096}")
        I("s_nop 0")
        for n in range(4, 8):
            I(f"buffer_load_dwordx4 v{vKoff+n}, s[{sK}:{sK+3}], 0 offen offset:{(n&3)*1024} nt lds")
    elif g == 2:
        I(f"s_add_u32 s{sNeed}, s{sNeed}, 1")
        if not first:
            wait_ge(4)
        I(f"s_add_u32 m0, s{sSo}, {V_OFF}")
        I(f"s_add_u32 s{sV}, s{sKA+4}, s{sVlo}")
        I(f"s_addc_u32 s{sV+1}, s{sKA+5}, s{sVhi}")
        I(f"s_mov_b32 s{sV+2}, s{sK+2}")
        for n in range(4):
            I(f"buffer_load_dwordx4 v{vVoff+n}, s[{sV}:{sV+3}], 0 offen offset:{n*1024} nt lds")
    else:
        I(f"s_add_u32 m0, s{sSo}, {V_OFF + 4096}")
        I("s_nop 0")
        for n in range(4, 8):
            I(f"buffer_load_dwordx4 v{vVoff+n}, s[{sV}:{sV+3}], 0 offen offset:{(n&3)*1024} nt lds")

def issue_one(p, first=False):
    if p == 0:
        I(f"v_readlane_b32 s{sNew}, v{vInfo}, s{sI}")
        I(f"v_readlane_b32 s{sPhys}, v{vPhys}, s{sI}")
        I(f"s_sub_u32 s{sSo}, s{sSum}, s{sSo}")
        I(f"s_lshl_b32 s{sNeed}, s{sI}, 1")
        I(f"s_sub_i32 s{sNeed}, s{sNeed}, 3")
        I(f"s_add_u32 s{sI}, s{sI}, 1")
        I(f"s_lshl_b32 s{sVlo}, s{sPhys}, 16")
        I(f"s_lshr_b32 s{sVhi}, s{sPhys}, 16")
        I(f"s_add_u32 s{sK}, s{sKA+2}, s{sVlo}")
        I(f"s_addc_u32 s{sK+1}, s{sKA+3}, s{sVhi}")
        I(f"s_bfe_u32 s{sT2}, s{sNew}, 0x50008")
        I(f"s_lshl_b32 s{sK+2}, s{sT2}, 12")
        I(f"s_and_b32 s{sT3}, s{sNew}, 31")
        I(f"s_lshl_b32 s{sT3}, s{sT3}, 13")
        I(f"s_add_u32 s{sQoff}, s{sT3}, s{sHQ}")
        if not first:
            wait_ge(4)
        I(f"s_mov_b32 m0, s{sSo}")
        I("s_nop 0")
        I(f"buffer_load_dwordx4 v{vQoff}, s[{sQ}:{sQ+3}], s{sQoff} offen lds")
        I(f"s_add_u32 m0, s{sSo}, {K_OFF}")
    elif p <= 8:
        n = p - 1
        I(f"buffer_load_dwordx4 v{vKoff+n}, s[{sK}:{sK+3}], 0 offen offset:{(n&3)*1024} nt lds")
        if n == 3:
            I(f"s_add_u32 m0, s{sSo}, {K_OFF + 4096}")
    else:
        n = p - 9
        if n == 0:
            I(f"s_add_u32 s{sNeed}, s{sNeed}, 1")
            if not first:
                wait_ge(4)
            I(f"s_add_u32 m0, s{sSo}, {V_OFF}")
            I(f"s_add_u32 s{sV}, s{sKA+4}, s{sVlo}")
            I(f"s_addc_u32 s{sV+1}, s{sKA+5}, s{sVhi}")
            I(f"s_mov_b32 s{sV+2}, s{sK+2}")
        I(f"buffer_load_dwordx4 v{vVoff+n}, s[{sV}:{sV+3}], 0 offen offset:{(n&3)*1024} nt lds")
        if n == 3:
            I(f"s_add_u32 m0, s{sSo}, {V_OFF + 4096}")

def loader():
    E("L_loader:")
    I(f"ds_read_b32 v{vPhys}, v{vT5}")
    I(f"s_mov_b32 s{sI}, 0")
    I(f"s_mov_b32 s{sCnt}, 0")
    I(f"s_lshl_b32 s{sNW}, s{sNW}, 1")
    I(f"s_lshl_b32 s{sHQ}, s{sH}, 10")
    I(f"s_lshl_b32 s{sSum}, s{sWB}, 1")
    I(f"s_add_u32 s{sSum}, s{sSum}, {SLOT}")
    I(f"s_add_u32 s{sSo}, s{sWB}, {SLOT}")
    I(f"s_mov_b32 s{sSeen}, 0")
    I(f"s_mov_b32 s{sQoff}, -1")
    I("s_waitcnt lgkmcnt(0)")
    if WIN:
        for p in range(WIN):
            issue_one(p % 17, first=True)
            I("s_nop 0")
    elif ITEMG:
        for g in range(4):
            issue_group(g, first=True)
    elif TILEG:
        for t in range(TILEG):
            issue_group(2 * (t % 2), first=True)
            issue_group(2 * (t % 2) + 1, first=True)
    else:
        for g in range(WGN):
            issue_group(g % 4, first=True)
    stamp(4)
    I("s_barrier")
    I(f"s_cmp_eq_u32 s{sNW}, 0")
    I("s_cbranch_scc1 L_ld_done")
    E("L_ld_loop:")
    for q in range(17 if WIN else 0):
        I(f"s_waitcnt vmcnt({WIN-1})")
        if q in (8, 16):
            I(f"s_add_u32 s{sCnt}, s{sCnt}, 1")
            signal(0, sCnt)
        issue_one((q + WIN) % 17)
    if ITEMG:
        I("s_waitcnt vmcnt(8)")
        I(f"s_add_u32 s{sCnt}, s{sCnt}, 1")
        signal(0, sCnt)
        I("s_waitcnt vmcnt(0)")
        I(f"s_add_u32 s{sCnt}, s{sCnt}, 1")
        signal(0, sCnt)
        for g in range(4):
            issue_group(g)
    for t in range(2 if TILEG else 0):
        allowed = sum([9, 8][(t + k) % 2] for k in range(1, TILEG))
        I(f"s_waitcnt vmcnt({allowed})")
        I(f"s_add_u32 s{sCnt}, s{sCnt}, 1")
        signal(0, sCnt)
        issue_group(2 * ((t + TILEG) % 2))
        issue_group(2 * ((t + TILEG) % 2) + 1)
    for g in range(0 if (WIN or TILEG or ITEMG) else 4):
        allowed = sum(GSZ[(g + k) % 4] for k in range(1, WGN))
        I(f"s_waitcnt vmcnt({allowed})")
        if g in (1, 3):
            I(f"s_add_u32 s{sCnt}, s{sCnt}, 1")
            signal(0, sCnt)
        issue_group((g + WGN) % 4)
    if DIAG and "half" in XP:
        I(f"s_cmp_lg_u32 s{sCnt}, 24")
        I("s_cbranch_scc1 L_nohalf")
        stamp(3)
        E("L_nohalf:")
    if WGN2:
        I(f"s_add_u32 s{sT0}, s{sCnt}, {2*XT}")
        I(f"s_cmp_lt_u32 s{sT0}, s{sNW}")
        I("s_cbranch_scc1 L_ld_loop")
        I(f"s_cmp_ge_u32 s{sCnt}, s{sNW}")
        I("s_cbranch_scc1 L_ld_done")
        for g in range(WGN, WGN2):
            issue_group(g % 4)
        E("L_ld_loop2:")
        for g in range(4):
            allowed = sum(GSZ[(g + k) % 4] for k in range(1, WGN2))
            I(f"s_waitcnt vmcnt({allowed})")
            if g in (1, 3):
                I(f"s_add_u32 s{sCnt}, s{sCnt}, 1")
                signal(0, sCnt)
            issue_group((g + WGN2) % 4)
        I(f"s_cmp_lt_u32 s{sCnt}, s{sNW}")
        I("s_cbranch_scc1 L_ld_loop2")
    else:
        I(f"s_cmp_lt_u32 s{sCnt}, s{sNW}")
        I("s_cbranch_scc1 L_ld_loop")
    E("L_ld_done:")
    stamp(5)
    stamp_store()
    I("s_endpgm")

def fire_flag():
    lab[0] += 1
    n = lab[0]
    I(f"v_mov_b32 v{vT0}, {SYNC_BASE + 8}")
    I(f"v_mov_b32 v{vT1}, 1")
    I(f"s_mov_b64 exec, 1")
    I(f"ds_add_rtn_u32 v{vT2}, v{vT0}, v{vT1}")
    I(f"v_mov_b32 v{vT0}, 0")
    I("s_waitcnt lgkmcnt(0)")
    I(f"v_readfirstlane_b32 s{sT0}, v{vT2}")
    I("s_nop 1")
    I(f"s_add_u32 s{sT0}, s{sT0}, 1")
    I(f"s_cmp_lg_u32 s{sT0}, s{sNP}")
    I(f"s_cbranch_scc1 L_ff{n}")
    I(f"s_mov_b32 s{sSpin}, 0")
    if "partial" not in XP:
        I("s_mov_b64 exec, 0xffff")
        I(f"v_mov_b32 v{vT0}, 0")
        I(f"v_lshlrev_b32 v{vT1}, 3, v{vLane}")
    I(f"s_lshl_b32 s{sT1}, s2, 7")
    I(f"s_add_u32 s{sT1}, s{sT1}, {FLAG_BASE}")
    I(f"s_branch L_fw{n}")
    E(f"L_fn{n}:")
    I(f"buffer_load_dwordx2 v[{vNon}:{vNon+1}], v{vT0}, s[{sD}:{sD+3}], 0 offen sc1")
    I("s_waitcnt vmcnt(0)")
    E(f"L_fw{n}:")
    I(f"v_readfirstlane_b32 s{sT0}, v{vNon}")
    I("s_nop 1")
    I(f"s_cmp_lg_u32 s{sT0}, 0")
    I(f"s_cbranch_scc1 L_fs{n}")
    I("s_sleep 8")
    I(f"s_add_u32 s{sSpin}, s{sSpin}, 1")
    I(f"s_cmp_lt_u32 s{sSpin}, 0x200000")
    I(f"s_cbranch_scc1 L_fn{n}")
    E(f"L_fs{n}:")
    I(f"buffer_store_dwordx2 v[{vNon}:{vNon+1}], v{vT1}, s[{sWS}:{sWS+3}], s{sT1} offen sc1")
    E(f"L_ff{n}:")
    I(f"s_mov_b64 exec, -1")
    I(f"s_mov_b32 s{sPend}, 0")

def dump_partial():
    lab[0] += 1
    n = lab[0]
    E(f"L_bw{n}:")
    I(f"ds_read_b32 v{vT0}, v{vSync} offset:12")
    I("s_waitcnt lgkmcnt(0)")
    I(f"v_readfirstlane_b32 s{sT0}, v{vT0}")
    I("s_nop 1")
    I(f"s_cmp_eq_u32 s{sT0}, 0")
    I(f"s_cbranch_scc1 L_bo{n}")
    I("s_sleep 1")
    I(f"s_branch L_bw{n}")
    E(f"L_bo{n}:")
    xlane("v_add_f32", vLs, vT0, vT1)
    I(f"v_lshlrev_b32 v{vT2}, 2, v{vLane}")
    I(f"v_add_u32 v{vT2}, s{sScr}, v{vT2}")
    I(f"v_add_u32 v{vT3}, 0x400, v{vT2}")
    I(f"v_lshlrev_b32 v{vT4}, 3, v{vLane}")
    I(f"v_add_u32 v{vT4}, s{sScr}, v{vT4}")
    I(f"s_mov_b64 exec, 0xffff")
    for n in range(16):
        a = vT2 if n < 8 else vT3
        o = (n & 7) * 32
        I(f"ds_write2_b32 v{a}, v{vAcc+4*n}, v{vAcc+4*n+1} offset0:{o} offset1:{o+16}")
    I(f"s_mov_b64 exec, 3")
    I(f"ds_write_b64 v{vT4}, v[{vM}:{vM+1}] offset:2048")
    I(f"s_mov_b64 exec, -1")

def compute(slot, tag):
    INCOMP[0] = True
    compute_(slot, tag)
    INCOMP[0] = False

def compute_(slot, tag):
    so = slot * SLOT
    I(f"s_add_u32 s{sT0}, s{sCnt}, 1")
    I(f"v_readlane_b32 s{sCur}, v{vInfo}, s{sCnt}")
    I(f"v_readlane_b32 s{sNxt}, v{vInfo}, s{sT0}")
    I(f"s_lshl_b32 s{sNeed}, s{sCnt}, 1")
    I(f"s_add_u32 s{sNeed}, s{sNeed}, 1")
    wait_ge(0)
    I(f"s_and_b32 s{sT0}, s{sCur}, 31")
    if QSKIP:
        I(f"s_cmp_eq_u32 s{sT0}, s{sQoff}")
        I(f"s_cbranch_scc1 L_sameq_{tag}")
    I(f"s_mov_b32 s{sQoff}, s{sT0}")
    for n in range(8):
        I(f"ds_read_b128 v[{vQ+4*n}:{vQ+4*n+3}], v{vQaddr} offset:{so + n*64}")
    E(f"L_sameq_{tag}:")
    for n in range(8):
        I(f"ds_read_b128 v[{vK+4*n}:{vK+4*n+3}], v{vKaddr+(n&3)} offset:{so + (n>>2)*256}")
    I(f"s_bitcmp1_b32 s{sCur}, 16")
    I(f"s_cselect_b32 s{sScale}, 0, s{sCSC}")
    I(f"s_bfe_u32 s{sValid}, s{sCur}, 0x50008")
    for n in range(8):
        I(f"s_waitcnt lgkmcnt({7-n})")
        c = "0" if n == 0 else f"v[{vS}:{vS+3}]"
        I(f"v_mfma_f32_16x16x32_bf16 v[{vS}:{vS+3}], v[{vK+4*n}:{vK+4*n+3}], v[{vQ+4*n}:{vQ+4*n+3}], {c}")
    signal(4, sNeed)
    I(f"s_add_u32 s{sNeed}, s{sNeed}, 1")
    I(f"s_cmp_eq_u32 s{sPend}, 0")
    I(f"s_cbranch_scc1 L_nopend_{tag}")
    I("s_waitcnt vmcnt(0)")
    fire_flag()
    E(f"L_nopend_{tag}:")
    I(f"s_cmp_eq_u32 s{sValid}, 16")
    I("s_nop 1")
    I(f"s_cbranch_scc1 L_full_{tag}")
    for r in range(4):
        I(f"v_cmp_gt_u32 vcc, s{sValid}, v{vTok+r}")
        I("s_nop 1")
        I(f"v_cndmask_b32 v{vS+r}, v{vNeg}, v{vS+r}, vcc")
    E(f"L_full_{tag}:")
    I(f"v_max3_f32 v{vX}, v{vS}, v{vS+1}, v{vS+2}")
    I(f"v_max_f32 v{vX}, v{vX}, v{vS+3}")
    I(f"v_mul_f32 v{vX}, s{sScale}, v{vX}")
    I(f"v_cmp_gt_f32 vcc, v{vX}, v{vM}")
    I("s_nop 1")
    I(f"s_cbranch_vccnz L_rare_{tag}")
    E(f"L_back_{tag}:")
    for r in range(4):
        I(f"v_fma_f32 v{vX+r}, v{vS+r}, s{sScale}, -v{vM}")
    for r in range(4):
        I(f"v_exp_f32 v{vX+r}, v{vX+r}")
    I("s_nop 0")
    I(f"v_cvt_pk_bf16_f32 v{vP}, v{vX}, v{vX+1}")
    I(f"v_cvt_pk_bf16_f32 v{vP+1}, v{vX+2}, v{vX+3}")
    I(f"v_add_f32 v{vX}, v{vX}, v{vX+1}")
    I(f"v_add_f32 v{vX+2}, v{vX+2}, v{vX+3}")
    I(f"v_add_f32 v{vLs}, v{vLs}, v{vX}")
    I(f"v_add_f32 v{vLs}, v{vLs}, v{vX+2}")
    wait_ge(0)
    for n in range(16):
        I(f"ds_read_b64_tr_b16 v[{vV+2*n}:{vV+2*n+1}], v{vVaddr+(n&7)} offset:{so + (n>>3)*256}")
    for n in range(16):
        I(f"s_waitcnt lgkmcnt({15-n})")
        I(f"v_mfma_f32_16x16x16_bf16 v[{vAcc+4*n}:{vAcc+4*n+3}], v[{vP}:{vP+1}], v[{vV+2*n}:{vV+2*n+1}], v[{vAcc+4*n}:{vAcc+4*n+3}]")
    signal(4, sNeed)
    I(f"s_xor_b32 s{sT0}, s{sCur}, s{sNxt}")
    I(f"s_and_b32 s{sT0}, s{sT0}, 31")
    if "norec" not in XP:
        I(f"s_cbranch_scc1 L_flush_{tag}")
    E(f"L_noflush_{tag}:")
    I(f"s_add_u32 s{sCnt}, s{sCnt}, 1")
    I(f"s_cmp_ge_u32 s{sCnt}, s{sNW}")

def rare_path(tag):
    E(f"L_rare_{tag}:")
    I(f"v_max_f32 v{vX}, v{vX}, v{vM}")
    xlane("v_max_f32", vX, vX+1, vX+2)
    I(f"v_sub_f32 v{vX+1}, v{vM}, v{vX}")
    I(f"v_exp_f32 v{vX+1}, v{vX+1}")
    I(f"v_mov_b32 v{vM}, v{vX}")
    I("s_nop 0")
    I(f"v_mul_f32 v{vLs}, v{vLs}, v{vX+1}")
    I(f"v_mov_b32_dpp v{vA0}, v{vX+1} quad_perm:[0,0,0,0] row_mask:0xf bank_mask:0xf")
    I(f"v_mov_b32_dpp v{vA1}, v{vX+1} quad_perm:[1,1,1,1] row_mask:0xf bank_mask:0xf")
    for n in range(16):
        I(f"v_mul_f32 v{vAcc+4*n}, v{vA0}, v{vAcc+4*n}")
        I(f"v_mul_f32 v{vAcc+4*n+1}, v{vA1}, v{vAcc+4*n+1}")
    I(f"s_branch L_back_{tag}")

def flush_path(tag):
    E(f"L_flush_{tag}:")
    I(f"s_cmp_eq_u32 s{sPend}, 0")
    I(f"s_cbranch_scc1 L_fl_np_{tag}")
    I("s_waitcnt vmcnt(0)")
    fire_flag()
    E(f"L_fl_np_{tag}:")
    I("s_nop 7")
    dump_partial()
    I(f"s_and_b32 s{sJ}, s{sCur}, 31")
    I(f"v_mov_b32 v{vT1}, 1")
    I(f"s_lshl_b32 s{sT0}, s{sJ}, 2")
    I(f"s_add_u32 s{sT0}, s{sT0}, {ARR_BASE}")
    I(f"v_mov_b32 v{vT0}, s{sT0}")
    I(f"v_readlane_b32 s{sT1}, v{vEX}, s{sJ}")
    I(f"v_readlane_b32 s{sT2}, v{vEXI}, s{sJ}")
    I("s_mov_b64 exec, 1")
    I(f"ds_write_b32 v{vSync}, v{vT1} offset:12")
    I("s_waitcnt lgkmcnt(0)")
    I(f"ds_add_rtn_u32 v{vT2}, v{vT0}, v{vT1}")
    I("s_mov_b64 exec, -1")
    I(f"s_max_u32 s{sT1}, s{sT1}, s{sCAPB}")
    I(f"s_min_u32 s{sT2}, s{sT2}, s{sCAPE}")
    I(f"s_sub_u32 s{sLen}, s{sT2}, s{sT1}")
    I(f"s_sub_u32 s{sK0}, s{sT1}, s{sCAPB}")
    I(f"s_min_u32 s{sT3}, s{sLen}, 4")
    I(f"v_mov_b32 v{vM}, 0xff800000")
    I("s_waitcnt lgkmcnt(0)")
    I(f"v_readfirstlane_b32 s{sT0}, v{vT2}")
    I("s_nop 1")
    I(f"s_add_u32 s{sT0}, s{sT0}, 1")
    I(f"s_cmp_lg_u32 s{sT0}, s{sT3}")
    I(f"s_cbranch_scc1 L_noflush_{tag}")
    I(f"v_lshrrev_b32 v{vT3}, 2, v{vLane}")
    I(f"v_and_b32 v{vT3}, 1, v{vT3}")
    I(f"v_lshlrev_b32 v{vT3}, 3, v{vT3}")
    I(f"v_add_u32 v{vT3}, {TAB_BASE + 2048}, v{vT3}")
    I(f"v_add_u32 v{vT4}, {TAB_BASE}, v{vQoff}")
    I(f"v_mov_b32 v{vF+8}, 0xff800000")
    I(f"v_mov_b32 v{vF+9}, 0")
    for i in range(8):
        I(f"v_mov_b32 v{vF+i}, 0")
    I(f"v_mov_b32 v{vT5}, {SYNC_BASE}")
    I(f"v_mov_b32 v{vT6}, 0")
    for w in range(4):
        I(f"s_sub_u32 s{sT0}, {w}, s{sK0}")
        I(f"s_and_b32 s{sT0}, s{sT0}, 3")
        I(f"s_cmp_ge_u32 s{sT0}, s{sLen}")
        I(f"s_cbranch_scc1 L_fm{w}_{tag}")
        I(f"ds_read_b64 v[{vRT+8}:{vRT+9}], v{vT3} offset:{w*4096}")
        I(f"ds_read_b128 v[{vRT}:{vRT+3}], v{vT4} offset:{w*4096}")
        I(f"ds_read_b128 v[{vRT+4}:{vRT+7}], v{vT4} offset:{w*4096+1024}")
        I("s_waitcnt lgkmcnt(0)")
        I("s_mov_b64 exec, 1")
        I(f"ds_write_b32 v{vT5}, v{vT6} offset:{w*16+12}")
        I("s_mov_b64 exec, -1")
        I(f"v_max_f32 v{vT0}, v{vF+8}, v{vRT+8}")
        I(f"v_sub_f32 v{vT1}, v{vF+8}, v{vT0}")
        I(f"v_sub_f32 v{vT2}, v{vRT+8}, v{vT0}")
        I(f"v_exp_f32 v{vT1}, v{vT1}")
        I(f"v_exp_f32 v{vT2}, v{vT2}")
        I(f"v_mov_b32 v{vF+8}, v{vT0}")
        I(f"v_mul_f32 v{vF+9}, v{vF+9}, v{vT1}")
        I(f"v_fmac_f32 v{vF+9}, v{vRT+9}, v{vT2}")
        for i in range(8):
            I(f"v_mul_f32 v{vF+i}, v{vF+i}, v{vT1}")
            I(f"v_fmac_f32 v{vF+i}, v{vRT+i}, v{vT2}")
        E(f"L_fm{w}_{tag}:")
    I(f"s_lshl_b32 s{sT1}, s{sJ}, 5")
    I(f"s_add_u32 s{sT1}, s{sT1}, s{sB}")
    I(f"s_lshl_b32 s{sT1}, s{sT1}, 3")
    I(f"s_add_u32 s{sT1}, s{sT1}, s{sH}")
    I(f"s_mul_i32 s{sRec}, s{sT1}, {RECSZ}")
    I(f"v_lshlrev_b32 v{vT0}, 3, v{vLane}")
    I(f"buffer_store_dwordx4 v[{vF}:{vF+3}], v{vQoff}, s[{sWS}:{sWS+3}], s{sRec} offen sc1")
    I(f"buffer_store_dwordx4 v[{vF+4}:{vF+7}], v{vQoff}, s[{sWS}:{sWS+3}], s{sRec} offen offset:1024 sc1")
    I(f"s_mov_b64 exec, 0xffff")
    I(f"buffer_store_dwordx2 v[{vF+8}:{vF+9}], v{vT0}, s[{sWS}:{sWS+3}], s{sRec} offen offset:2048 sc1")
    I(f"s_mov_b64 exec, -1")
    I(f"buffer_load_dwordx2 v[{vNon}:{vNon+1}], v{vT6}, s[{sD}:{sD+3}], 0 offen")
    I(f"s_mov_b32 s{sPend}, 1")
    I(f"s_branch L_noflush_{tag}")

def merge_one(m, l, o0, o1):
    M, Ls, A0, A1 = vR, vR+1, vR+2, vR+3
    I(f"v_max_f32 v{vT0}, v{M}, v{m}")
    I(f"v_sub_f32 v{vT1}, v{M}, v{vT0}")
    I(f"v_sub_f32 v{vT2}, v{m}, v{vT0}")
    I(f"v_exp_f32 v{vT1}, v{vT1}")
    I(f"v_exp_f32 v{vT2}, v{vT2}")
    I(f"v_mov_b32 v{M}, v{vT0}")
    I(f"v_mul_f32 v{Ls}, v{Ls}, v{vT1}")
    I(f"v_mul_f32 v{A0}, v{A0}, v{vT1}")
    I(f"v_mul_f32 v{A1}, v{A1}, v{vT1}")
    I(f"v_fmac_f32 v{Ls}, v{l}, v{vT2}")
    I(f"v_fmac_f32 v{A0}, v{o0}, v{vT2}")
    I(f"v_fmac_f32 v{A1}, v{o1}, v{vT2}")

def record_block():
    def ret():
        I(f"s_cmp_eq_u32 s{sRecBlock}, 0")
        I("s_cbranch_scc1 L_loop_go")
    E("L_rectry:")
    I(f"s_cmp_eq_u32 s{sRecState}, 2")
    I("s_cbranch_scc1 L_rs_check")
    I(f"s_cmp_eq_u32 s{sRecState}, 3")
    I("s_cbranch_scc1 L_rs_merge")
    E("L_rs_poll:")
    I(f"v_mov_b32 v{vT0}, 0")
    I(f"s_mov_b32 s{sT0}, {FLAG_BASE}")
    I(f"s_cmp_lg_u32 s{sSpin2}, 0")
    I("s_cbranch_scc1 L_pn1")
    I(f"buffer_load_dwordx2 v[{vRT}:{vRT+1}], v{vT0}, s[{sD}:{sD+3}], 0 offen")
    I("s_branch L_pn2")
    E("L_pn1:")
    I(f"buffer_load_dwordx2 v[{vRT}:{vRT+1}], v{vT0}, s[{sD}:{sD+3}], 0 offen sc1")
    E("L_pn2:")
    I(f"s_mov_b32 s{sSpin2}, 1")
    I(f"s_mov_b64 exec, s[{sNeedM}:{sNeedM+1}]")
    I(f"buffer_load_dwordx2 v[{vRT+2}:{vRT+3}], v{vFlagOff}, s[{sWS}:{sWS+3}], s{sT0} offen sc1")
    I("s_mov_b64 exec, -1")
    I(f"s_mov_b32 s{sRecState}, 2")
    ret()
    E("L_rs_check:")
    I("s_waitcnt vmcnt(0)")
    I(f"s_mov_b64 exec, s[{sNeedM}:{sNeedM+1}]")
    I(f"v_cmp_ne_u64 vcc, v[{vRT}:{vRT+1}], v[{vRT+2}:{vRT+3}]")
    I(f"v_cmp_eq_u32 s[{sM2}:{sM2+1}], 0, v{vRT}")
    I("s_mov_b64 exec, -1")
    I("s_nop 2")
    I(f"s_or_b64 vcc, vcc, s[{sM2}:{sM2+1}]")
    I(f"s_cmp_eq_u64 vcc, 0")
    I("s_cbranch_scc1 L_ready")
    I(f"s_mov_b32 s{sRecState}, 0")
    ret()
    I("s_sleep 8")
    I(f"s_add_u32 s{sSpin}, s{sSpin}, 1")
    I(f"s_cmp_lt_u32 s{sSpin}, 0x200000")
    I("s_cbranch_scc1 L_rs_poll")
    E("L_ready:")
    I(f"s_mov_b32 s{sX0}, s{sEXB}")
    I(f"s_add_u32 s{sXE}, s{sEXB}, s{sEXN}")
    E("L_rs_issue:")
    I(f"s_mov_b32 s{sLen}, 0")
    for q in range(4):
        if q:
            I(f"s_cmp_ge_u32 s{sX0}, s{sXE}")
            I("s_cbranch_scc1 L_rs_issued")
        I(f"v_cmp_ge_u32 vcc, s{sX0}, v{vCAPI}")
        I("s_nop 3")
        I(f"s_bcnt1_i32_b64 s{sJ}, vcc")
        I(f"s_lshl_b32 s{sT0}, s{sB}, 5")
        I(f"v_readlane_b32 s{sT1}, v{vCAPI}, s{sJ}")
        I(f"s_add_u32 s{sT0}, s{sT0}, s{sJ}")
        I(f"s_lshl_b32 s{sT0}, s{sT0}, 3")
        I(f"s_add_u32 s{sT0}, s{sT0}, s{sH}")
        I(f"s_mul_i32 s{sRec}, s{sT0}, {RECSZ}")
        I(f"s_min_u32 s{sX0}, s{sT1}, s{sXE}")
        I(f"buffer_load_dwordx2 v[{vRT+4*q}:{vRT+4*q+1}], v{vRS2}, s[{sWS}:{sWS+3}], s{sRec} offen sc1")
        I(f"buffer_load_dwordx2 v[{vRT+4*q+2}:{vRT+4*q+3}], v{vRO}, s[{sWS}:{sWS+3}], s{sRec} offen sc1")
        I(f"s_mov_b32 s{sLen}, {q+1}")
    E("L_rs_issued:")
    I(f"s_mov_b32 s{sRecState}, 3")
    ret()
    E("L_rs_merge:")
    I("s_waitcnt vmcnt(0)")
    for q in range(4):
        if q:
            I(f"s_cmp_le_u32 s{sLen}, {q}")
            I("s_cbranch_scc1 L_rs_merged")
        merge_one(vRT+4*q, vRT+4*q+1, vRT+4*q+2, vRT+4*q+3)
    E("L_rs_merged:")
    I(f"s_cmp_lt_u32 s{sX0}, s{sXE}")
    I("s_cbranch_scc1 L_rs_issue")
    I(f"s_mov_b32 s{sRecState}, 1")
    ret()
    I("s_branch L_store")

def gen():
    E("; paged attention decode: B=32 Hq=16 Hkv=8 D=256 block=16 tokens, 128 blocks/seq")
    E(f"; @launch grid=(256,1,1) block=(512,1,1) lds={LDS_BYTES}")
    E('.amdgcn_target "amdgcn-amd-amdhsa--gfx950"')
    E(".text")
    E(f".globl {NAME}_kernel")
    E(".p2align 8")
    E(f".type {NAME}_kernel,@function")
    E(f"{NAME}_kernel:")
    I("s_cmp_ge_u32 s2, 256")
    I("s_cbranch_scc1 L_end")
    stamp(0)
    I(f"s_load_dwordx16 s[{sKA}:{sKA+15}], s[0:1], 0")
    I(f"v_and_b32 v{vLane}, 63, v0")
    I(f"v_lshrrev_b32 v{vT0}, 6, v0")
    I(f"s_lshr_b32 s{sB}, s2, 3")
    I(f"s_and_b32 s{sH}, s2, 7")
    I(f"v_readfirstlane_b32 s{sWave}, v{vT0}")
    if "nocpf" not in XP:
        I(f"s_getpc_b64 s[{sM2}:{sM2+1}]")
        I(f"v_lshlrev_b32 v{vT1}, 7, v0")
        I(f"v_min_u32 v{vT1}, L_code_end-{NAME}_kernel-128, v{vT1}")
        I(f"s_cmp_gt_u32 s{sWave}, 1")
        I("s_cbranch_scc1 L_nocpf")
        I(f"global_load_dword v246, v{vT1}, s[{sM2}:{sM2+1}]")
        E("L_nocpf:")
    I(f"v_lshlrev_b32 v{vQoff}, 4, v{vLane}")
    I(f"v_lshlrev_b32 v{vT7}, 2, v{vLane}")
    I(f"s_and_b32 s{sW}, s{sWave}, 3")
    I(f"s_cmp_lt_u32 s{sWave}, 4")
    I(f"s_cselect_b32 s{sRole}, 0, 1")
    I(f"s_mul_i32 s{sWB}, s{sW}, {WAVE_RING}")
    I(f"s_lshl_b32 s{sT0}, s{sW}, 12")
    I(f"s_add_u32 s{sScr}, s{sT0}, {TAB_BASE}")
    I(f"s_lshl_b32 s{sT0}, s{sWave}, 11")
    I(f"v_add_u32 v{vT6}, s{sT0}, v{vQoff}")
    I(f"s_add_u32 m0, s{sT0}, {TAB_BASE}")
    I(f"s_lshl_b32 s{sT1}, s{sW}, 4")
    I(f"s_add_u32 s{sT1}, s{sT1}, {SYNC_BASE}")
    I(f"v_mov_b32 v{vSync}, s{sT1}")
    I("s_waitcnt lgkmcnt(0)")
    stamp(1)
    srd(sT, sKA+8, sKA+9, 128)
    I(f"buffer_load_dword v{vCE}, v{vT7}, s[{sT}:{sT+3}], 0 offen")
    srd(sQ, sKA+6, sKA+7, 16384)
    for n in range(2):
        I(f"buffer_load_dwordx4 v{vT6}, s[{sQ}:{sQ+3}], 0 offen offset:{n*1024} lds")
    srd(sWS, sKA+14, sKA+15, 1074790400)
    srd(sO, sKA+10, sKA+11, 262144)
    srd(sD, sKA+12, sKA+13, 256)
    srd(sK, sKA+2, sKA+3, 0)
    srd(sV, sKA+4, sKA+5, 0)
    I(f"v_mov_b32 v{vT0}, 0")
    I(f"v_mov_b32 v{vT1}, 0")
    I(f"ds_write_b64 v{vSync}, v[{vT0}:{vT1}]")
    I(f"ds_write_b64 v{vSync}, v[{vT0}:{vT1}] offset:8")
    I(f"v_and_b32 v{vT2}, 31, v{vLane}")
    I(f"v_lshlrev_b32 v{vT2}, 2, v{vT2}")
    I(f"v_add_u32 v{vT2}, {ARR_BASE}, v{vT2}")
    I(f"ds_write_b32 v{vT2}, v{vT0}")
    I(f"s_cmp_eq_u32 s{sRole}, 0")
    I("s_cbranch_scc1 L_lpre")
    I("s_waitcnt vmcnt(0) lgkmcnt(0)")
    I("s_barrier")
    I("s_branch L_pre_cons")
    E("L_lpre:")
    I(f"v_lshrrev_b32 v{vT0}, 5, v{vLane}")
    I(f"v_and_b32 v{vT1}, 31, v{vLane}")
    I(f"s_lshl_b32 s{sT0}, s{sH}, 9")
    I(f"v_lshlrev_b32 v{vT2}, 12, v{vT0}")
    I(f"v_add_u32 v{vT2}, s{sT0}, v{vT2}")
    I(f"v_xor_b32 v{vT3}, v{vT1}, v{vT0}")
    I(f"v_lshlrev_b32 v{vT4}, 1, v{vT0}")
    I(f"v_xor_b32 v{vT4}, v{vT1}, v{vT4}")
    for n in range(8):
        I(f"v_xor_b32 v{vT5}, {2*n}, v{vT3}")
        I(f"v_lshl_add_u32 v{vT5}, v{vT5}, 4, v{vT2}")
        I(f"v_add_u32 v{vKoff+n}, {n*8192-(n&3)*1024}, v{vT5}")
        I(f"v_xor_b32 v{vT5}, {((2*n)&7)<<1}, v{vT4}")
        I(f"v_lshl_add_u32 v{vT5}, v{vT5}, 4, v{vT2}")
        I(f"v_add_u32 v{vVoff+n}, {n*8192-(n&3)*1024}, v{vT5}")
    E("L_sched:")
    I(f"v_cmp_gt_u32 vcc, 32, v{vLane}")
    I("s_waitcnt vmcnt(2)")
    stamp(2)
    I(f"v_cmp_gt_i32 s[{sM2}:{sM2+1}], 1, v{vCE}")
    I(f"v_min_i32 v{vT0}, 0x800, v{vCE}")
    I(f"v_mov_b32 v{vT1}, 0x800")
    I(f"v_cndmask_b32 v{vCE}, v{vT0}, v{vT1}, s[{sM2}:{sM2+1}]")
    I(f"v_cndmask_b32 v{vT7}, 0, 1, s[{sM2}:{sM2+1}]")
    I(f"v_add_u32 v{vNB}, 15, v{vCE}")
    I(f"v_lshrrev_b32 v{vNB}, 4, v{vNB}")
    I(f"v_lshl_or_b32 v{vCE}, v{vT7}, 16, v{vCE}")
    I(f"v_cndmask_b32 v{vNB}, 0, v{vNB}, vcc")
    I(f"v_mov_b32 v{vT0}, v{vNB}")
    scan32(vT0)
    I("s_nop 0")
    I(f"v_readlane_b32 s{sT0}, v{vT0}, 31")
    I("s_nop 3")
    I(f"s_add_u32 s{sT0}, s{sT0}, 31")
    I(f"s_lshr_b32 s{sL}, s{sT0}, 5")
    I(f"v_subrev_u32 v{vT0}, s{sL}, v{vNB}")
    I(f"v_max_i32 v{vT1}, 0, v{vT0}")
    I(f"v_sub_u32 v{vT0}, 0, v{vT0}")
    I(f"v_max_i32 v{vT2}, 0, v{vT0}")
    I(f"v_cndmask_b32 v{vT2}, 0, v{vT2}, vcc")
    I(f"v_lshl_or_b32 v{vT3}, v{vT2}, 16, v{vT1}")
    scan32(vT3)
    I(f"v_and_b32 v{vEXI}, 0xffff, v{vT3}")
    I(f"v_lshrrev_b32 v{vCAPI}, 16, v{vT3}")
    I(f"v_sub_u32 v{vEX}, v{vEXI}, v{vT1}")
    I(f"v_sub_u32 v{vCAP}, v{vCAPI}, v{vT2}")
    I(f"v_readlane_b32 s{sT0}, v{vEXI}, 31")
    I(f"v_readlane_b32 s{sCAPB}, v{vCAP}, s{sB}")
    I(f"v_readlane_b32 s{sT1}, v{vT2}, s{sB}")
    I(f"v_readlane_b32 s{sT2}, v{vNB}, s{sB}")
    I(f"v_readlane_b32 s{sEXB}, v{vEX}, s{sB}")
    I(f"v_readlane_b32 s{sEXN}, v{vT1}, s{sB}")
    I(f"v_readlane_b32 s{sT3}, v{vCE}, s{sB}")
    I(f"v_mov_b32 v{vT0}, 0x7fffffff")
    I(f"v_cndmask_b32 v{vEXI}, v{vT0}, v{vEXI}, vcc")
    I(f"v_cndmask_b32 v{vCAPI}, v{vT0}, v{vCAPI}, vcc")
    I(f"s_sub_i32 s{sT0}, s{sT0}, s{sCAPB}")
    I(f"s_max_i32 s{sT0}, s{sT0}, 0")
    I(f"s_min_i32 s{sHC}, s{sT0}, s{sT1}")
    I(f"s_min_u32 s{sT2}, s{sT2}, s{sL}")
    I(f"s_add_u32 s{sT2}, s{sT2}, s{sHC}")
    I(f"s_sub_i32 s{sT0}, s{sT2}, s{sW}")
    I(f"s_add_i32 s{sT0}, s{sT0}, 3")
    I(f"s_ashr_i32 s{sNW}, s{sT0}, 2")
    I(f"v_lshlrev_b32 v{vT0}, 2, v{vLane}")
    I(f"v_add_u32 v{vT0}, s{sW}, v{vT0}")
    I(f"v_mov_b32 v{vT1}, s{sB}")
    I(f"v_subrev_u32 v{vT2}, s{sHC}, v{vT0}")
    I(f"v_mov_b32 v{vT3}, s{sT3}")
    I(f"v_add_u32 v{vT4}, s{sCAPB}, v{vT0}")
    I(f"v_cmp_gt_u32 s[{sM2}:{sM2+1}], s{sHC}, v{vT0}")
    I(f"s_mov_b32 s{sX0}, s{sCAPB}")
    I(f"s_add_u32 s{sXE}, s{sCAPB}, s{sHC}")
    E("L_piece:")
    I(f"s_cmp_ge_u32 s{sX0}, s{sXE}")
    I("s_cbranch_scc1 L_piece_done")
    I(f"v_cmp_ge_u32 vcc, s{sX0}, v{vEXI}")
    I("s_nop 3")
    I(f"s_bcnt1_i32_b64 s{sT0}, vcc")
    I(f"v_cmp_le_u32 vcc, s{sX0}, v{vT4}")
    I(f"v_readlane_b32 s{sT1}, v{vEX}, s{sT0}")
    I(f"v_readlane_b32 s{sX0}, v{vEXI}, s{sT0}")
    I(f"v_readlane_b32 s{sT3}, v{vCE}, s{sT0}")
    I("s_nop 3")
    I(f"s_and_b64 vcc, vcc, s[{sM2}:{sM2+1}]")
    I(f"s_sub_i32 s{sT1}, s{sL}, s{sT1}")
    I(f"v_mov_b32 v{vT5}, s{sT0}")
    I(f"v_add_u32 v{vT6}, s{sT1}, v{vT4}")
    I(f"v_mov_b32 v{vT7}, s{sT3}")
    I(f"v_cndmask_b32 v{vT1}, v{vT1}, v{vT5}, vcc")
    I(f"v_cndmask_b32 v{vT2}, v{vT2}, v{vT6}, vcc")
    I(f"v_cndmask_b32 v{vT3}, v{vT3}, v{vT7}, vcc")
    I("s_branch L_piece")
    E("L_piece_done:")
    I(f"v_cmp_gt_u32 vcc, s{sT2}, v{vT0}")
    I(f"v_and_b32 v{vT4}, 0xffff, v{vT3}")
    I(f"v_lshlrev_b32 v{vT5}, 4, v{vT2}")
    I(f"v_sub_u32 v{vT4}, v{vT4}, v{vT5}")
    I(f"v_min_i32 v{vT4}, 16, v{vT4}")
    I(f"v_cndmask_b32 v{vT4}, 0, v{vT4}, vcc")
    I(f"v_cndmask_b32 v{vT2}, 0, v{vT2}, vcc")
    I(f"v_and_b32 v{vT3}, 0x10000, v{vT3}")
    I(f"v_lshl_or_b32 v{vInfo}, v{vT4}, 8, v{vT1}")
    I(f"v_or_b32 v{vInfo}, v{vInfo}, v{vT3}")
    I(f"v_lshl_add_u32 v{vT5}, v{vT1}, 7, v{vT2}")
    I(f"v_lshlrev_b32 v{vT5}, 2, v{vT5}")
    I(f"v_add_u32 v{vT5}, {TAB_BASE}, v{vT5}")
    srd(sQ, sKA+0, sKA+1, 262144)
    stamp(3)
    I(f"s_cmp_lg_u32 s{sRole}, 0")
    I("s_cbranch_scc1 L_cons_main")
    I("s_waitcnt vmcnt(0) lgkmcnt(0)")
    I("s_barrier")
    loader()
    E("L_pre_cons:")
    I(f"v_and_b32 v{vT0}, 15, v{vLane}")
    I(f"v_lshrrev_b32 v{vT1}, 4, v{vLane}")
    I(f"v_and_b32 v{vT2}, 1, v{vLane}")
    I(f"v_lshlrev_b32 v{vT2}, 9, v{vT2}")
    I(f"v_lshl_add_u32 v{vT2}, v{vT1}, 4, v{vT2}")
    I(f"v_add_u32 v{vQaddr}, s{sWB}, v{vT2}")
    I(f"v_xor_b32 v{vT2}, v{vT1}, v{vT0}")
    I(f"v_lshlrev_b32 v{vT3}, 9, v{vT0}")
    I(f"v_add_u32 v{vT3}, s{sWB}, v{vT3}")
    I(f"v_add_u32 v{vT3}, {K_OFF}, v{vT3}")
    for q in range(4):
        I(f"v_xor_b32 v{vT4}, {4*q}, v{vT2}")
        I(f"v_lshl_add_u32 v{vKaddr+q}, v{vT4}, 4, v{vT3}")
    I(f"v_lshrrev_b32 v{vT0}, 2, v{vLane}")
    I(f"v_and_b32 v{vT2}, 3, v{vLane}")
    I(f"v_and_b32 v{vT3}, 7, v{vT0}")
    I(f"v_lshlrev_b32 v{vT3}, 1, v{vT3}")
    I(f"v_lshrrev_b32 v{vT4}, 1, v{vT2}")
    I(f"v_xor_b32 v{vT3}, v{vT3}, v{vT4}")
    I(f"v_and_b32 v{vT4}, 1, v{vT2}")
    I(f"v_lshlrev_b32 v{vT4}, 3, v{vT4}")
    I(f"v_lshl_add_u32 v{vT4}, v{vT0}, 9, v{vT4}")
    I(f"v_add_u32 v{vT4}, s{sWB}, v{vT4}")
    I(f"v_add_u32 v{vT4}, {V_OFF}, v{vT4}")
    for q in range(8):
        I(f"v_xor_b32 v{vT5}, {2*q}, v{vT3}")
        I(f"v_lshl_add_u32 v{vVaddr+q}, v{vT5}, 4, v{vT4}")
    I(f"v_lshlrev_b32 v{vTok}, 2, v{vT1}")
    for r in range(1, 4):
        I(f"v_add_u32 v{vTok+r}, {r}, v{vTok}")
    I("s_branch L_sched")
    E("L_cons_main:")
    I(f"v_mov_b32 v{vNeg}, 0xff7fffff")
    I(f"v_mov_b32 v{vM}, 0xff800000")
    I(f"v_mov_b32 v{vLs}, 0")
    for n in range(64):
        I(f"v_mov_b32 v{vAcc+n}, 0")
    I(f"s_mov_b32 s{sCSC}, 0x3db8aa3b")
    I(f"s_mov_b32 s{sPend}, 0")
    I(f"s_mov_b32 s{sCnt}, 0")
    I(f"s_mov_b32 s{sSeen}, 0")
    I(f"s_mov_b32 s{sRecBlock}, 0")
    I(f"s_mov_b32 s{sQoff}, -1")
    I(f"s_mov_b32 s{sSpin2}, 0")
    I(f"s_mov_b32 s{sSpin}, 0")
    I(f"s_add_u32 s{sT0}, s2, s{sW}")
    I(f"s_cmp_lg_u32 s{sT0}, 0")
    I("s_cbranch_scc1 L_nononce")
    I(f"s_memrealtime s[{sM2}:{sM2+1}]")
    I(f"v_mov_b32 v{vT0}, 0")
    I("s_waitcnt lgkmcnt(0)")
    I(f"s_or_b32 s{sT0}, s{sM2}, 1")
    I(f"v_mov_b32 v{vT2}, s{sT0}")
    I(f"v_mov_b32 v{vT3}, s{sM2+1}")
    I("s_mov_b64 exec, 1")
    I(f"buffer_store_dwordx2 v[{vT2}:{vT3}], v{vT0}, s[{sD}:{sD+3}], 0 offen sc1")
    I("s_mov_b64 exec, -1")
    E("L_nononce:")
    I(f"v_and_b32 v0, 255, v0")
    I(f"v_lshrrev_b32 v{vT5}, 7, v0")
    I(f"v_and_b32 v{vT6}, 127, v0")
    I(f"v_lshrrev_b32 v{vT7}, 3, v{vT6}")
    I(f"v_and_b32 v{vT6}, 7, v{vT6}")
    I(f"v_lshlrev_b32 v{vT6}, 3, v{vT6}")
    I(f"v_lshl_add_u32 v{vT6}, v{vT7}, 7, v{vT6}")
    I(f"v_lshl_add_u32 v{vRO}, v{vT5}, 6, v{vT6}")
    I(f"v_lshlrev_b32 v{vT5}, 3, v{vT5}")
    I(f"v_add_u32 v{vRS}, 0x800, v{vT5}")
    I(f"v_lshlrev_b32 v{vT5}, 2, v{vT5}")
    I(f"v_add_u32 v{vRS2}, 0x800, v{vT5}")
    I(f"v_mov_b32 v{vR}, 0xff800000")
    I(f"v_mov_b32 v{vR+1}, 0")
    I(f"v_mov_b32 v{vR+2}, 0")
    I(f"v_mov_b32 v{vR+3}, 0")
    I(f"s_add_u32 s{sXE}, s{sEXB}, s{sEXN}")
    I(f"v_min_u32 v{vT0}, s{sXE}, v{vCAPI}")
    I(f"v_max_u32 v{vT1}, s{sEXB}, v{vCAP}")
    I(f"v_sub_u32 v{vT0}, v{vT0}, v{vT1}")
    I(f"v_cmp_gt_u32 vcc, 32, v{vLane}")
    I(f"v_lshlrev_b32 v{vFlagOff}, 3, v{vLane}")
    I(f"v_add_u32 v{vFlagOff}, s{sH}, v{vFlagOff}")
    I(f"v_lshlrev_b32 v{vFlagOff}, 7, v{vFlagOff}")
    I(f"v_cndmask_b32 v{vT0}, 0, v{vT0}, vcc")
    I(f"v_cmp_lt_i32 s[{sNeedM}:{sNeedM+1}], 0, v{vT0}")
    I(f"s_add_u32 s{sCAPE}, s{sCAPB}, s{sHC}")
    I(f"v_min_u32 v{vT0}, s{sCAPE}, v{vEXI}")
    I(f"v_max_u32 v{vT1}, s{sCAPB}, v{vEX}")
    I(f"v_sub_u32 v{vT0}, v{vT0}, v{vT1}")
    I(f"v_cndmask_b32 v{vT0}, 0, v{vT0}, vcc")
    I(f"v_cmp_lt_i32 vcc, 0, v{vT0}")
    I("s_nop 3")
    I(f"s_bcnt1_i32_b64 s{sNP}, vcc")
    I(f"s_cmp_eq_u32 s{sEXN}, 0")
    I(f"s_cselect_b32 s{sRecState}, 1, 0")
    if "norec" in XP or "noread" in XP:
        I(f"s_mov_b32 s{sRecState}, 1")
    stamp(4)
    I("s_barrier")
    I(f"s_cmp_eq_u32 s{sNW}, 0")
    I("s_cbranch_scc1 L_done")
    E("L_loop:")
    I(f"s_cmp_eq_u32 s{sRecState}, 1")
    I("s_cbranch_scc1 L_loop_go")
    I(f"s_add_u32 s{sT0}, s{sCnt}, 10")
    I(f"s_cmp_ge_u32 s{sT0}, s{sNW}")
    I("s_cbranch_scc1 L_rectry")
    E("L_loop_go:")
    compute(0, "a")
    I("s_cbranch_scc1 L_done")
    compute(1, "b")
    I("s_cbranch_scc0 L_loop")
    E("L_done:")
    stamp(5)
    I(f"s_cmp_eq_u32 s{sPend}, 0")
    I("s_cbranch_scc1 L_fin0")
    I("s_waitcnt vmcnt(0)")
    fire_flag()
    E("L_fin0:")
    I("s_nop 7")
    dump_partial()
    I(f"v_add_u32 v{vT3}, {TAB_BASE}, v{vRO}")
    I(f"v_add_u32 v{vT4}, {TAB_BASE}, v{vRS}")
    I("s_waitcnt lgkmcnt(0)")
    I("s_barrier")
    for w in range(4):
        I(f"ds_read_b64 v[{vQ+4*w}:{vQ+1+4*w}], v{vT4} offset:{w*4096}")
        I(f"ds_read_b64 v[{vQ+2+4*w}:{vQ+3+4*w}], v{vT3} offset:{w*4096}")
    I("s_waitcnt lgkmcnt(0)")
    I(f"v_max3_f32 v{vT0}, v{vQ}, v{vQ+4}, v{vQ+8}")
    I(f"v_max3_f32 v{vT0}, v{vT0}, v{vQ+12}, v{vR}")
    I(f"v_sub_f32 v{vT1}, v{vR}, v{vT0}")
    for w in range(4):
        I(f"v_sub_f32 v{vQ+4*w}, v{vQ+4*w}, v{vT0}")
    I(f"v_exp_f32 v{vT1}, v{vT1}")
    for w in range(4):
        I(f"v_exp_f32 v{vQ+4*w}, v{vQ+4*w}")
    I(f"v_mov_b32 v{vR}, v{vT0}")
    I(f"v_mul_f32 v{vR+1}, v{vR+1}, v{vT1}")
    I(f"v_mul_f32 v{vR+2}, v{vR+2}, v{vT1}")
    I(f"v_mul_f32 v{vR+3}, v{vR+3}, v{vT1}")
    for w in range(4):
        I(f"v_fmac_f32 v{vR+1}, v{vQ+1+4*w}, v{vQ+4*w}")
        I(f"v_fmac_f32 v{vR+2}, v{vQ+2+4*w}, v{vQ+4*w}")
        I(f"v_fmac_f32 v{vR+3}, v{vQ+3+4*w}, v{vQ+4*w}")
    stamp(6)
    I(f"s_mov_b32 s{sRecBlock}, 1")
    I(f"s_cmp_lg_u32 s{sRecState}, 1")
    I("s_cbranch_scc1 L_rectry")
    E("L_store:")
    I(f"v_rcp_f32 v{vT0}, v{vR+1}")
    I(f"s_lshl_b32 s{sT0}, s2, 10")
    I(f"v_lshlrev_b32 v{vT1}, 2, v0")
    I(f"v_mul_f32 v{vR+2}, v{vR+2}, v{vT0}")
    I(f"v_mul_f32 v{vR+3}, v{vR+3}, v{vT0}")
    I(f"v_cvt_pk_bf16_f32 v{vT2}, v{vR+2}, v{vR+3}")
    I(f"buffer_store_dword v{vT2}, v{vT1}, s[{sO}:{sO+3}], s{sT0} offen" + os.environ.get("OUTPOL", ""))
    stamp(7)
    stamp_store()
    E("L_end:")
    I("s_endpgm")
    for tag in ("a", "b"):
        rare_path(tag)
        flush_path(tag)
    record_block()
    E("L_code_end:")
    E('.section .rodata,"a"')
    E(".p2align 6")
    E(f".amdhsa_kernel {NAME}_kernel")
    E("  .amdhsa_next_free_vgpr 256")
    E("  .amdhsa_next_free_sgpr 102")
    E("  .amdhsa_accum_offset 256")
    E("  .amdhsa_group_segment_fixed_size 0")
    E("  .amdhsa_kernarg_size 64")
    E("  .amdhsa_user_sgpr_count 2")
    E("  .amdhsa_user_sgpr_kernarg_segment_ptr 1")
    E("  .amdhsa_system_sgpr_workgroup_id_x 1")
    E(".end_amdhsa_kernel")

gen()
path = sys.argv[1] if len(sys.argv) > 1 else f"cdna_kernels/{NAME}.s"
open(path, "w").write("\n".join(out) + "\n")
print("wrote", path, len(out), "lines")
```

```python
import sys, os
DIAG = os.environ.get("DIAG", "0") == "1"
SLEEP = int(os.environ.get("SLEEP", "1"))
RING = int(os.environ.get("RING", "3"))
RECAT = int(os.environ.get("RECAT", "6"))
XP = os.environ.get("XP", "")

NAME = "standalone__paged_block_table_kv_pagedattention__sampling"

SLOT = 9216
T_OFF = 1024
SC_OFF = RING * SLOT
WAVE_RING = SC_OFF + 4096
TAB_BASE = 4 * WAVE_RING
SYNC_BASE = TAB_BASE + 16384
ARR_BASE = SYNC_BASE + 64
LDS_BYTES = ARR_BASE + 128
FLAG_BASE = 0x10000000
RECSZ = 2304

out = []
def E(s=""):
    out.append(s)
def I(s):
    out.append("    " + s)

sVlo, sVhi, sHQ, sValid, sRole, sSo, sSum, sSeen, sNeed, sWave = 3, 4, 5, 6, 7, 8, 9, 10, 11, 12
sRecState, sRecBlock, sSpin2 = 13, 14, 15
sKA = 16
sK = 32
sV = 36
sQ = 40
sT = 44
sWS = 48
sO = 52
sD = 56
sB, sH, sW = 60, 61, 62
sL = 63
sWB = 64
sNW = 65
sI = 66
sCur, sNxt, sNew = 67, 68, 69
sPhys = 70
sT0, sT1, sT2, sT3 = 71, 72, 73, 74
sPend, sNP, sCAPE = 75, 76, 77
sScale = 78
sHC = 79
sCAPB = 80
sEXB, sEXN = 81, 82
sX0, sXE = 83, 84
sCnt = 85
sQoff = 86
sScr = 87
sNeedM = 88
sM2 = 90
sScM = 98
sRec = 93
sK0 = 94
sLen = 95
sJ = 96
sSpin = 97
sCSC = 92

vLane = 1
vT0, vT1, vT2, vT3, vT4, vT5, vT6, vT7 = 2, 3, 4, 5, 6, 7, 8, 9
vPhys, vInfo = 10, 11
vCAP, vCAPI = 12, 13
vEX, vEXI = 14, 15
vKoff = 16
vVoff = 24
vRT = 16
vQoff = 32
vQaddr = 33
vKaddr = 34
vVaddr = 38
vTok = 46
vM, vLs = 50, 51
vS = 52
vP = 56
vX = 58
vA0, vA1 = 62, 63
vQ = 64
vK = 96
vV = 128
vAcc = 160
vAd = 96
vAd1 = 128
vNeg = 224
vCE = 225
vNB = 226
vScA, vScB = 225, 226
vSync = 227
vR = 228
vRO, vRS = 232, 233
vFlagOff = 234
vRS2 = 235
vF = 236
vNon = 246

def stamp(k):
    if not DIAG:
        return
    I("s_memrealtime s[100:101]")
    I("s_waitcnt lgkmcnt(0)")
    I(f"v_mov_b32 v{248+k}, s100")

def stamp_store():
    if not DIAG:
        return
    I(f"s_lshl_b32 s{sT0}, s2, 3")
    I(f"s_add_u32 s{sT0}, s{sT0}, s{sWave}")
    I(f"s_lshl_b32 s{sT0}, s{sT0}, 5")
    I(f"s_add_u32 s{sT0}, s{sT0}, 0x20000000")
    I(f"v_mov_b32 v{vT1}, 0")
    I("s_mov_b64 exec, 1")
    I(f"buffer_store_dwordx4 v[248:251], v{vT1}, s[{sWS}:{sWS+3}], s{sT0} offen")
    I(f"buffer_store_dwordx4 v[252:255], v{vT1}, s[{sWS}:{sWS+3}], s{sT0} offen offset:16")

def srd(s, lo, hi, nrec):
    I(f"s_mov_b32 s{s}, s{lo}")
    I(f"s_and_b32 s{s+1}, s{hi}, 0xffff")
    I(f"s_mov_b32 s{s+2}, {nrec}")
    I(f"s_mov_b32 s{s+3}, 0x00020000")

def scan32(v):
    for sh in (1, 2, 4, 8):
        I("s_nop 1")
        I(f"v_add_u32_dpp v{v}, v{v}, v{v} row_shr:{sh} row_mask:0xf bank_mask:0xf bound_ctrl:0")
    I("s_nop 1")
    I(f"v_add_u32_dpp v{v}, v{v}, v{v} row_bcast:15 row_mask:0xa bank_mask:0xf")

def xlane(op, v, ta, tb):
    I(f"v_mov_b32 v{ta}, v{v}")
    I(f"v_mov_b32 v{tb}, v{v}")
    I("s_nop 1")
    I(f"v_permlane32_swap_b32 v{ta}, v{tb}")
    I("s_nop 1")
    I(f"{op} v{v}, v{ta}, v{tb}")
    I(f"v_mov_b32 v{ta}, v{v}")
    I("s_nop 0")
    I(f"v_mov_b32 v{tb}, v{v}")
    I("s_nop 1")
    I(f"v_permlane16_swap_b32 v{ta}, v{tb}")
    I("s_nop 1")
    I(f"{op} v{v}, v{ta}, v{tb}")

lab = [0]
def wait_ge(off):
    lab[0] += 1
    n = lab[0]
    I(f"s_cmp_ge_i32 s{sSeen}, s{sNeed}")
    I(f"s_cbranch_scc1 L_wok{n}")
    E(f"L_wp{n}:")
    I(f"ds_read_b32 v{vT0}, v{vSync} offset:{off}")
    I("s_waitcnt lgkmcnt(0)")
    I(f"v_readfirstlane_b32 s{sSeen}, v{vT0}")
    I("s_nop 1")
    I(f"s_cmp_ge_i32 s{sSeen}, s{sNeed}")
    I(f"s_cbranch_scc1 L_wok{n}")
    I(f"s_sleep {SLEEP}")
    I(f"s_branch L_wp{n}")
    E(f"L_wok{n}:")

def signal(off, sval):
    I(f"v_mov_b32 v{vT1}, s{sval}")
    I("s_mov_b64 exec, 1")
    I(f"ds_write_b32 v{vSync}, v{vT1} offset:{off}")
    I("s_mov_b64 exec, -1")

def next_slot():
    I(f"s_add_u32 s{sSo}, s{sSo}, {SLOT}")
    I(f"s_cmp_eq_u32 s{sSo}, s{sSum}")
    I(f"s_cselect_b32 s{sSo}, s{sWB}, s{sSo}")

def read_item():
    I(f"v_readlane_b32 s{sNew}, v{vInfo}, s{sI}")
    I(f"v_readlane_b32 s{sPhys}, v{vPhys}, s{sI}")
    I(f"s_add_u32 s{sI}, s{sI}, 1")
    I(f"s_sub_i32 s{sNeed}, s{sCnt}, {RING-1}")
    I("s_nop 1")
    I(f"s_lshl_b32 s{sVlo}, s{sPhys}, 16")
    I(f"s_lshr_b32 s{sVhi}, s{sPhys}, 16")
    I(f"s_bfe_u32 s{sT2}, s{sNew}, 0x50008")

def issue_k(first=False):
    read_item()
    I(f"s_add_u32 s{sK}, s{sKA+2}, s{sVlo}")
    I(f"s_addc_u32 s{sK+1}, s{sKA+3}, s{sVhi}")
    I(f"s_lshl_b32 s{sK+2}, s{sT2}, 12")
    I(f"s_and_b32 s{sT3}, s{sNew}, 31")
    I(f"s_lshl_b32 s{sT3}, s{sT3}, 13")
    I(f"s_add_u32 s{sQoff}, s{sT3}, s{sHQ}")
    if not first:
        wait_ge(4)
    I(f"s_mov_b32 m0, s{sSo}")
    I("s_nop 0")
    I(f"buffer_load_dwordx4 v{vQoff}, s[{sQ}:{sQ+3}], s{sQoff} offen lds")
    for half in range(2):
        I(f"s_add_u32 m0, s{sSo}, {T_OFF + half*4096}")
        I("s_nop 0")
        for n in range(4*half, 4*half+4):
            I(f"buffer_load_dwordx4 v{vKoff+n}, s[{sK}:{sK+3}], 0 offen offset:{(n&3)*1024} nt lds")
    next_slot()

def issue_v():
    read_item()
    I(f"s_add_u32 s{sV}, s{sKA+4}, s{sVlo}")
    I(f"s_addc_u32 s{sV+1}, s{sKA+5}, s{sVhi}")
    I(f"s_lshl_b32 s{sV+2}, s{sT2}, 12")
    wait_ge(4)
    for half in range(2):
        I(f"s_add_u32 m0, s{sSo}, {T_OFF + half*4096}")
        I("s_nop 0")
        for n in range(4*half, 4*half+4):
            I(f"buffer_load_dwordx4 v{vVoff+n}, s[{sV}:{sV+3}], 0 offen offset:{(n&3)*1024} nt lds")
    next_slot()

def loader():
    E("L_loader:")
    I(f"ds_read_b32 v{vPhys}, v{vT5}")
    I(f"s_mov_b32 s{sI}, 0")
    I(f"s_mov_b32 s{sCnt}, 0")
    I(f"s_lshl_b32 s{sHQ}, s{sH}, 10")
    I(f"s_add_u32 s{sSum}, s{sWB}, {RING*SLOT}")
    I(f"s_mov_b32 s{sSo}, s{sWB}")
    I(f"s_mov_b32 s{sSeen}, 0")
    I("s_waitcnt lgkmcnt(0)")
    issue_k(first=True)
    stamp(4)
    I("s_barrier")
    I(f"s_cmp_eq_u32 s{sNW}, 0")
    I("s_cbranch_scc1 L_ld_done")
    E("L_ld_k:")
    I("s_waitcnt vmcnt(0)")
    I(f"s_add_u32 s{sCnt}, s{sCnt}, 1")
    signal(0, sCnt)
    I(f"s_cmp_ge_u32 s{sCnt}, s{sNW}")
    I("s_cbranch_scc1 L_ld_v0")
    issue_k()
    I("s_branch L_ld_k")
    E("L_ld_v0:")
    I(f"s_mov_b32 s{sI}, 0")
    I(f"s_lshl_b32 s{sNW}, s{sNW}, 1")
    E("L_ld_v:")
    issue_v()
    I("s_waitcnt vmcnt(0)")
    I(f"s_add_u32 s{sCnt}, s{sCnt}, 1")
    signal(0, sCnt)
    I(f"s_cmp_lt_u32 s{sCnt}, s{sNW}")
    I("s_cbranch_scc1 L_ld_v")
    E("L_ld_done:")
    stamp(5)
    stamp_store()
    I("s_endpgm")

def fire_flag():
    lab[0] += 1
    n = lab[0]
    I(f"v_mov_b32 v{vT0}, {SYNC_BASE + 8}")
    I(f"v_mov_b32 v{vT1}, 1")
    I(f"s_mov_b64 exec, 1")
    I(f"ds_add_rtn_u32 v{vT2}, v{vT0}, v{vT1}")
    I(f"v_mov_b32 v{vT0}, 0")
    I("s_waitcnt lgkmcnt(0)")
    I(f"v_readfirstlane_b32 s{sT0}, v{vT2}")
    I("s_nop 1")
    I(f"s_add_u32 s{sT0}, s{sT0}, 1")
    I(f"s_cmp_lg_u32 s{sT0}, s{sNP}")
    I(f"s_cbranch_scc1 L_ff{n}")
    I(f"s_mov_b32 s{sSpin}, 0")
    I("s_mov_b64 exec, 0xffff")
    I(f"v_mov_b32 v{vT0}, 0")
    I(f"v_lshlrev_b32 v{vT1}, 3, v{vLane}")
    I(f"s_lshl_b32 s{sT1}, s2, 7")
    I(f"s_add_u32 s{sT1}, s{sT1}, {FLAG_BASE}")
    I(f"s_branch L_fw{n}")
    E(f"L_fn{n}:")
    I(f"buffer_load_dwordx2 v[{vNon}:{vNon+1}], v{vT0}, s[{sD}:{sD+3}], 0 offen sc1")
    I("s_waitcnt vmcnt(0)")
    E(f"L_fw{n}:")
    I(f"v_readfirstlane_b32 s{sT0}, v{vNon}")
    I("s_nop 1")
    I(f"s_cmp_lg_u32 s{sT0}, 0")
    I(f"s_cbranch_scc1 L_fs{n}")
    I("s_sleep 8")
    I(f"s_add_u32 s{sSpin}, s{sSpin}, 1")
    I(f"s_cmp_lt_u32 s{sSpin}, 0x200000")
    I(f"s_cbranch_scc1 L_fn{n}")
    E(f"L_fs{n}:")
    I(f"buffer_store_dwordx2 v[{vNon}:{vNon+1}], v{vT1}, s[{sWS}:{sWS+3}], s{sT1} offen sc1")
    E(f"L_ff{n}:")
    I(f"s_mov_b64 exec, -1")
    I(f"s_mov_b32 s{sPend}, 0")

def dump_partial():
    lab[0] += 1
    n = lab[0]
    E(f"L_bw{n}:")
    I(f"ds_read_b32 v{vT0}, v{vSync} offset:12")
    I("s_waitcnt lgkmcnt(0)")
    I(f"v_readfirstlane_b32 s{sT0}, v{vT0}")
    I("s_nop 1")
    I(f"s_cmp_eq_u32 s{sT0}, 0")
    I(f"s_cbranch_scc1 L_bo{n}")
    I("s_sleep 1")
    I(f"s_branch L_bw{n}")
    E(f"L_bo{n}:")
    xlane("v_add_f32", vLs, vT0, vT1)
    I(f"v_lshlrev_b32 v{vT2}, 2, v{vLane}")
    I(f"v_add_u32 v{vT2}, s{sScr}, v{vT2}")
    I(f"v_add_u32 v{vT3}, 0x400, v{vT2}")
    I(f"v_lshlrev_b32 v{vT4}, 3, v{vLane}")
    I(f"v_add_u32 v{vT4}, s{sScr}, v{vT4}")
    I(f"s_mov_b64 exec, 0xffff")
    for n in range(16):
        a = vT2 if n < 8 else vT3
        o = (n & 7) * 32
        I(f"ds_write2_b32 v{a}, v{vAcc+4*n}, v{vAcc+4*n+1} offset0:{o} offset1:{o+16}")
    I(f"s_mov_b64 exec, 3")
    I(f"ds_write_b64 v{vT4}, v[{vM}:{vM+1}] offset:2048")
    I(f"s_mov_b64 exec, -1")

def next_cslot():
    I(f"s_add_u32 s{sSo}, s{sSo}, {SLOT}")
    I(f"s_cmp_eq_u32 s{sSo}, {RING*SLOT}")
    I(f"s_cselect_b32 s{sSo}, 0, s{sSo}")

def phase1():
    I(f"v_readlane_b32 s{sCur}, v{vInfo}, s{sCnt}")
    I(f"s_add_u32 s{sNeed}, s{sCnt}, 1")
    I(f"v_add_u32 v{vAd1}, s{sSo}, v{vQaddr}")
    for q in range(4):
        I(f"v_add_u32 v{vAd1+1+q}, s{sSo}, v{vKaddr+q}")
    wait_ge(0)
    for n in range(8):
        I(f"ds_read_b128 v[{vQ+4*n}:{vQ+4*n+3}], v{vAd1} offset:{n*64}")
        I(f"ds_read_b128 v[{vK+4*n}:{vK+4*n+3}], v{vAd1+1+(n&3)} offset:{(n>>2)*256}")
    I(f"s_bfe_u32 s{sValid}, s{sCur}, 0x50008")
    for n in range(8):
        I(f"s_waitcnt lgkmcnt({14-2*n})")
        c = "0" if n == 0 else f"v[{vS}:{vS+3}]"
        I(f"v_mfma_f32_16x16x32_bf16 v[{vS}:{vS+3}], v[{vK+4*n}:{vK+4*n+3}], v[{vQ+4*n}:{vQ+4*n+3}], {c}")
    signal(4, sNeed)
    next_cslot()
    I(f"s_cmp_eq_u32 s{sValid}, 16")
    I("s_nop 1")
    I("s_cbranch_scc1 L_full")
    for r in range(4):
        I(f"v_cmp_gt_u32 vcc, s{sValid}, v{vTok+r}")
        I("s_nop 1")
        I(f"v_cndmask_b32 v{vS+r}, v{vNeg}, v{vS+r}, vcc")
    E("L_full:")
    I(f"s_mov_b64 exec, s[{sScM}:{sScM+1}]")
    I(f"ds_write_b128 v{vScA}, v[{vS}:{vS+3}]")
    I("s_mov_b64 exec, -1")
    I(f"v_add_u32 v{vScA}, 0x80, v{vScA}")
    I(f"s_add_u32 s{sCnt}, s{sCnt}, 1")
    I(f"s_cmp_lt_u32 s{sCnt}, s{sNW}")

def phase2():
    tag = "a"
    I(f"ds_read_b128 v[{vS}:{vS+3}], v{vScA}")
    I(f"s_add_u32 s{sT0}, s{sCnt}, 1")
    I(f"v_readlane_b32 s{sCur}, v{vInfo}, s{sCnt}")
    I(f"v_readlane_b32 s{sNxt}, v{vInfo}, s{sT0}")
    I(f"s_add_u32 s{sNeed}, s{sT0}, s{sNW}")
    I(f"v_add_u32 v{vScA}, 0x80, v{vScA}")
    for q in range(8):
        I(f"v_add_u32 v{vAd+q}, s{sSo}, v{vVaddr+q}")
    I(f"s_bitcmp1_b32 s{sCur}, 16")
    I(f"s_cselect_b32 s{sScale}, 0, s{sCSC}")
    I(f"s_cmp_eq_u32 s{sPend}, 0")
    I(f"s_cbranch_scc1 L_nopend_{tag}")
    I("s_waitcnt vmcnt(0)")
    fire_flag()
    E(f"L_nopend_{tag}:")
    I("s_waitcnt lgkmcnt(0)")
    I(f"v_max3_f32 v{vX}, v{vS}, v{vS+1}, v{vS+2}")
    I(f"v_max_f32 v{vX}, v{vX}, v{vS+3}")
    I(f"v_mul_f32 v{vX}, s{sScale}, v{vX}")
    I(f"v_cmp_gt_f32 vcc, v{vX}, v{vM}")
    I("s_nop 1")
    I(f"s_cbranch_vccnz L_rare_{tag}")
    E(f"L_back_{tag}:")
    for r in range(4):
        I(f"v_fma_f32 v{vX+r}, v{vS+r}, s{sScale}, -v{vM}")
    for r in range(4):
        I(f"v_exp_f32 v{vX+r}, v{vX+r}")
    I("s_nop 0")
    I(f"v_cvt_pk_bf16_f32 v{vP}, v{vX}, v{vX+1}")
    I(f"v_cvt_pk_bf16_f32 v{vP+1}, v{vX+2}, v{vX+3}")
    I(f"v_add_f32 v{vX}, v{vX}, v{vX+1}")
    I(f"v_add_f32 v{vX+2}, v{vX+2}, v{vX+3}")
    I(f"v_add_f32 v{vLs}, v{vLs}, v{vX}")
    I(f"v_add_f32 v{vLs}, v{vLs}, v{vX+2}")
    wait_ge(0)
    for n in range(16):
        I(f"ds_read_b64_tr_b16 v[{vV+2*n}:{vV+2*n+1}], v{vAd+(n&7)} offset:{(n>>3)*256}")
    for n in range(16):
        I(f"s_waitcnt lgkmcnt({15-n})")
        I(f"v_mfma_f32_16x16x16_bf16 v[{vAcc+4*n}:{vAcc+4*n+3}], v[{vP}:{vP+1}], v[{vV+2*n}:{vV+2*n+1}], v[{vAcc+4*n}:{vAcc+4*n+3}]")
    signal(4, sNeed)
    next_cslot()
    I(f"s_xor_b32 s{sT0}, s{sCur}, s{sNxt}")
    I(f"s_and_b32 s{sT0}, s{sT0}, 31")
    I(f"s_cbranch_scc1 L_flush_{tag}")
    E(f"L_noflush_{tag}:")
    I(f"s_add_u32 s{sCnt}, s{sCnt}, 1")
    I(f"s_cmp_lt_u32 s{sCnt}, s{sNW}")

def rare_path(tag):
    E(f"L_rare_{tag}:")
    I(f"v_max_f32 v{vX}, v{vX}, v{vM}")
    xlane("v_max_f32", vX, vX+1, vX+2)
    I(f"v_sub_f32 v{vX+1}, v{vM}, v{vX}")
    I(f"v_exp_f32 v{vX+1}, v{vX+1}")
    I(f"v_mov_b32 v{vM}, v{vX}")
    I("s_nop 0")
    I(f"v_mul_f32 v{vLs}, v{vLs}, v{vX+1}")
    I(f"v_mov_b32_dpp v{vA0}, v{vX+1} quad_perm:[0,0,0,0] row_mask:0xf bank_mask:0xf")
    I(f"v_mov_b32_dpp v{vA1}, v{vX+1} quad_perm:[1,1,1,1] row_mask:0xf bank_mask:0xf")
    for n in range(16):
        I(f"v_mul_f32 v{vAcc+4*n}, v{vA0}, v{vAcc+4*n}")
        I(f"v_mul_f32 v{vAcc+4*n+1}, v{vA1}, v{vAcc+4*n+1}")
    I(f"s_branch L_back_{tag}")

def flush_path(tag):
    E(f"L_flush_{tag}:")
    I(f"s_cmp_eq_u32 s{sPend}, 0")
    I(f"s_cbranch_scc1 L_fl_np_{tag}")
    I("s_waitcnt vmcnt(0)")
    fire_flag()
    E(f"L_fl_np_{tag}:")
    I("s_nop 7")
    dump_partial()
    I(f"s_and_b32 s{sJ}, s{sCur}, 31")
    I(f"v_mov_b32 v{vT1}, 1")
    I(f"s_lshl_b32 s{sT0}, s{sJ}, 2")
    I(f"s_add_u32 s{sT0}, s{sT0}, {ARR_BASE}")
    I(f"v_mov_b32 v{vT0}, s{sT0}")
    I(f"v_readlane_b32 s{sT1}, v{vEX}, s{sJ}")
    I(f"v_readlane_b32 s{sT2}, v{vEXI}, s{sJ}")
    I("s_mov_b64 exec, 1")
    I(f"ds_write_b32 v{vSync}, v{vT1} offset:12")
    I("s_waitcnt lgkmcnt(0)")
    I(f"ds_add_rtn_u32 v{vT2}, v{vT0}, v{vT1}")
    I("s_mov_b64 exec, -1")
    I(f"s_max_u32 s{sT1}, s{sT1}, s{sCAPB}")
    I(f"s_min_u32 s{sT2}, s{sT2}, s{sCAPE}")
    I(f"s_sub_u32 s{sLen}, s{sT2}, s{sT1}")
    I(f"s_sub_u32 s{sK0}, s{sT1}, s{sCAPB}")
    I(f"s_min_u32 s{sT3}, s{sLen}, 4")
    I(f"v_mov_b32 v{vM}, 0xff800000")
    I("s_waitcnt lgkmcnt(0)")
    I(f"v_readfirstlane_b32 s{sT0}, v{vT2}")
    I("s_nop 1")
    I(f"s_add_u32 s{sT0}, s{sT0}, 1")
    I(f"s_cmp_lg_u32 s{sT0}, s{sT3}")
    I(f"s_cbranch_scc1 L_noflush_{tag}")
    I(f"v_lshrrev_b32 v{vT3}, 2, v{vLane}")
    I(f"v_and_b32 v{vT3}, 1, v{vT3}")
    I(f"v_lshlrev_b32 v{vT3}, 3, v{vT3}")
    I(f"v_add_u32 v{vT3}, {TAB_BASE + 2048}, v{vT3}")
    I(f"v_add_u32 v{vT4}, {TAB_BASE}, v{vQoff}")
    I(f"v_mov_b32 v{vF+8}, 0xff800000")
    I(f"v_mov_b32 v{vF+9}, 0")
    for i in range(8):
        I(f"v_mov_b32 v{vF+i}, 0")
    I(f"v_mov_b32 v{vT5}, {SYNC_BASE}")
    I(f"v_mov_b32 v{vT6}, 0")
    for w in range(4):
        I(f"s_sub_u32 s{sT0}, {w}, s{sK0}")
        I(f"s_and_b32 s{sT0}, s{sT0}, 3")
        I(f"s_cmp_ge_u32 s{sT0}, s{sLen}")
        I(f"s_cbranch_scc1 L_fm{w}_{tag}")
        I(f"ds_read_b64 v[{vRT+8}:{vRT+9}], v{vT3} offset:{w*4096}")
        I(f"ds_read_b128 v[{vRT}:{vRT+3}], v{vT4} offset:{w*4096}")
        I(f"ds_read_b128 v[{vRT+4}:{vRT+7}], v{vT4} offset:{w*4096+1024}")
        I("s_waitcnt lgkmcnt(0)")
        I("s_mov_b64 exec, 1")
        I(f"ds_write_b32 v{vT5}, v{vT6} offset:{w*16+12}")
        I("s_mov_b64 exec, -1")
        I(f"v_max_f32 v{vT0}, v{vF+8}, v{vRT+8}")
        I(f"v_sub_f32 v{vT1}, v{vF+8}, v{vT0}")
        I(f"v_sub_f32 v{vT2}, v{vRT+8}, v{vT0}")
        I(f"v_exp_f32 v{vT1}, v{vT1}")
        I(f"v_exp_f32 v{vT2}, v{vT2}")
        I(f"v_mov_b32 v{vF+8}, v{vT0}")
        I(f"v_mul_f32 v{vF+9}, v{vF+9}, v{vT1}")
        I(f"v_fmac_f32 v{vF+9}, v{vRT+9}, v{vT2}")
        for i in range(8):
            I(f"v_mul_f32 v{vF+i}, v{vF+i}, v{vT1}")
            I(f"v_fmac_f32 v{vF+i}, v{vRT+i}, v{vT2}")
        E(f"L_fm{w}_{tag}:")
    I(f"s_lshl_b32 s{sT1}, s{sJ}, 5")
    I(f"s_add_u32 s{sT1}, s{sT1}, s{sB}")
    I(f"s_lshl_b32 s{sT1}, s{sT1}, 3")
    I(f"s_add_u32 s{sT1}, s{sT1}, s{sH}")
    I(f"s_mul_i32 s{sRec}, s{sT1}, {RECSZ}")
    I(f"v_lshlrev_b32 v{vT0}, 3, v{vLane}")
    I(f"buffer_store_dwordx4 v[{vF}:{vF+3}], v{vQoff}, s[{sWS}:{sWS+3}], s{sRec} offen sc1")
    I(f"buffer_store_dwordx4 v[{vF+4}:{vF+7}], v{vQoff}, s[{sWS}:{sWS+3}], s{sRec} offen offset:1024 sc1")
    I(f"s_mov_b64 exec, 0xffff")
    I(f"buffer_store_dwordx2 v[{vF+8}:{vF+9}], v{vT0}, s[{sWS}:{sWS+3}], s{sRec} offen offset:2048 sc1")
    I(f"s_mov_b64 exec, -1")
    I(f"buffer_load_dwordx2 v[{vNon}:{vNon+1}], v{vT6}, s[{sD}:{sD+3}], 0 offen")
    I(f"s_mov_b32 s{sPend}, 1")
    I(f"s_branch L_noflush_{tag}")

def merge_one(m, l, o0, o1):
    M, Ls, A0, A1 = vR, vR+1, vR+2, vR+3
    I(f"v_max_f32 v{vT0}, v{M}, v{m}")
    I(f"v_sub_f32 v{vT1}, v{M}, v{vT0}")
    I(f"v_sub_f32 v{vT2}, v{m}, v{vT0}")
    I(f"v_exp_f32 v{vT1}, v{vT1}")
    I(f"v_exp_f32 v{vT2}, v{vT2}")
    I(f"v_mov_b32 v{M}, v{vT0}")
    I(f"v_mul_f32 v{Ls}, v{Ls}, v{vT1}")
    I(f"v_mul_f32 v{A0}, v{A0}, v{vT1}")
    I(f"v_mul_f32 v{A1}, v{A1}, v{vT1}")
    I(f"v_fmac_f32 v{Ls}, v{l}, v{vT2}")
    I(f"v_fmac_f32 v{A0}, v{o0}, v{vT2}")
    I(f"v_fmac_f32 v{A1}, v{o1}, v{vT2}")

def record_block():
    def ret():
        I(f"s_cmp_eq_u32 s{sRecBlock}, 0")
        I("s_cbranch_scc1 L_loop_go")
    E("L_rectry:")
    I(f"s_cmp_eq_u32 s{sRecState}, 2")
    I("s_cbranch_scc1 L_rs_check")
    I(f"s_cmp_eq_u32 s{sRecState}, 3")
    I("s_cbranch_scc1 L_rs_merge")
    E("L_rs_poll:")
    I(f"v_mov_b32 v{vT0}, 0")
    I(f"s_mov_b32 s{sT0}, {FLAG_BASE}")
    I(f"s_cmp_lg_u32 s{sSpin2}, 0")
    I("s_cbranch_scc1 L_pn1")
    I(f"buffer_load_dwordx2 v[{vRT}:{vRT+1}], v{vT0}, s[{sD}:{sD+3}], 0 offen")
    I("s_branch L_pn2")
    E("L_pn1:")
    I(f"buffer_load_dwordx2 v[{vRT}:{vRT+1}], v{vT0}, s[{sD}:{sD+3}], 0 offen sc1")
    E("L_pn2:")
    I(f"s_mov_b32 s{sSpin2}, 1")
    I(f"s_mov_b64 exec, s[{sNeedM}:{sNeedM+1}]")
    I(f"buffer_load_dwordx2 v[{vRT+2}:{vRT+3}], v{vFlagOff}, s[{sWS}:{sWS+3}], s{sT0} offen sc1")
    I("s_mov_b64 exec, -1")
    I(f"s_mov_b32 s{sRecState}, 2")
    ret()
    E("L_rs_check:")
    I("s_waitcnt vmcnt(0)")
    I(f"s_mov_b64 exec, s[{sNeedM}:{sNeedM+1}]")
    I(f"v_cmp_ne_u64 vcc, v[{vRT}:{vRT+1}], v[{vRT+2}:{vRT+3}]")
    I(f"v_cmp_eq_u32 s[{sM2}:{sM2+1}], 0, v{vRT}")
    I("s_mov_b64 exec, -1")
    I("s_nop 2")
    I(f"s_or_b64 vcc, vcc, s[{sM2}:{sM2+1}]")
    I(f"s_cmp_eq_u64 vcc, 0")
    I("s_cbranch_scc1 L_ready")
    I(f"s_mov_b32 s{sRecState}, 0")
    ret()
    I("s_sleep 8")
    I(f"s_add_u32 s{sSpin}, s{sSpin}, 1")
    I(f"s_cmp_lt_u32 s{sSpin}, 0x200000")
    I("s_cbranch_scc1 L_rs_poll")
    E("L_ready:")
    I(f"s_mov_b32 s{sX0}, s{sEXB}")
    I(f"s_add_u32 s{sXE}, s{sEXB}, s{sEXN}")
    E("L_rs_issue:")
    I(f"s_mov_b32 s{sLen}, 0")
    for q in range(4):
        if q:
            I(f"s_cmp_ge_u32 s{sX0}, s{sXE}")
            I("s_cbranch_scc1 L_rs_issued")
        I(f"v_cmp_ge_u32 vcc, s{sX0}, v{vCAPI}")
        I("s_nop 3")
        I(f"s_bcnt1_i32_b64 s{sJ}, vcc")
        I(f"s_lshl_b32 s{sT0}, s{sB}, 5")
        I(f"v_readlane_b32 s{sT1}, v{vCAPI}, s{sJ}")
        I(f"s_add_u32 s{sT0}, s{sT0}, s{sJ}")
        I(f"s_lshl_b32 s{sT0}, s{sT0}, 3")
        I(f"s_add_u32 s{sT0}, s{sT0}, s{sH}")
        I(f"s_mul_i32 s{sRec}, s{sT0}, {RECSZ}")
        I(f"s_min_u32 s{sX0}, s{sT1}, s{sXE}")
        I(f"buffer_load_dwordx2 v[{vRT+4*q}:{vRT+4*q+1}], v{vRS2}, s[{sWS}:{sWS+3}], s{sRec} offen sc1")
        I(f"buffer_load_dwordx2 v[{vRT+4*q+2}:{vRT+4*q+3}], v{vRO}, s[{sWS}:{sWS+3}], s{sRec} offen sc1")
        I(f"s_mov_b32 s{sLen}, {q+1}")
    E("L_rs_issued:")
    I(f"s_mov_b32 s{sRecState}, 3")
    ret()
    E("L_rs_merge:")
    I("s_waitcnt vmcnt(0)")
    for q in range(4):
        if q:
            I(f"s_cmp_le_u32 s{sLen}, {q}")
            I("s_cbranch_scc1 L_rs_merged")
        merge_one(vRT+4*q, vRT+4*q+1, vRT+4*q+2, vRT+4*q+3)
    E("L_rs_merged:")
    I(f"s_cmp_lt_u32 s{sX0}, s{sXE}")
    I("s_cbranch_scc1 L_rs_issue")
    I(f"s_mov_b32 s{sRecState}, 1")
    ret()
    I("s_branch L_store")

def gen():
    E("; paged attention decode: B=32 Hq=16 Hkv=8 D=256 block=16 tokens, 128 blocks/seq")
    E(f"; @launch grid=(256,1,1) block=(512,1,1) lds={LDS_BYTES}")
    E('.amdgcn_target "amdgcn-amd-amdhsa--gfx950"')
    E(".text")
    E(f".globl {NAME}_kernel")
    E(".p2align 8")
    E(f".type {NAME}_kernel,@function")
    E(f"{NAME}_kernel:")
    I("s_cmp_ge_u32 s2, 256")
    I("s_cbranch_scc1 L_end")
    stamp(0)
    I(f"s_load_dwordx16 s[{sKA}:{sKA+15}], s[0:1], 0")
    I(f"v_and_b32 v{vLane}, 63, v0")
    I(f"v_lshrrev_b32 v{vT0}, 6, v0")
    I(f"s_lshr_b32 s{sB}, s2, 3")
    I(f"s_and_b32 s{sH}, s2, 7")
    I(f"v_readfirstlane_b32 s{sWave}, v{vT0}")
    if True:
        I(f"s_getpc_b64 s[{sM2}:{sM2+1}]")
        I(f"v_lshlrev_b32 v{vT1}, 7, v0")
        I(f"v_min_u32 v{vT1}, L_code_end-{NAME}_kernel-128, v{vT1}")
        I(f"s_cmp_gt_u32 s{sWave}, 1")
        I("s_cbranch_scc1 L_nocpf")
        I(f"global_load_dword v246, v{vT1}, s[{sM2}:{sM2+1}]")
        E("L_nocpf:")
    I(f"v_lshlrev_b32 v{vQoff}, 4, v{vLane}")
    I(f"v_lshlrev_b32 v{vT7}, 2, v{vLane}")
    I(f"s_and_b32 s{sW}, s{sWave}, 3")
    I(f"s_cmp_lt_u32 s{sWave}, 4")
    I(f"s_cselect_b32 s{sRole}, 0, 1")
    I(f"s_mul_i32 s{sWB}, s{sW}, {WAVE_RING}")
    I(f"s_lshl_b32 s{sT0}, s{sW}, 12")
    I(f"s_add_u32 s{sScr}, s{sT0}, {TAB_BASE}")
    I(f"s_lshl_b32 s{sT0}, s{sWave}, 11")
    I(f"v_add_u32 v{vT6}, s{sT0}, v{vQoff}")
    I(f"s_add_u32 m0, s{sT0}, {TAB_BASE}")
    I(f"s_lshl_b32 s{sT1}, s{sW}, 4")
    I(f"s_add_u32 s{sT1}, s{sT1}, {SYNC_BASE}")
    I(f"v_mov_b32 v{vSync}, s{sT1}")
    I("s_waitcnt lgkmcnt(0)")
    stamp(1)
    srd(sT, sKA+8, sKA+9, 128)
    I(f"buffer_load_dword v{vCE}, v{vT7}, s[{sT}:{sT+3}], 0 offen")
    srd(sQ, sKA+6, sKA+7, 16384)
    for n in range(2):
        I(f"buffer_load_dwordx4 v{vT6}, s[{sQ}:{sQ+3}], 0 offen offset:{n*1024} lds")
    srd(sWS, sKA+14, sKA+15, 1074790400)
    srd(sO, sKA+10, sKA+11, 262144)
    srd(sD, sKA+12, sKA+13, 256)
    srd(sK, sKA+2, sKA+3, 0)
    srd(sV, sKA+4, sKA+5, 0)
    I(f"v_mov_b32 v{vT0}, 0")
    I(f"v_mov_b32 v{vT1}, 0")
    I(f"ds_write_b64 v{vSync}, v[{vT0}:{vT1}]")
    I(f"ds_write_b64 v{vSync}, v[{vT0}:{vT1}] offset:8")
    I(f"v_and_b32 v{vT2}, 31, v{vLane}")
    I(f"v_lshlrev_b32 v{vT2}, 2, v{vT2}")
    I(f"v_add_u32 v{vT2}, {ARR_BASE}, v{vT2}")
    I(f"ds_write_b32 v{vT2}, v{vT0}")
    I(f"s_cmp_eq_u32 s{sRole}, 0")
    I("s_cbranch_scc1 L_lpre")
    I("s_waitcnt vmcnt(0) lgkmcnt(0)")
    I("s_barrier")
    I("s_branch L_pre_cons")
    E("L_lpre:")
    I(f"v_lshrrev_b32 v{vT0}, 5, v{vLane}")
    I(f"v_and_b32 v{vT1}, 31, v{vLane}")
    I(f"s_lshl_b32 s{sT0}, s{sH}, 9")
    I(f"v_lshlrev_b32 v{vT2}, 12, v{vT0}")
    I(f"v_add_u32 v{vT2}, s{sT0}, v{vT2}")
    I(f"v_xor_b32 v{vT3}, v{vT1}, v{vT0}")
    I(f"v_lshlrev_b32 v{vT4}, 1, v{vT0}")
    I(f"v_xor_b32 v{vT4}, v{vT1}, v{vT4}")
    for n in range(8):
        I(f"v_xor_b32 v{vT5}, {2*n}, v{vT3}")
        I(f"v_lshl_add_u32 v{vT5}, v{vT5}, 4, v{vT2}")
        I(f"v_add_u32 v{vKoff+n}, {n*8192-(n&3)*1024}, v{vT5}")
        I(f"v_xor_b32 v{vT5}, {((2*n)&7)<<1}, v{vT4}")
        I(f"v_lshl_add_u32 v{vT5}, v{vT5}, 4, v{vT2}")
        I(f"v_add_u32 v{vVoff+n}, {n*8192-(n&3)*1024}, v{vT5}")
    E("L_sched:")
    I(f"v_cmp_gt_u32 vcc, 32, v{vLane}")
    I("s_waitcnt vmcnt(2)")
    stamp(2)
    I(f"v_cmp_gt_i32 s[{sM2}:{sM2+1}], 1, v{vCE}")
    I(f"v_min_i32 v{vT0}, 0x800, v{vCE}")
    I(f"v_mov_b32 v{vT1}, 0x800")
    I(f"v_cndmask_b32 v{vCE}, v{vT0}, v{vT1}, s[{sM2}:{sM2+1}]")
    I(f"v_cndmask_b32 v{vT7}, 0, 1, s[{sM2}:{sM2+1}]")
    I(f"v_add_u32 v{vNB}, 15, v{vCE}")
    I(f"v_lshrrev_b32 v{vNB}, 4, v{vNB}")
    I(f"v_lshl_or_b32 v{vCE}, v{vT7}, 16, v{vCE}")
    I(f"v_cndmask_b32 v{vNB}, 0, v{vNB}, vcc")
    I(f"v_mov_b32 v{vT0}, v{vNB}")
    scan32(vT0)
    I("s_nop 0")
    I(f"v_readlane_b32 s{sT0}, v{vT0}, 31")
    I("s_nop 3")
    I(f"s_add_u32 s{sT0}, s{sT0}, 31")
    I(f"s_lshr_b32 s{sL}, s{sT0}, 5")
    I(f"v_subrev_u32 v{vT0}, s{sL}, v{vNB}")
    I(f"v_max_i32 v{vT1}, 0, v{vT0}")
    I(f"v_sub_u32 v{vT0}, 0, v{vT0}")
    I(f"v_max_i32 v{vT2}, 0, v{vT0}")
    I(f"v_cndmask_b32 v{vT2}, 0, v{vT2}, vcc")
    I(f"v_lshl_or_b32 v{vT3}, v{vT2}, 16, v{vT1}")
    scan32(vT3)
    I(f"v_and_b32 v{vEXI}, 0xffff, v{vT3}")
    I(f"v_lshrrev_b32 v{vCAPI}, 16, v{vT3}")
    I(f"v_sub_u32 v{vEX}, v{vEXI}, v{vT1}")
    I(f"v_sub_u32 v{vCAP}, v{vCAPI}, v{vT2}")
    I(f"v_readlane_b32 s{sT0}, v{vEXI}, 31")
    I(f"v_readlane_b32 s{sCAPB}, v{vCAP}, s{sB}")
    I(f"v_readlane_b32 s{sT1}, v{vT2}, s{sB}")
    I(f"v_readlane_b32 s{sT2}, v{vNB}, s{sB}")
    I(f"v_readlane_b32 s{sEXB}, v{vEX}, s{sB}")
    I(f"v_readlane_b32 s{sEXN}, v{vT1}, s{sB}")
    I(f"v_readlane_b32 s{sT3}, v{vCE}, s{sB}")
    I(f"v_mov_b32 v{vT0}, 0x7fffffff")
    I(f"v_cndmask_b32 v{vEXI}, v{vT0}, v{vEXI}, vcc")
    I(f"v_cndmask_b32 v{vCAPI}, v{vT0}, v{vCAPI}, vcc")
    I(f"s_sub_i32 s{sT0}, s{sT0}, s{sCAPB}")
    I(f"s_max_i32 s{sT0}, s{sT0}, 0")
    I(f"s_min_i32 s{sHC}, s{sT0}, s{sT1}")
    I(f"s_min_u32 s{sT2}, s{sT2}, s{sL}")
    I(f"s_add_u32 s{sT2}, s{sT2}, s{sHC}")
    I(f"s_sub_i32 s{sT0}, s{sT2}, s{sW}")
    I(f"s_add_i32 s{sT0}, s{sT0}, 3")
    I(f"s_ashr_i32 s{sNW}, s{sT0}, 2")
    I(f"v_lshlrev_b32 v{vT0}, 2, v{vLane}")
    I(f"v_add_u32 v{vT0}, s{sW}, v{vT0}")
    I(f"v_mov_b32 v{vT1}, s{sB}")
    I(f"v_subrev_u32 v{vT2}, s{sHC}, v{vT0}")
    I(f"v_mov_b32 v{vT3}, s{sT3}")
    I(f"v_add_u32 v{vT4}, s{sCAPB}, v{vT0}")
    I(f"v_cmp_gt_u32 s[{sM2}:{sM2+1}], s{sHC}, v{vT0}")
    I(f"s_mov_b32 s{sX0}, s{sCAPB}")
    I(f"s_add_u32 s{sXE}, s{sCAPB}, s{sHC}")
    E("L_piece:")
    I(f"s_cmp_ge_u32 s{sX0}, s{sXE}")
    I("s_cbranch_scc1 L_piece_done")
    I(f"v_cmp_ge_u32 vcc, s{sX0}, v{vEXI}")
    I("s_nop 3")
    I(f"s_bcnt1_i32_b64 s{sT0}, vcc")
    I(f"v_cmp_le_u32 vcc, s{sX0}, v{vT4}")
    I(f"v_readlane_b32 s{sT1}, v{vEX}, s{sT0}")
    I(f"v_readlane_b32 s{sX0}, v{vEXI}, s{sT0}")
    I(f"v_readlane_b32 s{sT3}, v{vCE}, s{sT0}")
    I("s_nop 3")
    I(f"s_and_b64 vcc, vcc, s[{sM2}:{sM2+1}]")
    I(f"s_sub_i32 s{sT1}, s{sL}, s{sT1}")
    I(f"v_mov_b32 v{vT5}, s{sT0}")
    I(f"v_add_u32 v{vT6}, s{sT1}, v{vT4}")
    I(f"v_mov_b32 v{vT7}, s{sT3}")
    I(f"v_cndmask_b32 v{vT1}, v{vT1}, v{vT5}, vcc")
    I(f"v_cndmask_b32 v{vT2}, v{vT2}, v{vT6}, vcc")
    I(f"v_cndmask_b32 v{vT3}, v{vT3}, v{vT7}, vcc")
    I("s_branch L_piece")
    E("L_piece_done:")
    I(f"v_cmp_gt_u32 vcc, s{sT2}, v{vT0}")
    I(f"v_and_b32 v{vT4}, 0xffff, v{vT3}")
    I(f"v_lshlrev_b32 v{vT5}, 4, v{vT2}")
    I(f"v_sub_u32 v{vT4}, v{vT4}, v{vT5}")
    I(f"v_min_i32 v{vT4}, 16, v{vT4}")
    I(f"v_cndmask_b32 v{vT4}, 0, v{vT4}, vcc")
    I(f"v_cndmask_b32 v{vT2}, 0, v{vT2}, vcc")
    I(f"v_and_b32 v{vT3}, 0x10000, v{vT3}")
    I(f"v_lshl_or_b32 v{vInfo}, v{vT4}, 8, v{vT1}")
    I(f"v_or_b32 v{vInfo}, v{vInfo}, v{vT3}")
    I(f"v_lshl_add_u32 v{vT5}, v{vT1}, 7, v{vT2}")
    I(f"v_lshlrev_b32 v{vT5}, 2, v{vT5}")
    I(f"v_add_u32 v{vT5}, {TAB_BASE}, v{vT5}")
    srd(sQ, sKA+0, sKA+1, 262144)
    stamp(3)
    I(f"s_cmp_lg_u32 s{sRole}, 0")
    I("s_cbranch_scc1 L_cons_main")
    I("s_waitcnt vmcnt(0) lgkmcnt(0)")
    I("s_barrier")
    loader()
    E("L_pre_cons:")
    I(f"v_and_b32 v{vT0}, 15, v{vLane}")
    I(f"v_lshrrev_b32 v{vT1}, 4, v{vLane}")
    I(f"v_and_b32 v{vT2}, 1, v{vLane}")
    I(f"v_lshlrev_b32 v{vT2}, 9, v{vT2}")
    I(f"v_lshl_add_u32 v{vT2}, v{vT1}, 4, v{vT2}")
    I(f"v_add_u32 v{vQaddr}, s{sWB}, v{vT2}")
    I(f"v_xor_b32 v{vT2}, v{vT1}, v{vT0}")
    I(f"v_lshlrev_b32 v{vT3}, 9, v{vT0}")
    I(f"v_add_u32 v{vT3}, s{sWB}, v{vT3}")
    I(f"v_add_u32 v{vT3}, {T_OFF}, v{vT3}")
    for q in range(4):
        I(f"v_xor_b32 v{vT4}, {4*q}, v{vT2}")
        I(f"v_lshl_add_u32 v{vKaddr+q}, v{vT4}, 4, v{vT3}")
    I(f"v_lshrrev_b32 v{vT0}, 2, v{vLane}")
    I(f"v_and_b32 v{vT2}, 3, v{vLane}")
    I(f"v_and_b32 v{vT3}, 7, v{vT0}")
    I(f"v_lshlrev_b32 v{vT3}, 1, v{vT3}")
    I(f"v_lshrrev_b32 v{vT4}, 1, v{vT2}")
    I(f"v_xor_b32 v{vT3}, v{vT3}, v{vT4}")
    I(f"v_and_b32 v{vT4}, 1, v{vT2}")
    I(f"v_lshlrev_b32 v{vT4}, 3, v{vT4}")
    I(f"v_lshl_add_u32 v{vT4}, v{vT0}, 9, v{vT4}")
    I(f"v_add_u32 v{vT4}, s{sWB}, v{vT4}")
    I(f"v_add_u32 v{vT4}, {T_OFF}, v{vT4}")
    for q in range(8):
        I(f"v_xor_b32 v{vT5}, {2*q}, v{vT3}")
        I(f"v_lshl_add_u32 v{vVaddr+q}, v{vT5}, 4, v{vT4}")
    I(f"v_lshlrev_b32 v{vTok}, 2, v{vT1}")
    for r in range(1, 4):
        I(f"v_add_u32 v{vTok+r}, {r}, v{vTok}")
    I("s_branch L_sched")
    E("L_cons_main:")
    I(f"v_mov_b32 v{vNeg}, 0xff7fffff")
    I(f"v_mov_b32 v{vM}, 0xff800000")
    I(f"v_mov_b32 v{vLs}, 0")
    for n in range(64):
        I(f"v_mov_b32 v{vAcc+n}, 0")
    I(f"s_mov_b32 s{sCSC}, 0x3db8aa3b")
    I(f"s_mov_b32 s{sPend}, 0")
    I(f"s_mov_b32 s{sCnt}, 0")
    I(f"s_mov_b32 s{sSeen}, 0")
    I(f"s_mov_b32 s{sRecBlock}, 0")
    I(f"s_mov_b32 s{sSo}, 0")
    I(f"s_mov_b32 s{sScM}, 0x00030003")
    I(f"s_mov_b32 s{sScM+1}, 0x00030003")
    I(f"v_lshrrev_b32 v{vT0}, 4, v{vLane}")
    I(f"v_and_b32 v{vT1}, 1, v{vLane}")
    I(f"v_lshl_add_u32 v{vT0}, v{vT0}, 1, v{vT1}")
    I(f"v_lshlrev_b32 v{vT0}, 4, v{vT0}")
    I(f"v_add_u32 v{vT0}, s{sWB}, v{vT0}")
    I(f"v_add_u32 v{vScB}, {SC_OFF}, v{vT0}")
    I(f"v_mov_b32 v{vScA}, v{vScB}")
    I(f"s_mov_b32 s{sSpin2}, 0")
    I(f"s_mov_b32 s{sSpin}, 0")
    I(f"s_add_u32 s{sT0}, s2, s{sW}")
    I(f"s_cmp_lg_u32 s{sT0}, 0")
    I("s_cbranch_scc1 L_nononce")
    I(f"s_memrealtime s[{sM2}:{sM2+1}]")
    I(f"v_mov_b32 v{vT0}, 0")
    I("s_waitcnt lgkmcnt(0)")
    I(f"s_or_b32 s{sT0}, s{sM2}, 1")
    I(f"v_mov_b32 v{vT2}, s{sT0}")
    I(f"v_mov_b32 v{vT3}, s{sM2+1}")
    I("s_mov_b64 exec, 1")
    I(f"buffer_store_dwordx2 v[{vT2}:{vT3}], v{vT0}, s[{sD}:{sD+3}], 0 offen sc1")
    I("s_mov_b64 exec, -1")
    E("L_nononce:")
    I(f"v_and_b32 v0, 255, v0")
    I(f"v_lshrrev_b32 v{vT5}, 7, v0")
    I(f"v_and_b32 v{vT6}, 127, v0")
    I(f"v_lshrrev_b32 v{vT7}, 3, v{vT6}")
    I(f"v_and_b32 v{vT6}, 7, v{vT6}")
    I(f"v_lshlrev_b32 v{vT6}, 3, v{vT6}")
    I(f"v_lshl_add_u32 v{vT6}, v{vT7}, 7, v{vT6}")
    I(f"v_lshl_add_u32 v{vRO}, v{vT5}, 6, v{vT6}")
    I(f"v_lshlrev_b32 v{vT5}, 3, v{vT5}")
    I(f"v_add_u32 v{vRS}, 0x800, v{vT5}")
    I(f"v_lshlrev_b32 v{vT5}, 2, v{vT5}")
    I(f"v_add_u32 v{vRS2}, 0x800, v{vT5}")
    I(f"v_mov_b32 v{vR}, 0xff800000")
    I(f"v_mov_b32 v{vR+1}, 0")
    I(f"v_mov_b32 v{vR+2}, 0")
    I(f"v_mov_b32 v{vR+3}, 0")
    I(f"s_add_u32 s{sXE}, s{sEXB}, s{sEXN}")
    I(f"v_min_u32 v{vT0}, s{sXE}, v{vCAPI}")
    I(f"v_max_u32 v{vT1}, s{sEXB}, v{vCAP}")
    I(f"v_sub_u32 v{vT0}, v{vT0}, v{vT1}")
    I(f"v_cmp_gt_u32 vcc, 32, v{vLane}")
    I(f"v_lshlrev_b32 v{vFlagOff}, 3, v{vLane}")
    I(f"v_add_u32 v{vFlagOff}, s{sH}, v{vFlagOff}")
    I(f"v_lshlrev_b32 v{vFlagOff}, 7, v{vFlagOff}")
    I(f"v_cndmask_b32 v{vT0}, 0, v{vT0}, vcc")
    I(f"v_cmp_lt_i32 s[{sNeedM}:{sNeedM+1}], 0, v{vT0}")
    I(f"s_add_u32 s{sCAPE}, s{sCAPB}, s{sHC}")
    I(f"v_min_u32 v{vT0}, s{sCAPE}, v{vEXI}")
    I(f"v_max_u32 v{vT1}, s{sCAPB}, v{vEX}")
    I(f"v_sub_u32 v{vT0}, v{vT0}, v{vT1}")
    I(f"v_cndmask_b32 v{vT0}, 0, v{vT0}, vcc")
    I(f"v_cmp_lt_i32 vcc, 0, v{vT0}")
    I("s_nop 3")
    I(f"s_bcnt1_i32_b64 s{sNP}, vcc")
    I(f"s_cmp_eq_u32 s{sEXN}, 0")
    I(f"s_cselect_b32 s{sRecState}, 1, 0")
    stamp(4)
    I("s_barrier")
    I(f"s_cmp_eq_u32 s{sNW}, 0")
    I("s_cbranch_scc1 L_done")
    E("L_p1:")
    phase1()
    I("s_cbranch_scc1 L_p1")
    I(f"s_mov_b32 s{sCnt}, 0")
    I(f"v_mov_b32 v{vScA}, v{vScB}")
    E("L_loop:")
    I(f"s_cmp_eq_u32 s{sRecState}, 1")
    I("s_cbranch_scc1 L_loop_go")
    I(f"s_add_u32 s{sT0}, s{sCnt}, {RECAT}")
    I(f"s_cmp_ge_u32 s{sT0}, s{sNW}")
    I("s_cbranch_scc1 L_rectry")
    E("L_loop_go:")
    phase2()
    I("s_cbranch_scc1 L_loop")
    E("L_done:")
    stamp(5)
    I(f"s_cmp_eq_u32 s{sPend}, 0")
    I("s_cbranch_scc1 L_fin0")
    I("s_waitcnt vmcnt(0)")
    fire_flag()
    E("L_fin0:")
    I("s_nop 7")
    dump_partial()
    I(f"v_add_u32 v{vT3}, {TAB_BASE}, v{vRO}")
    I(f"v_add_u32 v{vT4}, {TAB_BASE}, v{vRS}")
    I("s_waitcnt lgkmcnt(0)")
    I("s_barrier")
    for w in range(4):
        I(f"ds_read_b64 v[{vQ+4*w}:{vQ+1+4*w}], v{vT4} offset:{w*4096}")
        I(f"ds_read_b64 v[{vQ+2+4*w}:{vQ+3+4*w}], v{vT3} offset:{w*4096}")
    I("s_waitcnt lgkmcnt(0)")
    I(f"v_max3_f32 v{vT0}, v{vQ}, v{vQ+4}, v{vQ+8}")
    I(f"v_max3_f32 v{vT0}, v{vT0}, v{vQ+12}, v{vR}")
    I(f"v_sub_f32 v{vT1}, v{vR}, v{vT0}")
    for w in range(4):
        I(f"v_sub_f32 v{vQ+4*w}, v{vQ+4*w}, v{vT0}")
    I(f"v_exp_f32 v{vT1}, v{vT1}")
    for w in range(4):
        I(f"v_exp_f32 v{vQ+4*w}, v{vQ+4*w}")
    I(f"v_mov_b32 v{vR}, v{vT0}")
    I(f"v_mul_f32 v{vR+1}, v{vR+1}, v{vT1}")
    I(f"v_mul_f32 v{vR+2}, v{vR+2}, v{vT1}")
    I(f"v_mul_f32 v{vR+3}, v{vR+3}, v{vT1}")
    for w in range(4):
        I(f"v_fmac_f32 v{vR+1}, v{vQ+1+4*w}, v{vQ+4*w}")
        I(f"v_fmac_f32 v{vR+2}, v{vQ+2+4*w}, v{vQ+4*w}")
        I(f"v_fmac_f32 v{vR+3}, v{vQ+3+4*w}, v{vQ+4*w}")
    stamp(6)
    I(f"s_mov_b32 s{sRecBlock}, 1")
    I(f"s_cmp_lg_u32 s{sRecState}, 1")
    I("s_cbranch_scc1 L_rectry")
    E("L_store:")
    I(f"v_rcp_f32 v{vT0}, v{vR+1}")
    I(f"s_lshl_b32 s{sT0}, s2, 10")
    I(f"v_lshlrev_b32 v{vT1}, 2, v0")
    I(f"v_mul_f32 v{vR+2}, v{vR+2}, v{vT0}")
    I(f"v_mul_f32 v{vR+3}, v{vR+3}, v{vT0}")
    I(f"v_cvt_pk_bf16_f32 v{vT2}, v{vR+2}, v{vR+3}")
    I(f"buffer_store_dword v{vT2}, v{vT1}, s[{sO}:{sO+3}], s{sT0} offen")
    stamp(7)
    stamp_store()
    E("L_end:")
    I("s_endpgm")
    rare_path("a")
    flush_path("a")
    record_block()
    E("L_code_end:")
    E('.section .rodata,"a"')
    E(".p2align 6")
    E(f".amdhsa_kernel {NAME}_kernel")
    E("  .amdhsa_next_free_vgpr 256")
    E("  .amdhsa_next_free_sgpr 102")
    E("  .amdhsa_accum_offset 256")
    E("  .amdhsa_group_segment_fixed_size 0")
    E("  .amdhsa_kernarg_size 64")
    E("  .amdhsa_user_sgpr_count 2")
    E("  .amdhsa_user_sgpr_kernarg_segment_ptr 1")
    E("  .amdhsa_system_sgpr_workgroup_id_x 1")
    E(".end_amdhsa_kernel")

gen()
path = sys.argv[1] if len(sys.argv) > 1 else f"cdna_kernels/{NAME}.s"
open(path, "w").write("\n".join(out) + "\n")
print("wrote", path, len(out), "lines")
```

```python
import sys, os
DIAG = os.environ.get("DIAG", "0") == "1"
SLEEP = int(os.environ.get("SLEEP", "1"))
RING = int(os.environ.get("RING", "3"))
RECAT = int(os.environ.get("RECAT", "6"))
XP = os.environ.get("XP", "")
EARLY = int(os.environ.get("EARLY", "0"))

NAME = "standalone__paged_block_table_kv_pagedattention__sampling"

SLOT = 9216
T_OFF = 1024
SC_OFF = RING * SLOT
WAVE_RING = SC_OFF + 4096
TAB_BASE = 4 * WAVE_RING
SYNC_BASE = TAB_BASE + 16384
ARR_BASE = SYNC_BASE + 64
LDS_BYTES = ARR_BASE + 128
FLAG_BASE = 0x10000000
RECSZ = 2304

out = []
def E(s=""):
    out.append(s)
def I(s):
    out.append("    " + s)

sVlo, sVhi, sHQ, sValid, sRole, sSo, sSum, sSeen, sNeed, sWave = 3, 4, 5, 6, 7, 8, 9, 10, 11, 12
sRecState, sRecBlock, sSpin2 = 13, 14, 15
sKA = 16
sK = 32
sV = 36
sQ = 40
sT = 44
sWS = 48
sO = 52
sD = 56
sB, sH, sW = 60, 61, 62
sL = 63
sWB = 64
sNW = 65
sI = 66
sCur, sNxt, sNew = 67, 68, 69
sPhys = 70
sT0, sT1, sT2, sT3 = 71, 72, 73, 74
sPend, sNP, sCAPE = 75, 76, 77
sScale = 78
sHC = 79
sCAPB = 80
sEXB, sEXN = 81, 82
sX0, sXE = 83, 84
sCnt = 85
sQoff = 86
sScr = 87
sNeedM = 88
sM2 = 90
sScM = 98
sRec = 93
sK0 = 94
sLen = 95
sJ = 96
sSpin = 97
sCSC = 92

vLane = 1
vT0, vT1, vT2, vT3, vT4, vT5, vT6, vT7 = 2, 3, 4, 5, 6, 7, 8, 9
vPhys, vInfo = 10, 11
vCAP, vCAPI = 12, 13
vEX, vEXI = 14, 15
vKoff = 16
vVoff = 24
vRT = 16
vQoff = 32
vQaddr = 33
vKaddr = 34
vVaddr = 38
vTok = 46
vM, vLs = 50, 51
vS = 52
vP = 56
vX = 58
vA0, vA1 = 62, 63
vQ = 64
vK = 96
vV = 128
vAcc = 160
vAd = 96
vAd1 = 128
vNeg = 224
vCE = 225
vNB = 226
vScA, vScB = 225, 226
vSync = 227
vR = 228
vRO, vRS = 232, 233
vFlagOff = 234
vRS2 = 235
vF = 236
vNon = 246

def stamp(k):
    if not DIAG:
        return
    I("s_memrealtime s[100:101]")
    I("s_waitcnt lgkmcnt(0)")
    I(f"v_mov_b32 v{248+k}, s100")

def stamp_store():
    if not DIAG:
        return
    I(f"s_lshl_b32 s{sT0}, s2, 3")
    I(f"s_add_u32 s{sT0}, s{sT0}, s{sWave}")
    I(f"s_lshl_b32 s{sT0}, s{sT0}, 5")
    I(f"s_add_u32 s{sT0}, s{sT0}, 0x20000000")
    I(f"v_mov_b32 v{vT1}, 0")
    I("s_mov_b64 exec, 1")
    I(f"buffer_store_dwordx4 v[248:251], v{vT1}, s[{sWS}:{sWS+3}], s{sT0} offen")
    I(f"buffer_store_dwordx4 v[252:255], v{vT1}, s[{sWS}:{sWS+3}], s{sT0} offen offset:16")

def srd(s, lo, hi, nrec):
    I(f"s_mov_b32 s{s}, s{lo}")
    I(f"s_and_b32 s{s+1}, s{hi}, 0xffff")
    I(f"s_mov_b32 s{s+2}, {nrec}")
    I(f"s_mov_b32 s{s+3}, 0x00020000")

def scan32(v):
    for sh in (1, 2, 4, 8):
        I("s_nop 1")
        I(f"v_add_u32_dpp v{v}, v{v}, v{v} row_shr:{sh} row_mask:0xf bank_mask:0xf bound_ctrl:0")
    I("s_nop 1")
    I(f"v_add_u32_dpp v{v}, v{v}, v{v} row_bcast:15 row_mask:0xa bank_mask:0xf")

def xlane(op, v, ta, tb):
    I(f"v_mov_b32 v{ta}, v{v}")
    I(f"v_mov_b32 v{tb}, v{v}")
    I("s_nop 1")
    I(f"v_permlane32_swap_b32 v{ta}, v{tb}")
    I("s_nop 1")
    I(f"{op} v{v}, v{ta}, v{tb}")
    I(f"v_mov_b32 v{ta}, v{v}")
    I("s_nop 0")
    I(f"v_mov_b32 v{tb}, v{v}")
    I("s_nop 1")
    I(f"v_permlane16_swap_b32 v{ta}, v{tb}")
    I("s_nop 1")
    I(f"{op} v{v}, v{ta}, v{tb}")

lab = [0]
def wait_ge(off):
    lab[0] += 1
    n = lab[0]
    I(f"s_cmp_ge_i32 s{sSeen}, s{sNeed}")
    I(f"s_cbranch_scc1 L_wok{n}")
    E(f"L_wp{n}:")
    I(f"ds_read_b32 v{vT0}, v{vSync} offset:{off}")
    I("s_waitcnt lgkmcnt(0)")
    I(f"v_readfirstlane_b32 s{sSeen}, v{vT0}")
    I("s_nop 1")
    I(f"s_cmp_ge_i32 s{sSeen}, s{sNeed}")
    I(f"s_cbranch_scc1 L_wok{n}")
    I(f"s_sleep {SLEEP}")
    I(f"s_branch L_wp{n}")
    E(f"L_wok{n}:")

def signal(off, sval):
    I(f"v_mov_b32 v{vT1}, s{sval}")
    I("s_mov_b64 exec, 1")
    I(f"ds_write_b32 v{vSync}, v{vT1} offset:{off}")
    I("s_mov_b64 exec, -1")

def next_slot():
    I(f"s_add_u32 s{sSo}, s{sSo}, {SLOT}")
    I(f"s_cmp_eq_u32 s{sSo}, s{sSum}")
    I(f"s_cselect_b32 s{sSo}, s{sWB}, s{sSo}")

def read_item():
    I(f"v_readlane_b32 s{sNew}, v{vInfo}, s{sI}")
    I(f"v_readlane_b32 s{sPhys}, v{vPhys}, s{sI}")
    I(f"s_add_u32 s{sI}, s{sI}, 1")
    I(f"s_sub_i32 s{sNeed}, s{sCnt}, {RING-1}")
    I("s_nop 1")
    I(f"s_lshl_b32 s{sVlo}, s{sPhys}, 16")
    I(f"s_lshr_b32 s{sVhi}, s{sPhys}, 16")
    I(f"s_bfe_u32 s{sT2}, s{sNew}, 0x50008")

def issue_k(first=False):
    read_item()
    I(f"s_add_u32 s{sK}, s{sKA+2}, s{sVlo}")
    I(f"s_addc_u32 s{sK+1}, s{sKA+3}, s{sVhi}")
    I(f"s_lshl_b32 s{sK+2}, s{sT2}, 12")
    I(f"s_and_b32 s{sT3}, s{sNew}, 31")
    I(f"s_lshl_b32 s{sT3}, s{sT3}, 13")
    I(f"s_add_u32 s{sQoff}, s{sT3}, s{sHQ}")
    if not first:
        wait_ge(4)
    I(f"s_mov_b32 m0, s{sSo}")
    I("s_nop 0")
    I(f"buffer_load_dwordx4 v{vQoff}, s[{sQ}:{sQ+3}], s{sQoff} offen lds")
    for half in range(2):
        I(f"s_add_u32 m0, s{sSo}, {T_OFF + half*4096}")
        I("s_nop 0")
        for n in range(4*half, 4*half+4):
            I(f"buffer_load_dwordx4 v{vKoff+n}, s[{sK}:{sK+3}], 0 offen offset:{(n&3)*1024} nt lds")
    next_slot()

def issue_v():
    read_item()
    I(f"s_add_u32 s{sV}, s{sKA+4}, s{sVlo}")
    I(f"s_addc_u32 s{sV+1}, s{sKA+5}, s{sVhi}")
    I(f"s_lshl_b32 s{sV+2}, s{sT2}, 12")
    wait_ge(4)
    for half in range(2):
        I(f"s_add_u32 m0, s{sSo}, {T_OFF + half*4096}")
        I("s_nop 0")
        for n in range(4*half, 4*half+4):
            I(f"buffer_load_dwordx4 v{vVoff+n}, s[{sV}:{sV+3}], 0 offen offset:{(n&3)*1024} nt lds")
    next_slot()

def loader():
    E("L_loader:")
    I(f"ds_read_b32 v{vPhys}, v{vT5}")
    I(f"s_mov_b32 s{sI}, 0")
    I(f"s_mov_b32 s{sCnt}, 0")
    I(f"s_lshl_b32 s{sHQ}, s{sH}, 10")
    I(f"s_add_u32 s{sSum}, s{sWB}, {RING*SLOT}")
    I(f"s_mov_b32 s{sSo}, s{sWB}")
    I(f"s_mov_b32 s{sSeen}, 0")
    I("s_waitcnt lgkmcnt(0)")
    issue_k(first=True)
    stamp(4)
    I("s_barrier")
    I(f"s_cmp_eq_u32 s{sNW}, 0")
    I("s_cbranch_scc1 L_ld_done")
    if EARLY:
        E("L_ld_k:")
        I(f"s_waitcnt vmcnt({EARLY})")
        I(f"s_add_u32 s{sCnt}, s{sCnt}, 1")
        I(f"s_cmp_ge_u32 s{sCnt}, s{sNW}")
        I("s_cbranch_scc1 L_ld_v0")
        issue_k()
        I("s_waitcnt vmcnt(9)")
        signal(0, sCnt)
        I("s_branch L_ld_k")
        E("L_ld_v0:")
        I(f"s_mov_b32 s{sI}, 0")
        I(f"s_lshl_b32 s{sNW}, s{sNW}, 1")
        E("L_ld_v:")
        issue_v()
        I("s_waitcnt vmcnt(8)")
        signal(0, sCnt)
        I(f"s_waitcnt vmcnt({EARLY})")
        I(f"s_add_u32 s{sCnt}, s{sCnt}, 1")
        I(f"s_cmp_lt_u32 s{sCnt}, s{sNW}")
        I("s_cbranch_scc1 L_ld_v")
        I("s_waitcnt vmcnt(0)")
        signal(0, sCnt)
    else:
        E("L_ld_k:")
        I("s_waitcnt vmcnt(0)")
        I(f"s_add_u32 s{sCnt}, s{sCnt}, 1")
        signal(0, sCnt)
        I(f"s_cmp_ge_u32 s{sCnt}, s{sNW}")
        I("s_cbranch_scc1 L_ld_v0")
        issue_k()
        I("s_branch L_ld_k")
        E("L_ld_v0:")
        I(f"s_mov_b32 s{sI}, 0")
        I(f"s_lshl_b32 s{sNW}, s{sNW}, 1")
        E("L_ld_v:")
        issue_v()
        I("s_waitcnt vmcnt(0)")
        I(f"s_add_u32 s{sCnt}, s{sCnt}, 1")
        signal(0, sCnt)
        I(f"s_cmp_lt_u32 s{sCnt}, s{sNW}")
        I("s_cbranch_scc1 L_ld_v")
    E("L_ld_done:")
    stamp(5)
    stamp_store()
    I("s_endpgm")

def fire_flag():
    lab[0] += 1
    n = lab[0]
    I(f"v_mov_b32 v{vT0}, {SYNC_BASE + 8}")
    I(f"v_mov_b32 v{vT1}, 1")
    I(f"s_mov_b64 exec, 1")
    I(f"ds_add_rtn_u32 v{vT2}, v{vT0}, v{vT1}")
    I(f"v_mov_b32 v{vT0}, 0")
    I("s_waitcnt lgkmcnt(0)")
    I(f"v_readfirstlane_b32 s{sT0}, v{vT2}")
    I("s_nop 1")
    I(f"s_add_u32 s{sT0}, s{sT0}, 1")
    I(f"s_cmp_lg_u32 s{sT0}, s{sNP}")
    I(f"s_cbranch_scc1 L_ff{n}")
    I(f"s_mov_b32 s{sSpin}, 0")
    I("s_mov_b64 exec, 0xffff")
    I(f"v_mov_b32 v{vT0}, 0")
    I(f"v_lshlrev_b32 v{vT1}, 3, v{vLane}")
    I(f"s_lshl_b32 s{sT1}, s2, 7")
    I(f"s_add_u32 s{sT1}, s{sT1}, {FLAG_BASE}")
    I(f"s_branch L_fw{n}")
    E(f"L_fn{n}:")
    I(f"buffer_load_dwordx2 v[{vNon}:{vNon+1}], v{vT0}, s[{sD}:{sD+3}], 0 offen sc1")
    I("s_waitcnt vmcnt(0)")
    E(f"L_fw{n}:")
    I(f"v_readfirstlane_b32 s{sT0}, v{vNon}")
    I("s_nop 1")
    I(f"s_cmp_lg_u32 s{sT0}, 0")
    I(f"s_cbranch_scc1 L_fs{n}")
    I("s_sleep 8")
    I(f"s_add_u32 s{sSpin}, s{sSpin}, 1")
    I(f"s_cmp_lt_u32 s{sSpin}, 0x200000")
    I(f"s_cbranch_scc1 L_fn{n}")
    E(f"L_fs{n}:")
    I(f"buffer_store_dwordx2 v[{vNon}:{vNon+1}], v{vT1}, s[{sWS}:{sWS+3}], s{sT1} offen sc1")
    E(f"L_ff{n}:")
    I(f"s_mov_b64 exec, -1")
    I(f"s_mov_b32 s{sPend}, 0")

def dump_partial():
    lab[0] += 1
    n = lab[0]
    E(f"L_bw{n}:")
    I(f"ds_read_b32 v{vT0}, v{vSync} offset:12")
    I("s_waitcnt lgkmcnt(0)")
    I(f"v_readfirstlane_b32 s{sT0}, v{vT0}")
    I("s_nop 1")
    I(f"s_cmp_eq_u32 s{sT0}, 0")
    I(f"s_cbranch_scc1 L_bo{n}")
    I("s_sleep 1")
    I(f"s_branch L_bw{n}")
    E(f"L_bo{n}:")
    xlane("v_add_f32", vLs, vT0, vT1)
    I(f"v_lshlrev_b32 v{vT2}, 2, v{vLane}")
    I(f"v_add_u32 v{vT2}, s{sScr}, v{vT2}")
    I(f"v_add_u32 v{vT3}, 0x400, v{vT2}")
    I(f"v_lshlrev_b32 v{vT4}, 3, v{vLane}")
    I(f"v_add_u32 v{vT4}, s{sScr}, v{vT4}")
    I(f"s_mov_b64 exec, 0xffff")
    for n in range(16):
        a = vT2 if n < 8 else vT3
        o = (n & 7) * 32
        I(f"ds_write2_b32 v{a}, v{vAcc+4*n}, v{vAcc+4*n+1} offset0:{o} offset1:{o+16}")
    I(f"s_mov_b64 exec, 3")
    I(f"ds_write_b64 v{vT4}, v[{vM}:{vM+1}] offset:2048")
    I(f"s_mov_b64 exec, -1")

def next_cslot():
    I(f"s_add_u32 s{sSo}, s{sSo}, {SLOT}")
    I(f"s_cmp_eq_u32 s{sSo}, {RING*SLOT}")
    I(f"s_cselect_b32 s{sSo}, 0, s{sSo}")

def phase1():
    I(f"v_readlane_b32 s{sCur}, v{vInfo}, s{sCnt}")
    I(f"s_add_u32 s{sNeed}, s{sCnt}, 1")
    I(f"v_add_u32 v{vAd1}, s{sSo}, v{vQaddr}")
    for q in range(4):
        I(f"v_add_u32 v{vAd1+1+q}, s{sSo}, v{vKaddr+q}")
    wait_ge(0)
    for n in range(8):
        I(f"ds_read_b128 v[{vQ+4*n}:{vQ+4*n+3}], v{vAd1} offset:{n*64}")
        I(f"ds_read_b128 v[{vK+4*n}:{vK+4*n+3}], v{vAd1+1+(n&3)} offset:{(n>>2)*256}")
    I(f"s_bfe_u32 s{sValid}, s{sCur}, 0x50008")
    for n in range(8):
        I(f"s_waitcnt lgkmcnt({14-2*n})")
        c = "0" if n == 0 else f"v[{vS}:{vS+3}]"
        I(f"v_mfma_f32_16x16x32_bf16 v[{vS}:{vS+3}], v[{vK+4*n}:{vK+4*n+3}], v[{vQ+4*n}:{vQ+4*n+3}], {c}")
    signal(4, sNeed)
    next_cslot()
    I(f"s_cmp_eq_u32 s{sValid}, 16")
    I("s_nop 1")
    I("s_cbranch_scc1 L_full")
    for r in range(4):
        I(f"v_cmp_gt_u32 vcc, s{sValid}, v{vTok+r}")
        I("s_nop 1")
        I(f"v_cndmask_b32 v{vS+r}, v{vNeg}, v{vS+r}, vcc")
    E("L_full:")
    I(f"s_mov_b64 exec, s[{sScM}:{sScM+1}]")
    I(f"ds_write_b128 v{vScA}, v[{vS}:{vS+3}]")
    I("s_mov_b64 exec, -1")
    I(f"v_add_u32 v{vScA}, 0x80, v{vScA}")
    I(f"s_add_u32 s{sCnt}, s{sCnt}, 1")
    I(f"s_cmp_lt_u32 s{sCnt}, s{sNW}")

def phase2():
    tag = "a"
    I(f"ds_read_b128 v[{vS}:{vS+3}], v{vScA}")
    I(f"s_add_u32 s{sT0}, s{sCnt}, 1")
    I(f"v_readlane_b32 s{sCur}, v{vInfo}, s{sCnt}")
    I(f"v_readlane_b32 s{sNxt}, v{vInfo}, s{sT0}")
    I(f"s_add_u32 s{sNeed}, s{sT0}, s{sNW}")
    I(f"v_add_u32 v{vScA}, 0x80, v{vScA}")
    for q in range(8):
        I(f"v_add_u32 v{vAd+q}, s{sSo}, v{vVaddr+q}")
    I(f"s_bitcmp1_b32 s{sCur}, 16")
    I(f"s_cselect_b32 s{sScale}, 0, s{sCSC}")
    I(f"s_cmp_eq_u32 s{sPend}, 0")
    I(f"s_cbranch_scc1 L_nopend_{tag}")
    I("s_waitcnt vmcnt(0)")
    fire_flag()
    E(f"L_nopend_{tag}:")
    I("s_waitcnt lgkmcnt(0)")
    I(f"v_max3_f32 v{vX}, v{vS}, v{vS+1}, v{vS+2}")
    I(f"v_max_f32 v{vX}, v{vX}, v{vS+3}")
    I(f"v_mul_f32 v{vX}, s{sScale}, v{vX}")
    I(f"v_cmp_gt_f32 vcc, v{vX}, v{vM}")
    I("s_nop 1")
    I(f"s_cbranch_vccnz L_rare_{tag}")
    E(f"L_back_{tag}:")
    for r in range(4):
        I(f"v_fma_f32 v{vX+r}, v{vS+r}, s{sScale}, -v{vM}")
    for r in range(4):
        I(f"v_exp_f32 v{vX+r}, v{vX+r}")
    I("s_nop 0")
    I(f"v_cvt_pk_bf16_f32 v{vP}, v{vX}, v{vX+1}")
    I(f"v_cvt_pk_bf16_f32 v{vP+1}, v{vX+2}, v{vX+3}")
    I(f"v_add_f32 v{vX}, v{vX}, v{vX+1}")
    I(f"v_add_f32 v{vX+2}, v{vX+2}, v{vX+3}")
    I(f"v_add_f32 v{vLs}, v{vLs}, v{vX}")
    I(f"v_add_f32 v{vLs}, v{vLs}, v{vX+2}")
    wait_ge(0)
    for n in range(16):
        I(f"ds_read_b64_tr_b16 v[{vV+2*n}:{vV+2*n+1}], v{vAd+(n&7)} offset:{(n>>3)*256}")
    for n in range(16):
        I(f"s_waitcnt lgkmcnt({15-n})")
        I(f"v_mfma_f32_16x16x16_bf16 v[{vAcc+4*n}:{vAcc+4*n+3}], v[{vP}:{vP+1}], v[{vV+2*n}:{vV+2*n+1}], v[{vAcc+4*n}:{vAcc+4*n+3}]")
    signal(4, sNeed)
    next_cslot()
    I(f"s_xor_b32 s{sT0}, s{sCur}, s{sNxt}")
    I(f"s_and_b32 s{sT0}, s{sT0}, 31")
    I(f"s_cbranch_scc1 L_flush_{tag}")
    E(f"L_noflush_{tag}:")
    I(f"s_add_u32 s{sCnt}, s{sCnt}, 1")
    I(f"s_cmp_lt_u32 s{sCnt}, s{sNW}")

def rare_path(tag):
    E(f"L_rare_{tag}:")
    I(f"v_max_f32 v{vX}, v{vX}, v{vM}")
    xlane("v_max_f32", vX, vX+1, vX+2)
    I(f"v_sub_f32 v{vX+1}, v{vM}, v{vX}")
    I(f"v_exp_f32 v{vX+1}, v{vX+1}")
    I(f"v_mov_b32 v{vM}, v{vX}")
    I("s_nop 0")
    I(f"v_mul_f32 v{vLs}, v{vLs}, v{vX+1}")
    I(f"v_mov_b32_dpp v{vA0}, v{vX+1} quad_perm:[0,0,0,0] row_mask:0xf bank_mask:0xf")
    I(f"v_mov_b32_dpp v{vA1}, v{vX+1} quad_perm:[1,1,1,1] row_mask:0xf bank_mask:0xf")
    for n in range(16):
        I(f"v_mul_f32 v{vAcc+4*n}, v{vA0}, v{vAcc+4*n}")
        I(f"v_mul_f32 v{vAcc+4*n+1}, v{vA1}, v{vAcc+4*n+1}")
    I(f"s_branch L_back_{tag}")

def flush_path(tag):
    E(f"L_flush_{tag}:")
    I(f"s_cmp_eq_u32 s{sPend}, 0")
    I(f"s_cbranch_scc1 L_fl_np_{tag}")
    I("s_waitcnt vmcnt(0)")
    fire_flag()
    E(f"L_fl_np_{tag}:")
    I("s_nop 7")
    dump_partial()
    I(f"s_and_b32 s{sJ}, s{sCur}, 31")
    I(f"v_mov_b32 v{vT1}, 1")
    I(f"s_lshl_b32 s{sT0}, s{sJ}, 2")
    I(f"s_add_u32 s{sT0}, s{sT0}, {ARR_BASE}")
    I(f"v_mov_b32 v{vT0}, s{sT0}")
    I(f"v_readlane_b32 s{sT1}, v{vEX}, s{sJ}")
    I(f"v_readlane_b32 s{sT2}, v{vEXI}, s{sJ}")
    I("s_mov_b64 exec, 1")
    I(f"ds_write_b32 v{vSync}, v{vT1} offset:12")
    I("s_waitcnt lgkmcnt(0)")
    I(f"ds_add_rtn_u32 v{vT2}, v{vT0}, v{vT1}")
    I("s_mov_b64 exec, -1")
    I(f"s_max_u32 s{sT1}, s{sT1}, s{sCAPB}")
    I(f"s_min_u32 s{sT2}, s{sT2}, s{sCAPE}")
    I(f"s_sub_u32 s{sLen}, s{sT2}, s{sT1}")
    I(f"s_sub_u32 s{sK0}, s{sT1}, s{sCAPB}")
    I(f"s_min_u32 s{sT3}, s{sLen}, 4")
    I(f"v_mov_b32 v{vM}, 0xff800000")
    I("s_waitcnt lgkmcnt(0)")
    I(f"v_readfirstlane_b32 s{sT0}, v{vT2}")
    I("s_nop 1")
    I(f"s_add_u32 s{sT0}, s{sT0}, 1")
    I(f"s_cmp_lg_u32 s{sT0}, s{sT3}")
    I(f"s_cbranch_scc1 L_noflush_{tag}")
    I(f"v_lshrrev_b32 v{vT3}, 2, v{vLane}")
    I(f"v_and_b32 v{vT3}, 1, v{vT3}")
    I(f"v_lshlrev_b32 v{vT3}, 3, v{vT3}")
    I(f"v_add_u32 v{vT3}, {TAB_BASE + 2048}, v{vT3}")
    I(f"v_add_u32 v{vT4}, {TAB_BASE}, v{vQoff}")
    I(f"v_mov_b32 v{vF+8}, 0xff800000")
    I(f"v_mov_b32 v{vF+9}, 0")
    for i in range(8):
        I(f"v_mov_b32 v{vF+i}, 0")
    I(f"v_mov_b32 v{vT5}, {SYNC_BASE}")
    I(f"v_mov_b32 v{vT6}, 0")
    for w in range(4):
        I(f"s_sub_u32 s{sT0}, {w}, s{sK0}")
        I(f"s_and_b32 s{sT0}, s{sT0}, 3")
        I(f"s_cmp_ge_u32 s{sT0}, s{sLen}")
        I(f"s_cbranch_scc1 L_fm{w}_{tag}")
        I(f"ds_read_b64 v[{vRT+8}:{vRT+9}], v{vT3} offset:{w*4096}")
        I(f"ds_read_b128 v[{vRT}:{vRT+3}], v{vT4} offset:{w*4096}")
        I(f"ds_read_b128 v[{vRT+4}:{vRT+7}], v{vT4} offset:{w*4096+1024}")
        I("s_waitcnt lgkmcnt(0)")
        I("s_mov_b64 exec, 1")
        I(f"ds_write_b32 v{vT5}, v{vT6} offset:{w*16+12}")
        I("s_mov_b64 exec, -1")
        I(f"v_max_f32 v{vT0}, v{vF+8}, v{vRT+8}")
        I(f"v_sub_f32 v{vT1}, v{vF+8}, v{vT0}")
        I(f"v_sub_f32 v{vT2}, v{vRT+8}, v{vT0}")
        I(f"v_exp_f32 v{vT1}, v{vT1}")
        I(f"v_exp_f32 v{vT2}, v{vT2}")
        I(f"v_mov_b32 v{vF+8}, v{vT0}")
        I(f"v_mul_f32 v{vF+9}, v{vF+9}, v{vT1}")
        I(f"v_fmac_f32 v{vF+9}, v{vRT+9}, v{vT2}")
        for i in range(8):
            I(f"v_mul_f32 v{vF+i}, v{vF+i}, v{vT1}")
            I(f"v_fmac_f32 v{vF+i}, v{vRT+i}, v{vT2}")
        E(f"L_fm{w}_{tag}:")
    I(f"s_lshl_b32 s{sT1}, s{sJ}, 5")
    I(f"s_add_u32 s{sT1}, s{sT1}, s{sB}")
    I(f"s_lshl_b32 s{sT1}, s{sT1}, 3")
    I(f"s_add_u32 s{sT1}, s{sT1}, s{sH}")
    I(f"s_mul_i32 s{sRec}, s{sT1}, {RECSZ}")
    I(f"v_lshlrev_b32 v{vT0}, 3, v{vLane}")
    I(f"buffer_store_dwordx4 v[{vF}:{vF+3}], v{vQoff}, s[{sWS}:{sWS+3}], s{sRec} offen sc1")
    I(f"buffer_store_dwordx4 v[{vF+4}:{vF+7}], v{vQoff}, s[{sWS}:{sWS+3}], s{sRec} offen offset:1024 sc1")
    I(f"s_mov_b64 exec, 0xffff")
    I(f"buffer_store_dwordx2 v[{vF+8}:{vF+9}], v{vT0}, s[{sWS}:{sWS+3}], s{sRec} offen offset:2048 sc1")
    I(f"s_mov_b64 exec, -1")
    I(f"buffer_load_dwordx2 v[{vNon}:{vNon+1}], v{vT6}, s[{sD}:{sD+3}], 0 offen")
    I(f"s_mov_b32 s{sPend}, 1")
    I(f"s_branch L_noflush_{tag}")

def merge_one(m, l, o0, o1):
    M, Ls, A0, A1 = vR, vR+1, vR+2, vR+3
    I(f"v_max_f32 v{vT0}, v{M}, v{m}")
    I(f"v_sub_f32 v{vT1}, v{M}, v{vT0}")
    I(f"v_sub_f32 v{vT2}, v{m}, v{vT0}")
    I(f"v_exp_f32 v{vT1}, v{vT1}")
    I(f"v_exp_f32 v{vT2}, v{vT2}")
    I(f"v_mov_b32 v{M}, v{vT0}")
    I(f"v_mul_f32 v{Ls}, v{Ls}, v{vT1}")
    I(f"v_mul_f32 v{A0}, v{A0}, v{vT1}")
    I(f"v_mul_f32 v{A1}, v{A1}, v{vT1}")
    I(f"v_fmac_f32 v{Ls}, v{l}, v{vT2}")
    I(f"v_fmac_f32 v{A0}, v{o0}, v{vT2}")
    I(f"v_fmac_f32 v{A1}, v{o1}, v{vT2}")

def record_block():
    def ret():
        I(f"s_cmp_eq_u32 s{sRecBlock}, 0")
        I("s_cbranch_scc1 L_loop_go")
    E("L_rectry:")
    I(f"s_cmp_eq_u32 s{sRecState}, 2")
    I("s_cbranch_scc1 L_rs_check")
    I(f"s_cmp_eq_u32 s{sRecState}, 3")
    I("s_cbranch_scc1 L_rs_merge")
    E("L_rs_poll:")
    I(f"v_mov_b32 v{vT0}, 0")
    I(f"s_mov_b32 s{sT0}, {FLAG_BASE}")
    I(f"s_cmp_lg_u32 s{sSpin2}, 0")
    I("s_cbranch_scc1 L_pn1")
    I(f"buffer_load_dwordx2 v[{vRT}:{vRT+1}], v{vT0}, s[{sD}:{sD+3}], 0 offen")
    I("s_branch L_pn2")
    E("L_pn1:")
    I(f"buffer_load_dwordx2 v[{vRT}:{vRT+1}], v{vT0}, s[{sD}:{sD+3}], 0 offen sc1")
    E("L_pn2:")
    I(f"s_mov_b32 s{sSpin2}, 1")
    I(f"s_mov_b64 exec, s[{sNeedM}:{sNeedM+1}]")
    I(f"buffer_load_dwordx2 v[{vRT+2}:{vRT+3}], v{vFlagOff}, s[{sWS}:{sWS+3}], s{sT0} offen sc1")
    I("s_mov_b64 exec, -1")
    I(f"s_mov_b32 s{sRecState}, 2")
    ret()
    E("L_rs_check:")
    I("s_waitcnt vmcnt(0)")
    I(f"s_mov_b64 exec, s[{sNeedM}:{sNeedM+1}]")
    I(f"v_cmp_ne_u64 vcc, v[{vRT}:{vRT+1}], v[{vRT+2}:{vRT+3}]")
    I(f"v_cmp_eq_u32 s[{sM2}:{sM2+1}], 0, v{vRT}")
    I("s_mov_b64 exec, -1")
    I("s_nop 2")
    I(f"s_or_b64 vcc, vcc, s[{sM2}:{sM2+1}]")
    I(f"s_cmp_eq_u64 vcc, 0")
    I("s_cbranch_scc1 L_ready")
    I(f"s_mov_b32 s{sRecState}, 0")
    ret()
    I("s_sleep 8")
    I(f"s_add_u32 s{sSpin}, s{sSpin}, 1")
    I(f"s_cmp_lt_u32 s{sSpin}, 0x200000")
    I("s_cbranch_scc1 L_rs_poll")
    E("L_ready:")
    I(f"s_mov_b32 s{sX0}, s{sEXB}")
    I(f"s_add_u32 s{sXE}, s{sEXB}, s{sEXN}")
    E("L_rs_issue:")
    I(f"s_mov_b32 s{sLen}, 0")
    for q in range(4):
        if q:
            I(f"s_cmp_ge_u32 s{sX0}, s{sXE}")
            I("s_cbranch_scc1 L_rs_issued")
        I(f"v_cmp_ge_u32 vcc, s{sX0}, v{vCAPI}")
        I("s_nop 3")
        I(f"s_bcnt1_i32_b64 s{sJ}, vcc")
        I(f"s_lshl_b32 s{sT0}, s{sB}, 5")
        I(f"v_readlane_b32 s{sT1}, v{vCAPI}, s{sJ}")
        I(f"s_add_u32 s{sT0}, s{sT0}, s{sJ}")
        I(f"s_lshl_b32 s{sT0}, s{sT0}, 3")
        I(f"s_add_u32 s{sT0}, s{sT0}, s{sH}")
        I(f"s_mul_i32 s{sRec}, s{sT0}, {RECSZ}")
        I(f"s_min_u32 s{sX0}, s{sT1}, s{sXE}")
        I(f"buffer_load_dwordx2 v[{vRT+4*q}:{vRT+4*q+1}], v{vRS2}, s[{sWS}:{sWS+3}], s{sRec} offen sc1")
        I(f"buffer_load_dwordx2 v[{vRT+4*q+2}:{vRT+4*q+3}], v{vRO}, s[{sWS}:{sWS+3}], s{sRec} offen sc1")
        I(f"s_mov_b32 s{sLen}, {q+1}")
    E("L_rs_issued:")
    I(f"s_mov_b32 s{sRecState}, 3")
    ret()
    E("L_rs_merge:")
    I("s_waitcnt vmcnt(0)")
    for q in range(4):
        if q:
            I(f"s_cmp_le_u32 s{sLen}, {q}")
            I("s_cbranch_scc1 L_rs_merged")
        merge_one(vRT+4*q, vRT+4*q+1, vRT+4*q+2, vRT+4*q+3)
    E("L_rs_merged:")
    I(f"s_cmp_lt_u32 s{sX0}, s{sXE}")
    I("s_cbranch_scc1 L_rs_issue")
    I(f"s_mov_b32 s{sRecState}, 1")
    ret()
    I("s_branch L_store")

def gen():
    E("; paged attention decode: B=32 Hq=16 Hkv=8 D=256, 16-token blocks, 128 blocks/seq (generated by gen/gen4.py)")
    E(f"; @launch grid=(256,1,1) block=(512,1,1) lds={LDS_BYTES}")
    E('.amdgcn_target "amdgcn-amd-amdhsa--gfx950"')
    E(".text")
    E(f".globl {NAME}_kernel")
    E(".p2align 8")
    E(f".type {NAME}_kernel,@function")
    E(f"{NAME}_kernel:")
    I("s_cmp_ge_u32 s2, 256")
    I("s_cbranch_scc1 L_end")
    stamp(0)
    I(f"s_load_dwordx16 s[{sKA}:{sKA+15}], s[0:1], 0")
    I(f"v_and_b32 v{vLane}, 63, v0")
    I(f"v_lshrrev_b32 v{vT0}, 6, v0")
    if "mapx" in XP:
        I("s_xor_b32 s2, s2, 1")
    I(f"s_lshr_b32 s{sB}, s2, 3")
    I(f"s_and_b32 s{sH}, s2, 7")
    I(f"v_readfirstlane_b32 s{sWave}, v{vT0}")
    if True:
        I(f"s_getpc_b64 s[{sM2}:{sM2+1}]")
        I(f"v_lshlrev_b32 v{vT1}, 7, v0")
        I(f"v_min_u32 v{vT1}, L_code_end-{NAME}_kernel-128, v{vT1}")
        I(f"s_cmp_gt_u32 s{sWave}, 1")
        I("s_cbranch_scc1 L_nocpf")
        I(f"global_load_dword v246, v{vT1}, s[{sM2}:{sM2+1}]")
        E("L_nocpf:")
    I(f"v_lshlrev_b32 v{vQoff}, 4, v{vLane}")
    I(f"v_lshlrev_b32 v{vT7}, 2, v{vLane}")
    I(f"s_and_b32 s{sW}, s{sWave}, 3")
    I(f"s_cmp_lt_u32 s{sWave}, 4")
    I(f"s_cselect_b32 s{sRole}, 0, 1")
    I(f"s_mul_i32 s{sWB}, s{sW}, {WAVE_RING}")
    I(f"s_lshl_b32 s{sT0}, s{sW}, 12")
    I(f"s_add_u32 s{sScr}, s{sT0}, {TAB_BASE}")
    I(f"s_lshl_b32 s{sT0}, s{sWave}, 11")
    I(f"v_add_u32 v{vT6}, s{sT0}, v{vQoff}")
    I(f"s_add_u32 m0, s{sT0}, {TAB_BASE}")
    I(f"s_lshl_b32 s{sT1}, s{sW}, 4")
    I(f"s_add_u32 s{sT1}, s{sT1}, {SYNC_BASE}")
    I(f"v_mov_b32 v{vSync}, s{sT1}")
    I("s_waitcnt lgkmcnt(0)")
    stamp(1)
    srd(sT, sKA+8, sKA+9, 128)
    I(f"buffer_load_dword v{vCE}, v{vT7}, s[{sT}:{sT+3}], 0 offen")
    srd(sQ, sKA+6, sKA+7, 16384)
    for n in range(2):
        I(f"buffer_load_dwordx4 v{vT6}, s[{sQ}:{sQ+3}], 0 offen offset:{n*1024} lds")
    srd(sWS, sKA+14, sKA+15, 1074790400)
    srd(sO, sKA+10, sKA+11, 262144)
    srd(sD, sKA+12, sKA+13, 256)
    srd(sK, sKA+2, sKA+3, 0)
    srd(sV, sKA+4, sKA+5, 0)
    I(f"v_mov_b32 v{vT0}, 0")
    I(f"v_mov_b32 v{vT1}, 0")
    I(f"ds_write_b64 v{vSync}, v[{vT0}:{vT1}]")
    I(f"ds_write_b64 v{vSync}, v[{vT0}:{vT1}] offset:8")
    I(f"v_and_b32 v{vT2}, 31, v{vLane}")
    I(f"v_lshlrev_b32 v{vT2}, 2, v{vT2}")
    I(f"v_add_u32 v{vT2}, {ARR_BASE}, v{vT2}")
    I(f"ds_write_b32 v{vT2}, v{vT0}")
    I(f"s_cmp_eq_u32 s{sRole}, 0")
    I("s_cbranch_scc1 L_lpre")
    I("s_waitcnt vmcnt(0) lgkmcnt(0)")
    I("s_barrier")
    I("s_branch L_pre_cons")
    E("L_lpre:")
    I(f"v_lshrrev_b32 v{vT0}, 5, v{vLane}")
    I(f"v_and_b32 v{vT1}, 31, v{vLane}")
    I(f"s_lshl_b32 s{sT0}, s{sH}, 9")
    I(f"v_lshlrev_b32 v{vT2}, 12, v{vT0}")
    I(f"v_add_u32 v{vT2}, s{sT0}, v{vT2}")
    I(f"v_xor_b32 v{vT3}, v{vT1}, v{vT0}")
    I(f"v_lshlrev_b32 v{vT4}, 1, v{vT0}")
    I(f"v_xor_b32 v{vT4}, v{vT1}, v{vT4}")
    for n in range(8):
        I(f"v_xor_b32 v{vT5}, {2*n}, v{vT3}")
        I(f"v_lshl_add_u32 v{vT5}, v{vT5}, 4, v{vT2}")
        I(f"v_add_u32 v{vKoff+n}, {n*8192-(n&3)*1024}, v{vT5}")
        I(f"v_xor_b32 v{vT5}, {((2*n)&7)<<1}, v{vT4}")
        I(f"v_lshl_add_u32 v{vT5}, v{vT5}, 4, v{vT2}")
        I(f"v_add_u32 v{vVoff+n}, {n*8192-(n&3)*1024}, v{vT5}")
    E("L_sched:")
    I(f"v_cmp_gt_u32 vcc, 32, v{vLane}")
    I("s_waitcnt vmcnt(2)")
    stamp(2)
    I(f"v_cmp_gt_i32 s[{sM2}:{sM2+1}], 1, v{vCE}")
    I(f"v_min_i32 v{vT0}, 0x800, v{vCE}")
    I(f"v_mov_b32 v{vT1}, 0x800")
    I(f"v_cndmask_b32 v{vCE}, v{vT0}, v{vT1}, s[{sM2}:{sM2+1}]")
    I(f"v_cndmask_b32 v{vT7}, 0, 1, s[{sM2}:{sM2+1}]")
    I(f"v_add_u32 v{vNB}, 15, v{vCE}")
    I(f"v_lshrrev_b32 v{vNB}, 4, v{vNB}")
    I(f"v_lshl_or_b32 v{vCE}, v{vT7}, 16, v{vCE}")
    I(f"v_cndmask_b32 v{vNB}, 0, v{vNB}, vcc")
    I(f"v_mov_b32 v{vT0}, v{vNB}")
    scan32(vT0)
    I("s_nop 0")
    I(f"v_readlane_b32 s{sT0}, v{vT0}, 31")
    I("s_nop 3")
    I(f"s_add_u32 s{sT0}, s{sT0}, 31")
    I(f"s_lshr_b32 s{sL}, s{sT0}, 5")
    I(f"v_subrev_u32 v{vT0}, s{sL}, v{vNB}")
    I(f"v_max_i32 v{vT1}, 0, v{vT0}")
    I(f"v_sub_u32 v{vT0}, 0, v{vT0}")
    I(f"v_max_i32 v{vT2}, 0, v{vT0}")
    I(f"v_cndmask_b32 v{vT2}, 0, v{vT2}, vcc")
    I(f"v_lshl_or_b32 v{vT3}, v{vT2}, 16, v{vT1}")
    scan32(vT3)
    I(f"v_and_b32 v{vEXI}, 0xffff, v{vT3}")
    I(f"v_lshrrev_b32 v{vCAPI}, 16, v{vT3}")
    I(f"v_sub_u32 v{vEX}, v{vEXI}, v{vT1}")
    I(f"v_sub_u32 v{vCAP}, v{vCAPI}, v{vT2}")
    I(f"v_readlane_b32 s{sT0}, v{vEXI}, 31")
    I(f"v_readlane_b32 s{sCAPB}, v{vCAP}, s{sB}")
    I(f"v_readlane_b32 s{sT1}, v{vT2}, s{sB}")
    I(f"v_readlane_b32 s{sT2}, v{vNB}, s{sB}")
    I(f"v_readlane_b32 s{sEXB}, v{vEX}, s{sB}")
    I(f"v_readlane_b32 s{sEXN}, v{vT1}, s{sB}")
    I(f"v_readlane_b32 s{sT3}, v{vCE}, s{sB}")
    I(f"v_mov_b32 v{vT0}, 0x7fffffff")
    I(f"v_cndmask_b32 v{vEXI}, v{vT0}, v{vEXI}, vcc")
    I(f"v_cndmask_b32 v{vCAPI}, v{vT0}, v{vCAPI}, vcc")
    I(f"s_sub_i32 s{sT0}, s{sT0}, s{sCAPB}")
    I(f"s_max_i32 s{sT0}, s{sT0}, 0")
    I(f"s_min_i32 s{sHC}, s{sT0}, s{sT1}")
    I(f"s_min_u32 s{sT2}, s{sT2}, s{sL}")
    I(f"s_add_u32 s{sT2}, s{sT2}, s{sHC}")
    I(f"s_sub_i32 s{sT0}, s{sT2}, s{sW}")
    I(f"s_add_i32 s{sT0}, s{sT0}, 3")
    I(f"s_ashr_i32 s{sNW}, s{sT0}, 2")
    I(f"v_lshlrev_b32 v{vT0}, 2, v{vLane}")
    I(f"v_add_u32 v{vT0}, s{sW}, v{vT0}")
    I(f"v_mov_b32 v{vT1}, s{sB}")
    I(f"v_subrev_u32 v{vT2}, s{sHC}, v{vT0}")
    I(f"v_mov_b32 v{vT3}, s{sT3}")
    I(f"v_add_u32 v{vT4}, s{sCAPB}, v{vT0}")
    I(f"v_cmp_gt_u32 s[{sM2}:{sM2+1}], s{sHC}, v{vT0}")
    I(f"s_mov_b32 s{sX0}, s{sCAPB}")
    I(f"s_add_u32 s{sXE}, s{sCAPB}, s{sHC}")
    E("L_piece:")
    I(f"s_cmp_ge_u32 s{sX0}, s{sXE}")
    I("s_cbranch_scc1 L_piece_done")
    I(f"v_cmp_ge_u32 vcc, s{sX0}, v{vEXI}")
    I("s_nop 3")
    I(f"s_bcnt1_i32_b64 s{sT0}, vcc")
    I(f"v_cmp_le_u32 vcc, s{sX0}, v{vT4}")
    I(f"v_readlane_b32 s{sT1}, v{vEX}, s{sT0}")
    I(f"v_readlane_b32 s{sX0}, v{vEXI}, s{sT0}")
    I(f"v_readlane_b32 s{sT3}, v{vCE}, s{sT0}")
    I("s_nop 3")
    I(f"s_and_b64 vcc, vcc, s[{sM2}:{sM2+1}]")
    I(f"s_sub_i32 s{sT1}, s{sL}, s{sT1}")
    I(f"v_mov_b32 v{vT5}, s{sT0}")
    I(f"v_add_u32 v{vT6}, s{sT1}, v{vT4}")
    I(f"v_mov_b32 v{vT7}, s{sT3}")
    I(f"v_cndmask_b32 v{vT1}, v{vT1}, v{vT5}, vcc")
    I(f"v_cndmask_b32 v{vT2}, v{vT2}, v{vT6}, vcc")
    I(f"v_cndmask_b32 v{vT3}, v{vT3}, v{vT7}, vcc")
    I("s_branch L_piece")
    E("L_piece_done:")
    I(f"v_cmp_gt_u32 vcc, s{sT2}, v{vT0}")
    I(f"v_and_b32 v{vT4}, 0xffff, v{vT3}")
    I(f"v_lshlrev_b32 v{vT5}, 4, v{vT2}")
    I(f"v_sub_u32 v{vT4}, v{vT4}, v{vT5}")
    I(f"v_min_i32 v{vT4}, 16, v{vT4}")
    I(f"v_cndmask_b32 v{vT4}, 0, v{vT4}, vcc")
    I(f"v_cndmask_b32 v{vT2}, 0, v{vT2}, vcc")
    I(f"v_and_b32 v{vT3}, 0x10000, v{vT3}")
    I(f"v_lshl_or_b32 v{vInfo}, v{vT4}, 8, v{vT1}")
    I(f"v_or_b32 v{vInfo}, v{vInfo}, v{vT3}")
    I(f"v_lshl_add_u32 v{vT5}, v{vT1}, 7, v{vT2}")
    I(f"v_lshlrev_b32 v{vT5}, 2, v{vT5}")
    I(f"v_add_u32 v{vT5}, {TAB_BASE}, v{vT5}")
    srd(sQ, sKA+0, sKA+1, 262144)
    stamp(3)
    I(f"s_cmp_lg_u32 s{sRole}, 0")
    I("s_cbranch_scc1 L_cons_main")
    I("s_waitcnt vmcnt(0) lgkmcnt(0)")
    I("s_barrier")
    loader()
    E("L_pre_cons:")
    I(f"v_and_b32 v{vT0}, 15, v{vLane}")
    I(f"v_lshrrev_b32 v{vT1}, 4, v{vLane}")
    I(f"v_and_b32 v{vT2}, 1, v{vLane}")
    I(f"v_lshlrev_b32 v{vT2}, 9, v{vT2}")
    I(f"v_lshl_add_u32 v{vT2}, v{vT1}, 4, v{vT2}")
    I(f"v_add_u32 v{vQaddr}, s{sWB}, v{vT2}")
    I(f"v_xor_b32 v{vT2}, v{vT1}, v{vT0}")
    I(f"v_lshlrev_b32 v{vT3}, 9, v{vT0}")
    I(f"v_add_u32 v{vT3}, s{sWB}, v{vT3}")
    I(f"v_add_u32 v{vT3}, {T_OFF}, v{vT3}")
    for q in range(4):
        I(f"v_xor_b32 v{vT4}, {4*q}, v{vT2}")
        I(f"v_lshl_add_u32 v{vKaddr+q}, v{vT4}, 4, v{vT3}")
    I(f"v_lshrrev_b32 v{vT0}, 2, v{vLane}")
    I(f"v_and_b32 v{vT2}, 3, v{vLane}")
    I(f"v_and_b32 v{vT3}, 7, v{vT0}")
    I(f"v_lshlrev_b32 v{vT3}, 1, v{vT3}")
    I(f"v_lshrrev_b32 v{vT4}, 1, v{vT2}")
    I(f"v_xor_b32 v{vT3}, v{vT3}, v{vT4}")
    I(f"v_and_b32 v{vT4}, 1, v{vT2}")
    I(f"v_lshlrev_b32 v{vT4}, 3, v{vT4}")
    I(f"v_lshl_add_u32 v{vT4}, v{vT0}, 9, v{vT4}")
    I(f"v_add_u32 v{vT4}, s{sWB}, v{vT4}")
    I(f"v_add_u32 v{vT4}, {T_OFF}, v{vT4}")
    for q in range(8):
        I(f"v_xor_b32 v{vT5}, {2*q}, v{vT3}")
        I(f"v_lshl_add_u32 v{vVaddr+q}, v{vT5}, 4, v{vT4}")
    I(f"v_lshlrev_b32 v{vTok}, 2, v{vT1}")
    for r in range(1, 4):
        I(f"v_add_u32 v{vTok+r}, {r}, v{vTok}")
    I("s_branch L_sched")
    E("L_cons_main:")
    I(f"v_mov_b32 v{vNeg}, 0xff7fffff")
    I(f"v_mov_b32 v{vM}, 0xff800000")
    I(f"v_mov_b32 v{vLs}, 0")
    for n in range(64):
        I(f"v_mov_b32 v{vAcc+n}, 0")
    I(f"s_mov_b32 s{sCSC}, 0x3db8aa3b")
    I(f"s_mov_b32 s{sPend}, 0")
    I(f"s_mov_b32 s{sCnt}, 0")
    I(f"s_mov_b32 s{sSeen}, 0")
    I(f"s_mov_b32 s{sRecBlock}, 0")
    I(f"s_mov_b32 s{sSo}, 0")
    I(f"s_mov_b32 s{sScM}, 0x00030003")
    I(f"s_mov_b32 s{sScM+1}, 0x00030003")
    I(f"v_lshrrev_b32 v{vT0}, 4, v{vLane}")
    I(f"v_and_b32 v{vT1}, 1, v{vLane}")
    I(f"v_lshl_add_u32 v{vT0}, v{vT0}, 1, v{vT1}")
    I(f"v_lshlrev_b32 v{vT0}, 4, v{vT0}")
    I(f"v_add_u32 v{vT0}, s{sWB}, v{vT0}")
    I(f"v_add_u32 v{vScB}, {SC_OFF}, v{vT0}")
    I(f"v_mov_b32 v{vScA}, v{vScB}")
    I(f"s_mov_b32 s{sSpin2}, 0")
    I(f"s_mov_b32 s{sSpin}, 0")
    I(f"s_add_u32 s{sT0}, s2, s{sW}")
    I(f"s_cmp_lg_u32 s{sT0}, 0")
    I("s_cbranch_scc1 L_nononce")
    I(f"s_memrealtime s[{sM2}:{sM2+1}]")
    I(f"v_mov_b32 v{vT0}, 0")
    I("s_waitcnt lgkmcnt(0)")
    I(f"s_or_b32 s{sT0}, s{sM2}, 1")
    I(f"v_mov_b32 v{vT2}, s{sT0}")
    I(f"v_mov_b32 v{vT3}, s{sM2+1}")
    I("s_mov_b64 exec, 1")
    I(f"buffer_store_dwordx2 v[{vT2}:{vT3}], v{vT0}, s[{sD}:{sD+3}], 0 offen sc1")
    I("s_mov_b64 exec, -1")
    E("L_nononce:")
    I(f"v_and_b32 v0, 255, v0")
    I(f"v_lshrrev_b32 v{vT5}, 7, v0")
    I(f"v_and_b32 v{vT6}, 127, v0")
    I(f"v_lshrrev_b32 v{vT7}, 3, v{vT6}")
    I(f"v_and_b32 v{vT6}, 7, v{vT6}")
    I(f"v_lshlrev_b32 v{vT6}, 3, v{vT6}")
    I(f"v_lshl_add_u32 v{vT6}, v{vT7}, 7, v{vT6}")
    I(f"v_lshl_add_u32 v{vRO}, v{vT5}, 6, v{vT6}")
    I(f"v_lshlrev_b32 v{vT5}, 3, v{vT5}")
    I(f"v_add_u32 v{vRS}, 0x800, v{vT5}")
    I(f"v_lshlrev_b32 v{vT5}, 2, v{vT5}")
    I(f"v_add_u32 v{vRS2}, 0x800, v{vT5}")
    I(f"v_mov_b32 v{vR}, 0xff800000")
    I(f"v_mov_b32 v{vR+1}, 0")
    I(f"v_mov_b32 v{vR+2}, 0")
    I(f"v_mov_b32 v{vR+3}, 0")
    I(f"s_add_u32 s{sXE}, s{sEXB}, s{sEXN}")
    I(f"v_min_u32 v{vT0}, s{sXE}, v{vCAPI}")
    I(f"v_max_u32 v{vT1}, s{sEXB}, v{vCAP}")
    I(f"v_sub_u32 v{vT0}, v{vT0}, v{vT1}")
    I(f"v_cmp_gt_u32 vcc, 32, v{vLane}")
    I(f"v_lshlrev_b32 v{vFlagOff}, 3, v{vLane}")
    I(f"v_add_u32 v{vFlagOff}, s{sH}, v{vFlagOff}")
    I(f"v_lshlrev_b32 v{vFlagOff}, 7, v{vFlagOff}")
    I(f"v_cndmask_b32 v{vT0}, 0, v{vT0}, vcc")
    I(f"v_cmp_lt_i32 s[{sNeedM}:{sNeedM+1}], 0, v{vT0}")
    I(f"s_add_u32 s{sCAPE}, s{sCAPB}, s{sHC}")
    I(f"v_min_u32 v{vT0}, s{sCAPE}, v{vEXI}")
    I(f"v_max_u32 v{vT1}, s{sCAPB}, v{vEX}")
    I(f"v_sub_u32 v{vT0}, v{vT0}, v{vT1}")
    I(f"v_cndmask_b32 v{vT0}, 0, v{vT0}, vcc")
    I(f"v_cmp_lt_i32 vcc, 0, v{vT0}")
    I("s_nop 3")
    I(f"s_bcnt1_i32_b64 s{sNP}, vcc")
    I(f"s_cmp_eq_u32 s{sEXN}, 0")
    I(f"s_cselect_b32 s{sRecState}, 1, 0")
    stamp(4)
    I("s_barrier")
    I(f"s_cmp_eq_u32 s{sNW}, 0")
    I("s_cbranch_scc1 L_done")
    E("L_p1:")
    phase1()
    I("s_cbranch_scc1 L_p1")
    I(f"s_mov_b32 s{sCnt}, 0")
    I(f"v_mov_b32 v{vScA}, v{vScB}")
    E("L_loop:")
    I(f"s_cmp_eq_u32 s{sRecState}, 1")
    I("s_cbranch_scc1 L_loop_go")
    I(f"s_add_u32 s{sT0}, s{sCnt}, {RECAT}")
    I(f"s_cmp_ge_u32 s{sT0}, s{sNW}")
    I("s_cbranch_scc1 L_rectry")
    E("L_loop_go:")
    phase2()
    I("s_cbranch_scc1 L_loop")
    E("L_done:")
    stamp(5)
    I(f"s_cmp_eq_u32 s{sPend}, 0")
    I("s_cbranch_scc1 L_fin0")
    I("s_waitcnt vmcnt(0)")
    fire_flag()
    E("L_fin0:")
    I("s_nop 7")
    dump_partial()
    I(f"v_add_u32 v{vT3}, {TAB_BASE}, v{vRO}")
    I(f"v_add_u32 v{vT4}, {TAB_BASE}, v{vRS}")
    I("s_waitcnt lgkmcnt(0)")
    I("s_barrier")
    for w in range(4):
        I(f"ds_read_b64 v[{vQ+4*w}:{vQ+1+4*w}], v{vT4} offset:{w*4096}")
        I(f"ds_read_b64 v[{vQ+2+4*w}:{vQ+3+4*w}], v{vT3} offset:{w*4096}")
    I("s_waitcnt lgkmcnt(0)")
    I(f"v_max3_f32 v{vT0}, v{vQ}, v{vQ+4}, v{vQ+8}")
    I(f"v_max3_f32 v{vT0}, v{vT0}, v{vQ+12}, v{vR}")
    I(f"v_sub_f32 v{vT1}, v{vR}, v{vT0}")
    for w in range(4):
        I(f"v_sub_f32 v{vQ+4*w}, v{vQ+4*w}, v{vT0}")
    I(f"v_exp_f32 v{vT1}, v{vT1}")
    for w in range(4):
        I(f"v_exp_f32 v{vQ+4*w}, v{vQ+4*w}")
    I(f"v_mov_b32 v{vR}, v{vT0}")
    I(f"v_mul_f32 v{vR+1}, v{vR+1}, v{vT1}")
    I(f"v_mul_f32 v{vR+2}, v{vR+2}, v{vT1}")
    I(f"v_mul_f32 v{vR+3}, v{vR+3}, v{vT1}")
    for w in range(4):
        I(f"v_fmac_f32 v{vR+1}, v{vQ+1+4*w}, v{vQ+4*w}")
        I(f"v_fmac_f32 v{vR+2}, v{vQ+2+4*w}, v{vQ+4*w}")
        I(f"v_fmac_f32 v{vR+3}, v{vQ+3+4*w}, v{vQ+4*w}")
    stamp(6)
    I(f"s_mov_b32 s{sRecBlock}, 1")
    I(f"s_cmp_lg_u32 s{sRecState}, 1")
    I("s_cbranch_scc1 L_rectry")
    E("L_store:")
    I(f"v_rcp_f32 v{vT0}, v{vR+1}")
    I(f"s_lshl_b32 s{sT0}, s2, 10")
    I(f"v_lshlrev_b32 v{vT1}, 2, v0")
    I(f"v_mul_f32 v{vR+2}, v{vR+2}, v{vT0}")
    I(f"v_mul_f32 v{vR+3}, v{vR+3}, v{vT0}")
    I(f"v_cvt_pk_bf16_f32 v{vT2}, v{vR+2}, v{vR+3}")
    I(f"buffer_store_dword v{vT2}, v{vT1}, s[{sO}:{sO+3}], s{sT0} offen")
    stamp(7)
    stamp_store()
    E("L_end:")
    I("s_endpgm")
    rare_path("a")
    flush_path("a")
    record_block()
    E("L_code_end:")
    E('.section .rodata,"a"')
    E(".p2align 6")
    E(f".amdhsa_kernel {NAME}_kernel")
    E("  .amdhsa_next_free_vgpr 256")
    E("  .amdhsa_next_free_sgpr 102")
    E("  .amdhsa_accum_offset 256")
    E("  .amdhsa_group_segment_fixed_size 0")
    E("  .amdhsa_kernarg_size 64")
    E("  .amdhsa_user_sgpr_count 2")
    E("  .amdhsa_user_sgpr_kernarg_segment_ptr 1")
    E("  .amdhsa_system_sgpr_workgroup_id_x 1")
    E(".end_amdhsa_kernel")

gen()
path = sys.argv[1] if len(sys.argv) > 1 else f"cdna_kernels/{NAME}.s"
open(path, "w").write("\n".join(out) + "\n")
print("wrote", path, len(out), "lines")
```
